```python
import torch

def _softmax(x, axis=-1):
    return torch.softmax(x, dim=axis)
def _gelu(x):
    return torch.nn.functional.gelu(x, approximate="tanh")
def _silu(x):
    return torch.nn.functional.silu(x)
def _sigmoid(x):
    return torch.sigmoid(x)
def _layernorm(x, axis=-1, eps=1e-5):
    m = x.mean(dim=axis, keepdim=True)
    v = x.var(dim=axis, keepdim=True, unbiased=False)
    return (x - m) / torch.sqrt(v + eps)
def _scatter_add(tgt, idx, src, axis=0):
    return tgt.clone().index_add_(axis, idx, src)
def _segment_sum(src, seg, n):
    out = torch.zeros((n,) + src.shape[1:], dtype=src.dtype)
    return out.index_add_(0, seg, src)
def _pad(x, pw):
    flat = tuple(v for pair in reversed(pw) for v in pair)
    return torch.nn.functional.pad(x, flat)

kernel_name = 'concat_heads__mha_block_cached__gqa_block_cached__near_ridge'

def setup_inputs():

    _w = (lambda a: (lambda t: t.to(torch.bfloat16) if t.is_floating_point() else t)(torch.as_tensor(a)))
    def _A_setup():
        B, Sq, D = 8, 144, 640
        H, Sk, Dh = 32, 1024, 128
        return {
            "x": _w((lambda *s: torch.randn(*s, dtype=torch.bfloat16) * 0.8)(B, Sq, D)),
            "k_cache": _w((lambda *s: torch.randn(*s, dtype=torch.bfloat16) * 0.8)(B, H, Sk, Dh)),
            "v_cache": _w((lambda *s: torch.randn(*s, dtype=torch.bfloat16) * 0.05)(B, H, Sk, Dh)),
            "wq": _w((lambda *s: torch.randn(*s, dtype=torch.bfloat16) * 0.8)(D, H * Dh) * (D ** -0.5)),
            "wo": _w((lambda *s: torch.randn(*s, dtype=torch.bfloat16) * 0.05)(H * Dh, D) * ((H * Dh) ** -0.5)),
        }
    _A_in = _A_setup()

    def _B_setup():
        B, Sq, D = 8, 144, 640
        Hq, Hkv, Sk, Dh = 32, 32, 1024, 128
        assert Hq % Hkv == 0, (Hq, Hkv)
        return {
            "x": _w((lambda *s: torch.randn(*s, dtype=torch.bfloat16) * 0.8)(B, Sq, D)),
            "k_cache": _w((lambda *s: torch.randn(*s, dtype=torch.bfloat16) * 0.8)(B, Hkv, Sk, Dh)),
            "v_cache": _w((lambda *s: torch.randn(*s, dtype=torch.bfloat16) * 0.05)(B, Hkv, Sk, Dh)),
            "wq": _w((lambda *s: torch.randn(*s, dtype=torch.bfloat16) * 0.8)(D, Hq * Dh) * (D ** -0.5)),
            "wo": _w((lambda *s: torch.randn(*s, dtype=torch.bfloat16) * 0.05)(Hq * Dh, D) * ((Hq * Dh) ** -0.5)),
        }
    _B_in = _B_setup()

    return {
        "A_x": _A_in["x"],
        "A_k_cache": _A_in["k_cache"],
        "A_v_cache": _A_in["v_cache"],
        "A_wq": _A_in["wq"],
        "A_wo": _A_in["wo"],
        "B_x": _B_in["x"],
        "B_k_cache": _B_in["k_cache"],
        "B_v_cache": _B_in["v_cache"],
        "B_wq": _B_in["wq"],
        "B_wo": _B_in["wo"],
    }

def reference(A_x, A_k_cache, A_v_cache, A_wq, A_wo, B_x, B_k_cache, B_v_cache, B_wq, B_wo):
    def _A_ref(x, k_cache, v_cache, wq, wo):
        B, Sq, D = x.shape
        H, Dh = 32, 128
        q = (lambda x, *d: x.permute(*d))((x @ wq).reshape(B, Sq, H, Dh), 0, 2, 1, 3)
        scores = torch.einsum("bhqd,bhkd->bhqk", q, k_cache) * (Dh ** -0.5)
        p = _softmax(scores, axis=-1)
        o = torch.einsum("bhqk,bhkd->bhqd", p, v_cache)
        return (lambda x, *d: x.permute(*d))(o, 0, 2, 1, 3).reshape(B, Sq, H * Dh) @ wo

    def _B_ref(x, k_cache, v_cache, wq, wo):
        B, Sq, D = x.shape
        Hq, Dh = 32, 128
        Hkv = k_cache.shape[1]
        rep = Hq // Hkv
        q = (lambda x, *d: x.permute(*d))((x @ wq).reshape(B, Sq, Hq, Dh), 0, 2, 1, 3)
        k = (lambda x, n, axis: torch.repeat_interleave(x, n, dim=axis))(k_cache, rep, axis=1)
        v = (lambda x, n, axis: torch.repeat_interleave(x, n, dim=axis))(v_cache, rep, axis=1)
        scores = torch.einsum("bhqd,bhkd->bhqk", q, k) * (Dh ** -0.5)
        p = _softmax(scores, axis=-1)
        o = torch.einsum("bhqk,bhkd->bhqd", p, v)
        return (lambda x, *d: x.permute(*d))(o, 0, 2, 1, 3).reshape(B, Sq, Hq * Dh) @ wo

    a = _A_ref(A_x, A_k_cache, A_v_cache, A_wq, A_wo)
    b = _B_ref(B_x, B_k_cache, B_v_cache, B_wq, B_wo)
    return torch.concatenate([a, b], axis=-1)
```

```python
import re
REG_RE=re.compile(r'\b([vsa])\[(\d+):(\d+)\]|\b([vsa])(\d+)\b|\b(vcc|m0|exec|scc)\b')
def regs_of(tok):
    out=[]
    for m in REG_RE.finditer(tok):
        if m.group(1):
            out+= [f"{m.group(1)}{i}" for i in range(int(m.group(2)),int(m.group(3))+1)]
        elif m.group(4):
            out.append(f"{m.group(4)}{m.group(5)}")
        else:
            out.append(m.group(6))
    return out
TRANS=('v_exp_f32','v_log_f32','v_rcp_f32','v_rsq_f32','v_sqrt_f32','v_sin_f32','v_cos_f32')
class I:
    __slots__=('text','op','kind','rd','wr','tag','srcc','srcab','prio')
    def __init__(s,text,tag=None,prio=0):
        s.text=text.strip(); s.tag=tag; s.prio=prio
        t=s.text.split(';')[0].strip()
        s.srcc=set(); s.srcab=set()
        if t.endswith(':') or t.startswith('.') or t=='':
            s.op=''; s.kind='label'; s.rd=set(); s.wr=set(); return
        parts=t.split(None,1); op=parts[0]; s.op=op
        ops=[x.strip() for x in split_ops(parts[1])] if len(parts)>1 else []
        rd=set(); wr=set()
        base=op.replace('_e32','').replace('_e64','').replace('_dpp','').replace('_sdwa','')
        if op.startswith('v_mfma'):
            s.kind='mfma'; wr|=set(regs_of(ops[0])); s.srcab=set(regs_of(ops[1]))|set(regs_of(ops[2])); s.srcc=set(regs_of(ops[3])); rd|=s.srcab|s.srcc
        elif op.startswith('v_cmp'):
            s.kind='valu'; wr|=set(regs_of(ops[0]));
            for o in ops[1:]: rd|=set(regs_of(o))
            if op.startswith('v_cmpx'): wr.add('exec')
        elif op.startswith('v_readfirstlane') or op.startswith('v_readlane'):
            s.kind='valu'; wr|=set(regs_of(ops[0]))
            for o in ops[1:]: rd|=set(regs_of(o))
        elif op.startswith('v_permlane') and 'swap' in op:
            s.kind='valu'; r=set(regs_of(ops[0]))|set(regs_of(ops[1])); wr|=r; rd|=r
        elif op.startswith('v_'):
            s.kind='trans' if base in TRANS else 'valu'
            wr|=set(regs_of(ops[0]))
            rest=ops[1:]
            if base in('v_add_co_u32','v_sub_co_u32','v_addc_co_u32','v_subb_co_u32','v_subrev_co_u32'):
                wr|=set(regs_of(ops[1])); rest=ops[2:]
            for o in rest: rd|=set(regs_of(o))
            if base.startswith('v_fmac') or base.startswith('v_mac') or base.startswith('v_dot2c') or base=='v_writelane_b32' or base.startswith('v_pk_fmac'): rd|=set(regs_of(ops[0]))
            if base=='v_cndmask_b32' and len(ops)==3: rd.add('vcc')
        elif op.startswith('ds_'):
            if op.startswith('ds_read') or op.startswith('ds_bpermute') or op.startswith('ds_permute') or op.startswith('ds_swizzle'):
                s.kind='dsr'; wr|=set(regs_of(ops[0]))
                for o in ops[1:]: rd|=set(regs_of(o.split(' offset')[0]))
            else:
                s.kind='dsw'
                for o in ops: rd|=set(regs_of(o.split(' offset')[0]))
        elif op.startswith('buffer_') or op.startswith('global_'):
            islds=bool(re.search(r'\blds\b',t)) or '_lds_' in op
            if op.startswith('buffer_wbl2') or op.startswith('buffer_inv'):
                s.kind='vmisc'
            elif 'load' in op:
                if islds:
                    s.kind='dma'
                    for o in ops: rd|=set(regs_of(o))
                    rd.add('m0')
                else:
                    s.kind='vld'; wr|=set(regs_of(ops[0]))
                    for o in ops[1:]: rd|=set(regs_of(o))
            elif 'atomic' in op:
                s.kind='vst'
                for o in ops: rd|=set(regs_of(o))
                if re.search(r'\bsc0\b',t): s.kind='vld'; wr|=set(regs_of(ops[0])[:1])
            else:
                s.kind='vst'
                for o in ops: rd|=set(regs_of(o))
        elif op.startswith('s_'):
            if op in('s_waitcnt','s_nop','s_barrier','s_endpgm','s_setprio','s_sleep','s_branch') :
                s.kind={'s_waitcnt':'wait','s_nop':'nop','s_barrier':'barrier','s_endpgm':'end','s_branch':'branch'}.get(op,'salu')
            elif op.startswith('s_cbranch'):
                s.kind='branch'
                if 'scc' in op: rd.add('scc')
                if 'vcc' in op: rd.add('vcc')
                if 'exec' in op: rd.add('exec')
            elif op.startswith('s_cmp') or op.startswith('s_bitcmp'):
                s.kind='salu'; wr.add('scc')
                for o in ops: rd|=set(regs_of(o))
            elif op.startswith('s_load') or op.startswith('s_memtime') or op.startswith('s_memrealtime') or op.startswith('s_buffer_load'):
                s.kind='smem'; wr|=set(regs_of(ops[0]))
                for o in ops[1:]: rd|=set(regs_of(o))
            else:
                s.kind='salu'; wr|=set(regs_of(ops[0]))
                for o in ops[1:]: rd|=set(regs_of(o))
                if op.startswith(('s_add','s_sub','s_and','s_or','s_xor','s_lshl','s_lshr','s_min','s_max','s_ashr','s_andn2','s_not','s_bfe')): wr.add('scc')
                if op.startswith(('s_addc','s_subb','s_cselect')): rd.add('scc')
                if 'saveexec' in op: wr.add('exec'); rd.add('exec')
                if op.startswith('s_addk') or op.startswith('s_mulk'): rd|=set(regs_of(ops[0]))
        else:
            raise ValueError('unknown op '+t)
        s.rd=rd; s.wr=wr
    def __repr__(s): return s.text
def split_ops(s):
    out=[];d=0;cur=''
    for ch in s:
        if ch=='[': d+=1
        if ch==']': d-=1
        if ch==',' and d==0: out.append(cur); cur=''
        else: cur+=ch
    out.append(cur); return out
def isv(r): return r[0]=='v' and r!='vcc'
def mfma_passes(i):
    if '32x32x16' in i.op or '32x32x8' in i.op: return 8
    if '16x16x32' in i.op or '16x16x16' in i.op: return 4
    raise ValueError(i.op)
D2V={4:8,8:12}; D2AB={4:8,8:12}; COVL={4:6,8:10}; WARC={4:3,8:7}
def states(i):
    if i.kind=='label': return 0
    if i.kind=='nop': return int(i.text.split()[1],0)+1
    return 1
def need_gap(p,c):
    n=0
    pv=p.kind in('valu','trans'); cv=c.kind in('valu','trans')
    if pv and c.kind=='mfma':
        if {r for r in p.wr if isv(r)} & c.rd: n=max(n,2)
        if 'exec' in p.wr: n=max(n,4)
    if p.kind=='mfma':
        ps=mfma_passes(p)
        if c.kind=='mfma':
            if p.wr & c.srcab: n=max(n,D2AB[ps])
            if p.wr & c.srcc:
                if not (p.wr==c.srcc and mfma_passes(c)==ps): n=max(n,COVL[ps])
        elif cv or c.kind in('dsr','dsw','vld','vst','dma'):
            if p.wr & (c.rd|c.wr): n=max(n,D2V[ps])
            if cv and (p.srcc & c.wr): n=max(n,WARC[ps])
    if p.kind=='trans' and cv and c.kind!='trans':
        if p.wr & c.rd: n=max(n,1)
    if p.kind=='trans' and c.kind=='trans' and (p.wr&c.rd): n=max(n,1)
    if pv:
        sw={r for r in p.wr if r[0]=='s' or r=='vcc'}
        if sw:
            if c.kind in('vld','vst','dma') and (sw & c.rd): n=max(n,5)
            if cv and (sw & c.rd): n=max(n,2)
            if c.op.startswith(('v_readlane','v_writelane')) and (sw&c.rd): n=max(n,4)
            if c.kind in('salu','branch') and (sw & c.rd): n=max(n,4)
            if c.kind=='branch' and 'vcc' in sw and 'vcc' in c.rd: n=max(n,5)
        vw={r for r in p.wr if isv(r)}
        if c.op.startswith(('v_readfirstlane','v_readlane')) and (vw&c.rd): n=max(n,1)
        if (c.op.startswith('v_permlane') or 'dpp' in c.text) and (vw&c.rd): n=max(n,2)
        if 'exec' in p.wr:
            if c.op.startswith(('v_readfirstlane','v_readlane','v_writelane','v_permlane')): n=max(n,4)
            if 'dpp' in c.text: n=max(n,5)
    if p.kind=='salu' and 'm0' in p.wr and c.kind=='dma': n=max(n,1)
    if p.kind=='vst' and ('x4' in p.op or 'x3' in p.op):
        if cv and (p.rd & c.wr & {r for r in p.rd if isv(r)}): n=max(n,2)
        elif c.wr & {r for r in p.rd if isv(r)}: n=max(n,1)
    if p.kind=='salu' and 'exec' in p.wr:
        pass
    return n
MAXLOOK=24
def fix_hazards(ins, wrap=None, verbose=False):
    out=[]; added=0
    for c in ins:
        if c.kind=='label': out.append(c); continue
        dist=0; need=0
        for p in reversed(out):
            if dist>=MAXLOOK: break
            if p.kind=='label': continue
            g=need_gap(p,c)
            if g>dist: need=max(need,g-dist)
            dist+=states(p)
        while need>0:
            k=min(need,16)
            out.append(I(f"s_nop {k-1}")); added+=k; need-=k
        out.append(c)
    return out,added
def check_loop_hazards(body):
    o,a=fix_hazards(body+body)
    o1,a1=fix_hazards(body)
    return a-2*a1
def insert_lgkm(ins, pending=None):
    q=list(pending or [])
    out=[]
    for c in ins:
        if c.kind=='wait':
            m=re.search(r'lgkmcnt\((\d+)\)',c.text)
            if m:
                n=int(m.group(1));
                while len(q)>n: q.pop(0)
            out.append(c); continue
        if c.kind in('label',): out.append(c); continue
        idx=-1
        for k,p in enumerate(q):
            if p.kind=='dsr' and (p.wr & (c.rd|c.wr)): idx=k
            if p.kind=='dsw' and False: pass
        if idx>=0:
            n=len(q)-1-idx
            n=min(n,15)
            out.append(I(f"s_waitcnt lgkmcnt({n})"))
            while len(q)>n: q.pop(0)
        if c.kind in('dsr','dsw'):
            if len(q)>=15:
                out.append(I("s_waitcnt lgkmcnt(14)"))
                while len(q)>14: q.pop(0)
            q.append(c)
        if c.kind=='smem': raise ValueError('smem inside lgkm-tracked code')
        out.append(c)
    return out,q

def cost(i):
    if i.kind=='mfma': return 8
    if i.kind=='trans': return 8
    if i.kind=='valu': return 4
    return 4
def schedule(ref, lds_lat=140, mfma_lat_extra=24, fixed_head=0, verbose=False):
    n=len(ref)
    preds=[[] for _ in range(n)]
    lastw={}; readers={}
    prev_mfma=None
    for j,c in enumerate(ref):
        deps={}
        for r in c.rd:
            if r in lastw:
                p=lastw[r]; P=ref[p]
                if P.kind=='dsr' or P.kind=='vld': lat=lds_lat
                elif P.kind=='mfma':
                    if c.kind=='mfma' and r in c.srcc and P.wr==c.srcc: lat=8
                    else: lat=16*mfma_passes(P)//4+mfma_lat_extra
                elif P.kind=='trans': lat=12
                else: lat=cost(P)+ (4 if c.kind=='mfma' else 0)
                deps[p]=max(deps.get(p,0),lat)
        for r in c.wr:
            if r in lastw:
                p=lastw[r]; P=ref[p]
                lat=cost(P)
                if P.kind=='mfma' and c.kind!='mfma': lat=16+mfma_lat_extra
                if P.kind=='dsr': lat=lds_lat
                deps[p]=max(deps.get(p,0),lat)
            for p in readers.get(r,[]):
                if p!=j:
                    P=ref[p]; lat=cost(P) if P.kind!='mfma' else 8
                    if P.kind=='mfma' and r in P.srcc and c.kind!='mfma': lat=20
                    deps[p]=max(deps.get(p,0),lat)
        if c.kind=='mfma':
            if prev_mfma is not None: deps[prev_mfma]=max(deps.get(prev_mfma,0),0)
            prev_mfma=j
        preds[j]=list(deps.items())
        for r in c.rd: readers.setdefault(r,[]).append(j)
        for r in c.wr:
            lastw[r]=j; readers[r]=[]
    succs=[[] for _ in range(n)]
    for j in range(n):
        for p,l in preds[j]: succs[p].append((j,l))
    cp=[0]*n
    for j in range(n-1,-1,-1):
        t=cost(ref[j]) if ref[j].kind!='mfma' else 16
        cp[j]=max([t]+[l+cp[s] for s,l in succs[j]])
    done=[False]*n; start=[None]*n
    order=[]
    t=0; port_free=0; pipe_free=0
    npred=[len(preds[j]) for j in range(n)]
    ready=[j for j in range(n) if npred[j]==0]
    lds_out=[]
    while len(order)<n:
        best=None
        cands=[]
        for j in ready:
            c=ref[j]
            e=t
            for p,l in preds[j]: e=max(e,start[p]+l)
            if c.kind=='mfma': e=max(e,port_free,pipe_free)
            elif c.kind in('valu','trans'): e=max(e,port_free)
            cands.append((e,j))
        emin=min(e for e,j in cands)
        avail=[(j) for e,j in cands if e<=emin]
        def key(j):
            c=ref[j]
            return (0 if c.kind=='mfma' else 1 if c.kind in('dsr','dsw','dma','salu') else 2, -cp[j]-c.prio, j)
        mf=[(e,j) for e,j in cands if ref[j].kind=='mfma']
        j=min(avail,key=key)
        c=ref[j]
        if c.kind!='mfma' and mf:
            em,jm=mf[0]
            if c.kind in('valu','trans') and em<emin+cost(c) and em>emin and em-emin<=3:
                j=jm; emin=em; c=ref[j]
        start[j]=emin
        order.append(j); ready.remove(j)
        if c.kind=='mfma':
            port_free=emin+8; pipe_free=emin+4*mfma_passes(c); t=emin+4
        elif c.kind in('valu','trans'):
            port_free=emin+cost(c); t=emin+4
        else:
            t=emin+4
        for s,l in succs[j]:
            npred[s]-=1
            if npred[s]==0: ready.append(s)
    if verbose: print('sched makespan',max(t,pipe_free),'n',n)
    return [ref[j] for j in order], max(t,pipe_free)
```

```python
import sys, math, struct
from isa import *
NAME='concat_heads__mha_block_cached__gqa_block_cached__near_ridge_kernel'
OPT=dict(dbg_q=0, stamps=0, qponly=0, qst=0, wxpf=1, kvpf=1, prio=2, k1only=0, k2only=0)
class P:
    def __init__(s): s.ins=[]; s.n=0
    def __call__(s,text,**kw):
        for l in text.strip('\n').split('\n'):
            l=l.strip()
            if l and not l.startswith(';'): s.ins.append(I(l,**kw))
    def add(s,lst): s.ins+=lst
    def label(s,name): s.ins.append(I(name+':'))
    CNT=[0]
    def new(s,p='L'):
        P.CNT[0]+=1; return f'{p}_{P.CNT[0]}'
def vr(a,n=4): return f"v[{a}:{a+n-1}]"
def sr(a,n=4): return f"s[{a}:{a+n-1}]"
def mfma(d,a,b,c):
    cs=c if isinstance(c,str) else vr(c)
    return f"v_mfma_f32_16x16x32_bf16 {vr(d)}, {vr(a)}, {vr(b)}, {cs}"
def f2u(f): return struct.unpack('<I',struct.pack('<f',f))[0]
CSC=math.log2(math.e)/math.sqrt(128.0)

O0,O1,O9=4,36,68
Q0,Q1,Q9=76,92,108
NM0,NM1,NM9=124,128,132
S0=[136,144]; S1=[152,160]; S9=168
KF=[176,180,184,188,240,244]; VF=[192,196,200,204,248,252]; P9F=208
L0=[212,213]; L1=[214,215]; L9=[216,217]
KA=[218,219,220,221]; VA=list(range(222,230))
DK=[230,231]; DV=[232,233]; P9A=234; BP16=235; BP32=236
sW=4; sH=5; sB=6; sBR=7
sK=8; sV=12; sWQ=16; sX=20; sO=24
sIT=42; sSOFF=43; sM0=44; sT=47; sT2=48; sSEL=49; sLAST=50
sXK=51; sWK=52; sQH=55; sDH=56; sXM=57; sXS=58; sWM=53
SLOT=16384
XS=[0,18432]; WB=36864; K0B=69632; P9B=77824; L9B=79872; QB=16384
WS_O=0; WS_PART=20<<20; O_BYTES=18874368; PART_BYTES=512*45*1024

def finish(body,**kw):
    o,ms=schedule(body,**kw)
    o,q=insert_lgkm(o)
    return o,ms,q
def stamp(b,idx):
    if OPT['stamps']:
        b(f"s_memrealtime s[{60+4*idx}:{61+4*idx}]")
        b(f"s_memtime s[{62+4*idx}:{63+4*idx}]")
        b("s_waitcnt lgkmcnt(0)")
def dump_stamps(b,n,srd,base):
    if OPT['stamps']:
        b(f"s_lshl_b32 s{sT}, s2, 2")
        b(f"s_add_u32 s{sT}, s{sT}, s{sW}")
        b(f"s_lshl_b32 s{sT}, s{sT}, 6")
        b(f"s_add_u32 s{sT}, s{sT}, {base}")
        b(f"s_mov_b32 s{srd+2}, 0x10000000")
        for i in range(n):
            b(f"v_mov_b32 v{2*i+4}, s{60+4*i}")
            b(f"v_mov_b32 v{2*i+5}, s{62+4*i}")
        b("v_mov_b32 v3, 0")
        b("s_mov_b64 exec, 1")
        for i in range(n):
            b(f"buffer_store_dwordx2 v[{2*i+4}:{2*i+5}], v3, s[{srd}:{srd+3}], s{sT} offen offset:{8*i}")
        b("s_waitcnt vmcnt(0)")

def att_step(p,ver):
    cur=p&1; nxt=cur^1; slot=p*SLOT
    b=P()
    b(f"ds_read_b128 {vr(P9F)}, v{P9A} offset:{cur*1024}")
    kbuf=0
    if ver!='final':
        for kt in range(2):
            for s in range(4):
                kf=KF[kbuf%len(KF)]; kbuf+=1
                b(f"ds_read_b128 {vr(kf)}, v{KA[s]} offset:{slot+kt*4096}")
                for (Sx,Qx,NM) in ((S0[nxt],Q0,NM0),(S1[nxt],Q1,NM1))+(((S9,Q9,NM9),) if ver=='t9' else ()):
                    d=Sx+4*kt
                    b(mfma(d,kf,Qx+4*s, NM if s==0 else d))
    def softmax(S,L):
        for r in range(8): b(f"v_exp_f32 v{S+r}, v{S+r}")
        for r in range(8): b(f"v_add_f32 v{L[r&1]}, v{L[r&1]}, v{S+r}")
        for r in range(4): b(f"v_cvt_pk_bf16_f32 v{S+r}, v{S+2*r}, v{S+2*r+1}")
    softmax(S1[cur],L1)
    for i in range(8):
        vf=VF[i%len(VF)]
        b(f"ds_read_b64_tr_b16 {vr(vf,2)}, v{VA[i]} offset:{slot}")
        b(f"ds_read_b64_tr_b16 {vr(vf+2,2)}, v{VA[i]} offset:{slot+4096}")
        b(mfma(O0+4*i,vf,S0[cur],O0+4*i))
        b(mfma(O1+4*i,vf,S1[cur],O1+4*i))
        if i<2: b(mfma(O9+4*i,vf,P9F,O9+4*i))
    if ver!='final': softmax(S0[nxt],L0)
    if ver=='t9':
        softmax(S9,L9)
        b(f"ds_write_b128 v{P9A}, {vr(S9)} offset:{nxt*1024}")
    return b.ins

def dma_slot(b,slotpos,kpart=True,vpart=True):
    if kpart:
        b(f"s_add_u32 m0, s{sM0}, {slotpos*SLOT}")
        b(f"s_add_u32 s{sT}, s{sSOFF}, 8192")
        b(f"buffer_load_dwordx4 v{DK[0]}, {sr(sK)}, s{sT} offen nt lds")
        b(f"buffer_load_dwordx4 v{DK[1]}, {sr(sK)}, s{sT} offen offset:1024 nt lds")
    if vpart:
        b(f"s_add_u32 m0, s{sM0}, {slotpos*SLOT+8192}")
        b(f"s_nop 0")
        b(f"buffer_load_dwordx4 v{DV[0]}, {sr(sV)}, s{sSOFF} offen nt lds")
        b(f"buffer_load_dwordx4 v{DV[1]}, {sr(sV)}, s{sSOFF} offen offset:1024 nt lds")

def decode_ids(b):
    b(f"""
s_bfe_u32 s{sBR}, s2, 0x10002
s_and_b32 s{sH}, s2, 3
s_lshl_b32 s{sH}, s{sH}, 3
s_bfe_u32 s{sT}, s2, 0x30003
s_add_u32 s{sH}, s{sH}, s{sT}
s_bfe_u32 s{sB}, s2, 0x20006
s_lshr_b32 s{sT}, s2, 8
s_lshl_b32 s{sT}, s{sT}, 2
s_add_u32 s{sB}, s{sB}, s{sT}
""")

def gen_k1():
    b=P()
    b("s_cmp_ge_u32 s2, 512")
    b("s_cbranch_scc1 K1_END")
    decode_ids(b)
    b(f"""
s_mul_i32 s3, s{sBR}, 40
s_add_u32 s28, s0, s3
s_addc_u32 s29, s1, 0
s_load_dwordx8 s[32:39], s[28:29], 0
s_load_dwordx2 s[40:41], s[0:1], 96
v_lshrrev_b32 v1, 6, v0
v_and_b32 v0, 63, v0
s_nop 0
v_readfirstlane_b32 s{sW}, v1
v_and_b32 v1, 15, v0
v_lshrrev_b32 v2, 4, v0
""")
    if OPT['stamps']:
        b("s_memrealtime s[60:61]"); b("s_memtime s[62:63]")
    if OPT['prio']:
        b("s_cmp_lt_u32 s2, 256")
        b("s_cbranch_scc0 K1_NOPRIO")
        b(f"s_setprio {OPT['prio']}")
        b.label("K1_NOPRIO")
    qWA=[148,149,150,151]; qXB=[152,153]; qX9=[154,155]; qDX=[156,157]; qDW=[158,159,160]
    FA=[76,112]
    b(f"""
v_lshrrev_b32 v3, 3, v0
v_mul_u32_u24 v3, 1280, v3
v_and_b32 v4, 7, v0
v_xor_b32 v5, v4, v2
v_lshl_add_u32 v{qDX[0]}, v5, 4, v3
v_xor_b32 v5, 4, v5
v_lshl_add_u32 v{qDX[1]}, v5, 4, v3
""")
    for e in range(3):
        b(f"""
s_mul_i32 s{sT}, s{sW}, 3
s_add_u32 s{sT}, s{sT}, {e}
s_min_u32 s{sT}, s{sT}, 7
s_bfe_u32 s{sT2}, s{sT}, 0x10001
s_lshl_b32 s{sT2}, s{sT2}, 3
v_lshlrev_b32 v3, 1, v2
v_add_u32 v3, s{sT2}, v3
v_xor_b32 v3, v1, v3
v_lshlrev_b32 v3, 4, v3
v_lshl_add_u32 v3, v2, 13, v3
s_lshl_b32 s{sT2}, s{sT}, 15
v_add_u32 v{qDW[e]}, s{sT2}, v3
s_lshl_b32 s{70+e}, s{sT}, 10
s_add_u32 s{70+e}, s{70+e}, {WB}
""")
    b(f"""
s_mul_i32 s{sXM}, s{sW}, {6*1024}
s_mul_i32 s{sXS}, s{sW}, {6*10240}
s_mov_b32 s{sXK}, 0
s_mov_b32 s{sWK}, 0
s_and_b32 s{sQH}, s{sW}, 1
s_lshr_b32 s{sDH}, s{sW}, 1
s_lshl_b32 s{sM0}, s{sW}, 11
s_waitcnt lgkmcnt(0)
""")
    b(f"""
s_mul_i32 s{sT}, s{sB}, 184320
s_add_u32 s{sX}, s32, s{sT}
s_addc_u32 s{sX+1}, s33, 0
s_mov_b32 s{sX+2}, 184320
s_mov_b32 s{sX+3}, 0x20000
s_lshl_b32 s{sT}, s{sH}, 8
s_add_u32 s{sWQ}, s38, s{sT}
s_addc_u32 s{sWQ+1}, s39, 0
s_sub_u32 s{sWQ+2}, 5242880, s{sT}
s_mov_b32 s{sWQ+3}, 0x20000
s_lshl_b32 s{sT}, s{sB}, 5
s_add_u32 s{sT}, s{sT}, s{sH}
s_lshr_b32 s{sT2}, s{sT}, 14
s_lshl_b32 s{sT}, s{sT}, 18
s_add_u32 s{sK}, s34, s{sT}
s_addc_u32 s{sK+1}, s35, s{sT2}
s_mov_b32 s{sK+2}, 262144
s_mov_b32 s{sK+3}, 0x20000
s_add_u32 s{sV}, s36, s{sT}
s_addc_u32 s{sV+1}, s37, s{sT2}
s_mov_b32 s{sV+2}, 262144
s_mov_b32 s{sV+3}, 0x20000
s_mov_b32 s{sO}, s40
s_mov_b32 s{sO+1}, s41
s_mov_b32 s{sO+2}, {O_BYTES}
s_mov_b32 s{sO+3}, 0x20000
""")
    def xunit(slot):
        b(f"s_add_u32 s{sT}, s{sXS}, s{sXK}")
        b(f"s_add_u32 m0, s{sXM}, {XS[slot]}")
        for e in range(6):
            if e>0:
                b(f"s_add_u32 m0, m0, 1024")
                b(f"s_add_u32 s{sT}, s{sT}, 10240")
            else:
                b("s_nop 0")
            b(f"buffer_load_dwordx4 v{qDX[e&1]}, {sr(sX)}, s{sT} offen lds")
        b(f"s_add_u32 s{sXK}, s{sXK}, 128")
    def wchunk(slot):
        for e in range(3):
            b(f"s_add_u32 m0, s{70+e}, {slot*8192}")
            b("s_nop 0")
            b(f"buffer_load_dwordx4 v{qDW[e]}, {sr(sWQ)}, s{sWK} offen lds")
        b(f"s_add_u32 s{sWK}, s{sWK}, {32*8192}")
    b(f"s_cmp_eq_u32 s{sW}, 3")
    b("s_cbranch_scc1 K1_START3")
    xunit(0); wchunk(0); wchunk(1); xunit(1); wchunk(2); wchunk(3)
    b("s_branch K1_STARTJ")
    b.label("K1_START3")
    if OPT['wxpf']:
        b(f"v_lshrrev_b32 v3, 1, v0")
        b(f"v_and_b32 v4, 1, v0")
        b(f"v_lshlrev_b32 v4, 7, v4")
        for t in range(3):
            b(f"v_add_u32 v5, {32*t}, v3")
            b(f"v_min_u32 v5, 79, v5")
            b(f"v_lshlrev_b32 v5, 3, v5")
            b(f"v_add_u32 v5, s{sB}, v5")
            b(f"v_lshl_add_u32 v5, v5, 13, v4")
            b(f"buffer_load_dword v{164+t}, v5, {sr(sWQ)}, 0 offen")
        b(f"s_and_b32 s{sT}, s{sH}, 7")
        b(f"s_mov_b32 s{sT2}, {(1<<16)//18+1}")
        for t in range(3):
            b(f"v_add_u32 v5, {64*t}, v0")
            b(f"v_min_u32 v5, 179, v5")
            b(f"v_mul_u32_u24 v6, s{sT2}, v5")
            b(f"v_lshrrev_b32 v6, 16, v6")
            b(f"v_mul_u32_u24 v7, 18, v6")
            b(f"v_sub_u32 v7, v5, v7")
            b(f"v_lshlrev_b32 v7, 3, v7")
            b(f"v_add_u32 v7, s{sT}, v7")
            b(f"v_mul_u32_u24 v7, 1280, v7")
            b(f"v_lshl_add_u32 v7, v6, 7, v7")
            b(f"buffer_load_dword v{168+t}, v7, {sr(sX)}, 0 offen")
    for vw in range(4):
        b(f"""
v_add_u32 v3, {8*vw}, v2
v_lshlrev_b32 v4, 8, v3
v_and_b32 v5, 15, v3
v_xor_b32 v5, v1, v5
v_lshl_add_u32 v6, v5, 4, v4
v_add_u32 v5, 4, v3
v_and_b32 v5, 15, v5
v_xor_b32 v5, v1, v5
v_lshl_add_u32 v7, v5, 4, v4
s_mov_b32 m0, {K0B+vw*2048}
s_nop 0
buffer_load_dwordx4 v6, {sr(sK)}, 0 offen nt lds
buffer_load_dwordx4 v7, {sr(sK)}, 0 offen offset:1024 nt lds
""")
    if OPT['kvpf']:
        b("s_cmp_lt_u32 s2, 256")
        b("s_cbranch_scc0 K1_STARTJ")
        b(f"v_lshlrev_b32 v3, 7, v0")
        for t in range(OPT['kvpf']):
            b(f"s_mov_b32 s{sT}, {(t+1)*8192}")
            b(f"buffer_load_dword v{172+2*t}, v3, {sr(sK)}, s{sT} offen")
            b(f"s_mov_b32 s{sT}, {t*8192}")
            b(f"buffer_load_dword v{173+2*t}, v3, {sr(sV)}, s{sT} offen")
    b.label("K1_STARTJ")
    b(f"""
s_lshl_b32 s{sT}, s{sW}, 3
v_add_u32 v3, s{sT}, v2
v_lshlrev_b32 v4, 8, v3
v_and_b32 v5, 15, v3
v_xor_b32 v5, v1, v5
v_lshl_add_u32 v{DK[0]}, v5, 4, v4
v_add_u32 v5, 4, v3
v_and_b32 v5, 15, v5
v_xor_b32 v5, v1, v5
v_lshl_add_u32 v{DK[1]}, v5, 4, v4
v_lshlrev_b32 v5, 1, v2
v_xor_b32 v5, v1, v5
v_lshl_add_u32 v{DV[0]}, v5, 4, v4
v_lshlrev_b32 v5, 1, v2
v_add_u32 v5, 8, v5
v_xor_b32 v5, v1, v5
v_lshl_add_u32 v{DV[1]}, v5, 4, v4
""")
    b(f"""
v_bfe_u32 v3, v0, 2, 2
v_and_b32 v4, 1, v2
v_lshl_add_u32 v4, v4, 2, v3
v_lshl_add_u32 v5, v2, 3, v3
v_lshlrev_b32 v5, 8, v5
v_and_b32 v6, 3, v0
v_lshl_add_u32 v5, v6, 3, v5
v_add_u32 v5, {WB}, v5
""")
    for i in range(4):
        b(f"""
s_lshl_b32 s{sT}, s{sQH}, 1
s_add_u32 s{sT}, s{sT}, {i}
s_and_b32 s{sT}, s{sT}, 3
s_lshl_b32 s{sT2}, s{sDH}, 2
s_add_u32 s{sT}, s{sT}, s{sT2}
v_xor_b32 v6, s{sT}, v4
v_lshl_add_u32 v{qWA[i]}, v6, 5, v5
""")
    b(f"""
v_lshrrev_b32 v3, 1, v1
v_xor_b32 v3, v3, v2
v_lshlrev_b32 v3, 4, v3
v_lshl_add_u32 v3, v1, 7, v3
s_lshl_b32 s{sT}, s{sQH}, 13
v_add_u32 v{qXB[0]}, s{sT}, v3
v_xor_b32 v{qXB[1]}, 64, v{qXB[0]}
v_add_u32 v{qX9[0]}, 16384, v3
v_xor_b32 v{qX9[1]}, 64, v{qX9[0]}
""")
    for r in range(O0,O0+72): b(f"v_mov_b32 v{r}, 0")
    def qreads(bb,k,fs):
        wb=(k%4)*8192; xb=XS[(k>>1)&1]; e=k&1
        for i in range(4):
            bb(f"ds_read_b64_tr_b16 {vr(fs+4*i,2)}, v{qWA[i]} offset:{wb}")
            bb(f"ds_read_b64_tr_b16 {vr(fs+4*i+2,2)}, v{qWA[i]} offset:{wb+1024}")
        for t in range(4):
            bb(f"ds_read_b128 {vr(fs+16+4*t)}, v{qXB[e]} offset:{xb+t*2048}")
        bb(f"ds_read_b128 {vr(fs+32)}, v{qX9[e]} offset:{xb}")
    b(f"s_cmp_eq_u32 s{sW}, 3")
    b("s_cbranch_scc1 K1_QP0")
    b("s_waitcnt vmcnt(15)")
    b.label("K1_QP0")
    b("s_barrier")
    qreads(b,0,FA[0])
    b(f"s_mov_b32 s{sIT}, 0")
    b.label("K1_QLOOP")
    b(f"s_cmp_eq_u32 s{sIT}, 4")
    b(f"s_cselect_b32 s{sLAST}, 1, 0")
    for p in range(4):
        l3=b.new('Q'); lj=b.new('Q'); ll=b.new('Q')
        b(f"s_cmp_eq_u32 s{sW}, 3")
        b(f"s_cbranch_scc1 {l3}")
        b(f"s_cmp_eq_u32 s{sLAST}, 1")
        b(f"s_cbranch_scc1 {ll}")
        b(f"s_waitcnt vmcnt({12 if p%2==0 else 6}) lgkmcnt(0)")
        b("s_barrier")
        if p%2==1: xunit((p>>1)&1)
        wchunk(p)
        b(f"s_branch {lj}")
        b.label(ll)
        b(f"s_waitcnt vmcnt({[12,3,0,0][p]}) lgkmcnt(0)")
        b("s_barrier")
        b(f"s_branch {lj}")
        b.label(l3)
        b("s_waitcnt lgkmcnt(0)")
        b("s_barrier")
        b.label(lj)
        if OPT['qst']:
            b("s_memtime s[90:91]")
            b("s_waitcnt lgkmcnt(0)")
            b(f"s_lshl_b32 s92, s{sIT}, 2")
            b(f"s_add_u32 s92, s92, {p}")
            b("s_mov_b32 m0, s92")
            b("s_sub_u32 s90, s90, s62")
            b("v_writelane_b32 v200, s90, m0")
        body=P()
        cur=FA[p&1]; nxt=FA[(p&1)^1]
        qreads(body,p+1,nxt)
        for i in range(4):
            for t in range(4):
                body(mfma(O0+16*t+4*i,cur+4*i,cur+16+4*t,O0+16*t+4*i))
            if i<2: body(mfma(O9+4*i,cur+4*i,cur+32,O9+4*i))
        rd=[x for x in body.ins if x.kind=='dsr']; mf=[x for x in body.ins if x.kind=='mfma']
        o=[]
        for idx,m in enumerate(mf):
            o.append(m)
            if idx<len(rd): o.append(rd[idx])
        b.add(o)
    b(f"s_add_u32 s{sIT}, s{sIT}, 1")
    b(f"s_cmp_lt_u32 s{sIT}, 5")
    b("s_cbranch_scc1 K1_QLOOP")
    stamp(b,1)
    if OPT['qponly']:
        b("s_waitcnt vmcnt(0)")
        if OPT['qst']:
            b(f"s_lshl_b32 s{sT}, s2, 2")
            b(f"s_add_u32 s{sT}, s{sT}, s{sW}")
            b(f"s_lshl_b32 s{sT}, s{sT}, 8")
            b(f"s_add_u32 s{sT}, s{sT}, {60<<20}")
            b(f"s_mov_b32 s{sO+2}, 0x10000000")
            b("v_lshlrev_b32 v3, 2, v0")
            b(f"buffer_store_dword v200, v3, {sr(sO)}, s{sT} offen")
        for i in (2,3,4): stamp(b,i)
        dump_stamps(b,5,sO,50<<20)
        b("s_endpgm")
    b("s_waitcnt vmcnt(0) lgkmcnt(0)")
    b("s_barrier")
    b("s_setprio 0")
    b(f"s_mov_b32 s{sSOFF}, 0")
    dma_slot(b,0)
    b(f"s_mov_b32 s{sSEL}, {f2u(CSC)}")
    b(f"""
v_lshlrev_b32 v3, 8, v1
v_and_b32 v76, 1, v2
v_lshl_add_u32 v3, v76, 3, v3
v_add_u32 v3, {QB}, v3
v_lshrrev_b32 v77, 1, v2
s_lshl_b32 s{sT2}, s{sQH}, 14
v_add_u32 v78, s{sT2}, v3
""")
    for i in range(4):
        b(f"""
s_lshl_b32 s{sIT}, s{sQH}, 1
s_add_u32 s{sIT}, s{sIT}, {i}
s_and_b32 s{sIT}, s{sIT}, 3
s_lshl_b32 s{sT2}, s{sDH}, 2
s_add_u32 s{sIT}, s{sIT}, s{sT2}
s_lshl_b32 s{sIT}, s{sIT}, 1
v_add_u32 v79, s{sIT}, v77
v_xor_b32 v79, v79, v1
v_lshlrev_b32 v79, 4, v79
v_add_u32 v80, v79, v78
""")
        for t in range(4):
            acc=O0+16*t+4*i
            for r in range(4): b(f"v_mul_f32 v{acc+r}, s{sSEL}, v{acc+r}")
            b(f"v_cvt_pk_bf16_f32 v{acc}, v{acc}, v{acc+1}")
            b(f"v_cvt_pk_bf16_f32 v{acc+1}, v{acc+2}, v{acc+3}")
            b(f"ds_write_b64 v80, {vr(acc,2)} offset:{t*4096}")
        if i<2:
            acc=O9+4*i
            b(f"v_add_u32 v82, v79, v3")
            for r in range(4): b(f"v_mul_f32 v{acc+r}, s{sSEL}, v{acc+r}")
            b(f"v_cvt_pk_bf16_f32 v{acc}, v{acc}, v{acc+1}")
            b(f"v_cvt_pk_bf16_f32 v{acc+1}, v{acc+2}, v{acc+3}")
            b(f"ds_write_b64 v82, {vr(acc,2)} offset:32768")
    for s in range(4):
        b(f"""
v_add_u32 v79, {4*s}, v2
v_xor_b32 v79, v79, v1
v_lshlrev_b32 v79, 4, v79
v_lshl_add_u32 v{KA[s]}, v1, 8, v79
""")
    b(f"s_lshl_b32 s{sT2}, s{sW}, 13")
    b(f"s_add_u32 s{sT2}, s{sT2}, {QB}")
    for s in range(4):
        b(f"v_add_u32 v{236+s}, s{sT2}, v{KA[s]}")
        b(f"v_add_u32 v{S1[1]+s}, {K0B}, v{KA[s]}")
    b("s_waitcnt lgkmcnt(0)")
    b("s_barrier")
    for s in range(4): b(f"ds_read_b128 {vr(Q0+4*s)}, v{236+s} offset:0")
    for s in range(4): b(f"ds_read_b128 {vr(Q1+4*s)}, v{236+s} offset:4096")
    for s in range(4): b(f"ds_read_b128 {vr(Q9+4*s)}, v{KA[s]} offset:{QB+32768}")
    b(f"""
v_bfe_u32 v3, v0, 2, 2
v_and_b32 v4, 1, v2
v_lshl_add_u32 v4, v4, 2, v3
v_lshl_add_u32 v5, v2, 2, v3
v_lshlrev_b32 v5, 8, v5
v_and_b32 v6, 3, v0
v_lshl_add_u32 v5, v6, 3, v5
v_add_u32 v5, 8192, v5
s_lshl_b32 s{sT}, s{sW}, 1
""")
    for i in range(8):
        b(f"""
s_add_u32 s{sT2}, s{sT}, {i}
s_and_b32 s{sT2}, s{sT2}, 7
v_xor_b32 v6, s{sT2}, v4
v_lshl_add_u32 v{VA[i]}, v6, 5, v5
""")
    b(f"""
v_lshlrev_b32 v{P9A}, 4, v0
v_add_u32 v{P9A}, {P9B}, v{P9A}
v_xor_b32 v{BP16}, 16, v0
v_lshlrev_b32 v{BP16}, 2, v{BP16}
""")
    for r in range(O0,O0+72): b(f"v_mov_b32 v{r}, 0")
    for r in L0+L1+L9: b(f"v_mov_b32 v{r}, 0")
    b("s_waitcnt lgkmcnt(0)")
    b(f"v_xor_b32 v{BP32}, 32, v0")
    b(f"v_lshlrev_b32 v{BP32}, 2, v{BP32}")
    b("s_barrier")
    if OPT['dbg_q']:
        b(f"""
s_mul_i32 s{sT}, s2, {4*12*1024}
s_mul_i32 s{sT2}, s{sW}, {12*1024}
s_add_u32 s{sT}, s{sT}, s{sT2}
v_lshlrev_b32 v3, 4, v0
s_mov_b32 s{sO+2}, 0x10000000
""")
        for f in range(12):
            b(f"buffer_store_dwordx4 {vr(Q0+4*f)}, v3, {sr(sO)}, s{sT} offen")
            b(f"s_add_u32 s{sT}, s{sT}, 1024")
        b("s_waitcnt vmcnt(0)")
        b("s_branch K1_END")
    for sl in (1,2):
        b(f"s_mov_b32 s{sSOFF}, {sl*8192}")
        dma_slot(b,sl)
    b(f"s_mov_b32 s{sSOFF}, {3*8192}")
    pb=P()
    for kt in range(2):
        for s in range(4):
            kf=KF[(kt*4+s)%len(KF)]
            pb(f"ds_read_b128 {vr(kf)}, v{S1[1]+s} offset:{kt*4096}")
            for (Sx,Qx) in ((S0[0],Q0),(S1[0],Q1),(S9,Q9)):
                d=Sx+4*kt
                pb(mfma(d,kf,Qx+4*s,'0' if s==0 else d))
    o,ms,q=finish(pb.ins); b.add(o)
    TT=((S0[0],NM0),(S1[0],NM1),(S9,NM9))
    for (Sx,NM) in TT:
        b(f"""
v_max3_f32 v{NM}, v{Sx}, v{Sx+1}, v{Sx+2}
v_max3_f32 v{NM+2}, v{Sx+3}, v{Sx+4}, v{Sx+5}
v_max3_f32 v{NM}, v{NM}, v{Sx+6}, v{Sx+7}
v_max_f32 v{NM}, v{NM}, v{NM+2}
ds_bpermute_b32 v{NM+1}, v{BP16}, v{NM}
""")
    b("s_waitcnt lgkmcnt(0)")
    for (Sx,NM) in TT:
        b(f"v_max_f32 v{NM}, v{NM}, v{NM+1}")
        b(f"ds_bpermute_b32 v{NM+1}, v{BP32}, v{NM}")
    b("s_waitcnt lgkmcnt(0)")
    for (Sx,NM) in TT:
        b(f"""
v_max_f32 v{NM}, v{NM}, v{NM+1}
v_sub_f32 v{NM}, 0, v{NM}
v_mov_b32 v{NM+1}, v{NM}
v_mov_b32 v{NM+2}, v{NM}
v_mov_b32 v{NM+3}, v{NM}
""")
        for r in range(8): b(f"v_add_f32 v{Sx+r}, v{Sx+r}, v{NM}")
    def softmax_seq(S,L):
        for r in range(8): b(f"v_exp_f32 v{S+r}, v{S+r}")
        for r in range(8): b(f"v_add_f32 v{L[r&1]}, v{L[r&1]}, v{S+r}")
        for r in range(4): b(f"v_cvt_pk_bf16_f32 v{S+r}, v{S+2*r}, v{S+2*r+1}")
    softmax_seq(S0[0],L0)
    b(f"s_cmp_lg_u32 s{sW}, 0")
    b("s_cbranch_scc1 K1_NOP9")
    softmax_seq(S9,L9)
    b(f"ds_write_b128 v{P9A}, {vr(S9)} offset:0")
    b.label("K1_NOP9")
    b(f"s_mov_b32 s{sIT}, 0")
    stamp(b,2)
    bodies={}
    for p in range(4):
        for ver in ('plain','t9')+(('final',) if p==3 else ()):
            o,ms,q=finish(att_step(p,ver))
            if q: o=o+[I("s_waitcnt lgkmcnt(0)")]
            bodies[(p,ver)]=o
    b.label("K1_LOOP")
    b(f"s_cmp_eq_u32 s{sIT}, 7")
    b(f"s_cselect_b32 s{sLAST}, 1, 0")
    for p in range(4):
        d1=b.new('D'); d2=b.new('D')
        if p==0:
            b("s_waitcnt vmcnt(8) lgkmcnt(0)")
            b("s_barrier")
            b(f"s_cmp_eq_u32 s{sLAST}, 1")
            b(f"s_cbranch_scc1 {d1}")
            dma_slot(b,(p+3)%4,True,False)
            b.label(d1)
            dma_slot(b,(p+3)%4,False,True)
            b(f"s_add_u32 s{sSOFF}, s{sSOFF}, 8192")
        else:
            b(f"s_cmp_eq_u32 s{sLAST}, 1")
            b(f"s_cbranch_scc1 {d1}")
            b("s_waitcnt vmcnt(8) lgkmcnt(0)")
            b("s_barrier")
            dma_slot(b,(p+3)%4)
            b(f"s_add_u32 s{sSOFF}, s{sSOFF}, 8192")
            b(f"s_branch {d2}")
            b.label(d1)
            b(f"s_waitcnt vmcnt({[0,6,2,0][p]}) lgkmcnt(0)")
            b("s_barrier")
            if p==3: b("s_branch K1_FINAL")
            b.label(d2)
        b(f"s_cmp_eq_u32 s{sW}, {(p+1)%4}")
        b(f"s_cbranch_scc1 K1_T9_{p}")
        b.add(bodies[(p,'plain')])
        b.label(f"K1_NEXT_{p}")
    b(f"s_add_u32 s{sIT}, s{sIT}, 1")
    b("s_branch K1_LOOP")
    for p in range(4):
        b.label(f"K1_T9_{p}")
        b.add(bodies[(p,'t9')])
        b(f"s_branch K1_NEXT_{p}")
    b.label("K1_FINAL")
    b.add(bodies[(3,'final')])
    stamp(b,3)
    LL=(L0,L1,L9)
    for L in LL:
        b(f"v_add_f32 v{L[0]}, v{L[0]}, v{L[1]}")
        b(f"ds_bpermute_b32 v{L[1]}, v{BP16}, v{L[0]}")
    b("s_waitcnt lgkmcnt(0)")
    for L in LL:
        b(f"v_add_f32 v{L[0]}, v{L[0]}, v{L[1]}")
        b(f"ds_bpermute_b32 v{L[1]}, v{BP32}, v{L[0]}")
    b("s_waitcnt lgkmcnt(0)")
    for L in LL: b(f"v_add_f32 v{L[0]}, v{L[0]}, v{L[1]}")
    b(f"""
s_lshl_b32 s{sT}, s{sW}, 8
v_lshlrev_b32 v3, 2, v0
v_add_u32 v3, {L9B}, v3
v_add_u32 v1, s{sT}, v3
ds_write_b32 v1, v{L9[0]}
v_rcp_f32 v{L0[0]}, v{L0[0]}
v_rcp_f32 v{L1[0]}, v{L1[0]}
s_waitcnt lgkmcnt(0)
s_barrier
ds_read_b32 v{S9}, v3
ds_read_b32 v{S9+1}, v3 offset:256
ds_read_b32 v{S9+2}, v3 offset:512
ds_read_b32 v{S9+3}, v3 offset:768
""")
    b(f"""
s_lshl_b32 s{sT}, s{sBR}, 3
s_add_u32 s{sT}, s{sT}, s{sB}
s_mul_i32 s{sT}, s{sT}, 9
s_lshl_b32 s{sT2}, s{sW}, 1
s_add_u32 s{sSEL}, s{sT}, s{sT2}
s_lshl_b32 s{sSEL}, s{sSEL}, 5
s_add_u32 s{sSEL}, s{sSEL}, s{sH}
s_lshl_b32 s{sSEL}, s{sSEL}, 12
s_add_u32 s{sT}, s{sT}, 8
s_lshl_b32 s{sT}, s{sT}, 5
s_add_u32 s{sT}, s{sT}, s{sH}
s_lshl_b32 s{sIT}, s{sT}, 12
v_lshlrev_b32 v3, 4, v0
""")
    def pack(acc,i,L):
        for r in range(8): b(f"v_mul_f32 v{acc+4*i+r}, v{acc+4*i+r}, v{L}")
        b(f"v_cvt_pk_bf16_f32 v{acc+4*i}, v{acc+4*i}, v{acc+4*i+1}")
        b(f"v_cvt_pk_bf16_f32 v{acc+4*i+1}, v{acc+4*i+2}, v{acc+4*i+3}")
        b(f"v_cvt_pk_bf16_f32 v{acc+4*i+2}, v{acc+4*i+4}, v{acc+4*i+5}")
        b(f"v_cvt_pk_bf16_f32 v{acc+4*i+3}, v{acc+4*i+6}, v{acc+4*i+7}")
    for i in (0,2,4,6):
        b(f"""
s_add_u32 s{sT2}, s{sW}, {i//2}
s_and_b32 s{sT2}, s{sT2}, 3
s_lshl_b32 s{sT2}, s{sT2}, 10
s_add_u32 s{sLAST}, s{sT2}, s{sSEL}
""")
        pack(O0,i,L0[0])
        b(f"buffer_store_dwordx4 {vr(O0+4*i)}, v3, {sr(sO)}, s{sLAST} offen")
        b(f"s_add_u32 s{sLAST}, s{sLAST}, {32*4096}")
        pack(O1,i,L1[0])
        b(f"buffer_store_dwordx4 {vr(O1+4*i)}, v3, {sr(sO)}, s{sLAST} offen")
    b(f"""
s_waitcnt lgkmcnt(0)
v_add_f32 v{S9}, v{S9}, v{S9+1}
v_add_f32 v{S9+2}, v{S9+2}, v{S9+3}
v_add_f32 v{L9[0]}, v{S9}, v{S9+2}
v_rcp_f32 v{L9[0]}, v{L9[0]}
s_lshl_b32 s{sT2}, s{sW}, 10
s_add_u32 s{sLAST}, s{sT2}, s{sIT}
""")
    pack(O9,0,L9[0])
    b(f"buffer_store_dwordx4 {vr(O9)}, v3, {sr(sO)}, s{sLAST} offen")
    if OPT['stamps']:
        b("s_waitcnt vmcnt(0)")
        stamp(b,4)
        dump_stamps(b,5,sO,50<<20)
    b.label("K1_END")
    b("s_endpgm")
    ins,added=fix_hazards(b.ins)
    print(f"; k1: {len(ins)} instrs, {added} nop states added",file=sys.stderr)
    return ins

def gen_k2():
    b=P()
    sWO=8; sOF=12; sPT=16; sOUT=20; sDBG=28
    sNT=5; sHQ=45
    ACC0,ACC1,ACC9=4,24,44
    BF=64
    AF=[160,180]
    WAd=[200,201,202,203,204]
    DWO=[205,206,207,208,209]
    VL=210
    WAd2=[211,212,213,214,215]
    UNIT=20480
    b("s_cmp_ge_u32 s2, 512")
    b("s_cbranch_scc1 K2_END")
    b(f"""
s_bfe_u32 s{sBR}, s2, 0x10002
s_and_b32 s{sHQ}, s2, 3
s_bfe_u32 s{sNT}, s2, 0x30003
s_bfe_u32 s{sB}, s2, 0x20006
s_lshr_b32 s{sT}, s2, 8
s_lshl_b32 s{sT}, s{sT}, 2
s_add_u32 s{sB}, s{sB}, s{sT}
s_mul_i32 s3, s{sBR}, 40
s_add_u32 s30, s0, s3
s_addc_u32 s31, s1, 0
s_load_dwordx2 s[32:33], s[30:31], 32
s_load_dwordx4 s[36:39], s[0:1], 80
s_load_dwordx2 s[40:41], s[0:1], 96
v_lshrrev_b32 v1, 6, v0
v_and_b32 v0, 63, v0
s_nop 0
v_readfirstlane_b32 s{sW}, v1
v_and_b32 v1, 15, v0
v_lshrrev_b32 v2, 4, v0
v_lshlrev_b32 v{VL}, 4, v0
""")
    if OPT['stamps']:
        b("s_memrealtime s[60:61]"); b("s_memtime s[62:63]")
    b(f"s_mov_b32 s{sT2}, {(1<<16)//10+1}")
    for e in range(5):
        b(f"""
v_add_u32 v3, {64*e}, v0
v_mul_u32_u24 v4, s{sT2}, v3
v_lshrrev_b32 v4, 16, v4
v_mul_u32_u24 v5, 10, v4
v_sub_u32 v5, v3, v5
v_mul_u32_u24 v4, 1280, v4
v_lshl_add_u32 v{DWO[e]}, v5, 4, v4
""")
        if 0<e<4: b(f"v_subrev_u32 v{DWO[e]}, {e*1024}, v{DWO[e]}")
    b(f"""
v_bfe_u32 v3, v0, 2, 2
v_lshl_add_u32 v3, v2, 2, v3
v_mul_u32_u24 v3, 160, v3
v_and_b32 v4, 3, v0
v_lshl_add_u32 v3, v4, 3, v3
""")
    for i in range(5):
        b(f"""
s_add_u32 s{sT}, s{sW}, {i}
s_cmp_ge_u32 s{sT}, 5
s_cselect_b32 s{sT2}, 5, 0
s_sub_u32 s{sT}, s{sT}, s{sT2}
s_mov_b32 s{80+i}, s{sT}
s_lshl_b32 s{sT}, s{sT}, 5
v_add_u32 v{WAd[i]}, s{sT}, v3
v_add_u32 v{WAd2[i]}, {2*UNIT}, v{WAd[i]}
""")
    for r in range(4,52): b(f"v_mov_b32 v{r}, 0")
    b("s_waitcnt lgkmcnt(0)")
    b(f"""
s_mul_i32 s{sT}, s{sHQ}, {1024*1280}
s_mul_i32 s{sT2}, s{sNT}, 160
s_add_u32 s{sT}, s{sT}, s{sT2}
s_add_u32 s{sWO}, s32, s{sT}
s_addc_u32 s{sWO+1}, s33, 0
s_sub_u32 s{sWO+2}, 5242880, s{sT}
s_mov_b32 s{sWO+3}, 0x20000
s_mov_b32 s{sOF}, s40
s_mov_b32 s{sOF+1}, s41
s_mov_b32 s{sOF+2}, {O_BYTES}
s_mov_b32 s{sOF+3}, 0x20000
s_add_u32 s{sPT}, s40, {WS_PART}
s_addc_u32 s{sPT+1}, s41, 0
s_mov_b32 s{sPT+2}, {PART_BYTES}
s_mov_b32 s{sPT+3}, 0x20000
s_mov_b32 s{sOUT}, s36
s_mov_b32 s{sOUT+1}, s37
s_mov_b32 s{sOUT+2}, {8*144*1280*2}
s_mov_b32 s{sOUT+3}, 0x20000
s_mov_b32 s{sDBG}, s38
s_mov_b32 s{sDBG+1}, s39
s_mov_b32 s{sDBG+2}, 256
s_mov_b32 s{sDBG+3}, 0x20000
""")
    sB0=51; sB9=52; sWK2=53; sWM2=54; sBK=55
    b(f"""
s_lshl_b32 s{sT}, s{sBR}, 3
s_add_u32 s{sT}, s{sT}, s{sB}
s_mul_i32 s{sT}, s{sT}, 9
s_lshl_b32 s{sT2}, s{sW}, 1
s_add_u32 s{sB0}, s{sT}, s{sT2}
s_lshl_b32 s{sB0}, s{sB0}, 17
s_add_u32 s{sB9}, s{sT}, 8
s_lshl_b32 s{sB9}, s{sB9}, 17
s_lshl_b32 s{sT}, s{sHQ}, 15
s_add_u32 s{sB0}, s{sB0}, s{sT}
s_add_u32 s{sB9}, s{sB9}, s{sT}
s_mul_i32 s{sWK2}, s{sW}, {32*1280}
s_mul_i32 s{sWM2}, s{sW}, 5120
""")
    def wunit(slot):
        b(f"s_add_u32 m0, s{sWM2}, {slot*UNIT}")
        b("s_nop 0")
        for e in range(4):
            b(f"buffer_load_dwordx4 v{DWO[e]}, {sr(sWO)}, s{sWK2} offen offset:{e*1024} lds")
        b(f"s_add_u32 m0, m0, 4096")
        b("s_nop 0")
        b(f"buffer_load_dwordx4 v{DWO[4]}, {sr(sWO)}, s{sWK2} offen lds")
        b(f"s_add_u32 s{sWK2}, s{sWK2}, {128*1280}")
    def bload(kk):
        r=BF+12*(kk%8)
        b(f"buffer_load_dwordx4 {vr(r)}, v{VL}, {sr(sOF)}, s{sB0} offen")
        b(f"s_add_u32 s{sT}, s{sB0}, {32*4096}")
        b(f"buffer_load_dwordx4 {vr(r+4)}, v{VL}, {sr(sOF)}, s{sT} offen")
        b(f"buffer_load_dwordx4 {vr(r+8)}, v{VL}, {sr(sOF)}, s{sB9} offen")
        b(f"s_add_u32 s{sB0}, s{sB0}, 1024")
        b(f"s_add_u32 s{sB9}, s{sB9}, 1024")
    wunit(0)
    for kk in range(4): bload(kk)
    wunit(1)
    for kk in range(4,8): bload(kk)
    b(f"s_mov_b32 s{sIT}, 0")
    b.label("K2_LOOP")
    b(f"s_cmp_eq_u32 s{sIT}, 1")
    b(f"s_cselect_b32 s{sLAST}, 1, 0")
    def areads(bb,slot,ks,fs):
        base=(slot%2)*UNIT+ks*5120
        WW=WAd if slot<2 else WAd2
        for i in range(5):
            bb(f"ds_read_b64_tr_b16 {vr(fs+4*i,2)}, v{WW[i]} offset:{base}")
            bb(f"ds_read_b64_tr_b16 {vr(fs+4*i+2,2)}, v{WW[i]} offset:{base+2560}")
    for u in range(4):
        tail = u>=2
        lt=b.new('K2T'); lj=b.new('K2J')
        if tail:
            b(f"s_cmp_eq_u32 s{sLAST}, 1")
            b(f"s_cbranch_scc1 {lt}")
        b("s_waitcnt vmcnt(26)")
        b("s_barrier")
        wunit((u+2)%4)
        if tail:
            b(f"s_branch {lj}")
            b.label(lt)
            b(f"s_waitcnt vmcnt({[0,0,26,9][u]})")
            b("s_barrier")
            b.label(lj)
        for ks in range(4):
            kk=4*u+ks
            fs=AF[kk&1]
            areads(b,u,ks,fs)
            if tail:
                l1=b.new('K2B'); l2=b.new('K2B')
                b(f"s_cmp_eq_u32 s{sLAST}, 1")
                b(f"s_cbranch_scc1 {l1}")
                b("s_waitcnt vmcnt(31)")
                b(f"s_branch {l2}")
                b.label(l1)
                b(f"s_waitcnt vmcnt({3*(3-ks)+(17 if u==2 else 0)})")
                b.label(l2)
            else:
                b("s_waitcnt vmcnt(31)")
            r=BF+12*(kk%8)
            mm=P()
            for i in range(5):
                mm(mfma(ACC0+4*i,fs+4*i,r,ACC0+4*i))
                mm(mfma(ACC1+4*i,fs+4*i,r+4,ACC1+4*i))
                if i==0: mm(mfma(ACC9,fs,r+8,ACC9))
            o,q=insert_lgkm(mm.ins,pending=[x for x in b.ins[-40:] if x.kind=='dsr'][-10:])
            b.add(o)
            lw=b.new('K2W')
            b(f"s_cmp_lg_u32 s{sW}, 0")
            b(f"s_cbranch_scc1 {lw}")
            b(mfma(ACC9+4,fs+16,r+8,ACC9+4))
            b.label(lw)
            if tail:
                ls=b.new('K2S')
                b(f"s_cmp_eq_u32 s{sLAST}, 1")
                b(f"s_cbranch_scc1 {ls}")
                bload(kk)
                b.label(ls)
            else:
                bload(kk)
    b(f"s_add_u32 s{sIT}, s{sIT}, 1")
    b(f"s_cmp_lt_u32 s{sIT}, 2")
    b("s_cbranch_scc1 K2_LOOP")
    stamp(b,1)
    b(f"""
s_lshl_b32 s{sT}, s{sBR}, 3
s_add_u32 s{sT}, s{sT}, s{sB}
s_lshl_b32 s{sT}, s{sT}, 3
s_add_u32 s{sSEL}, s{sT}, s{sNT}
s_mul_i32 s{sB0}, s{sSEL}, {4*45*1024}
s_mul_i32 s{sT}, s{sHQ}, {45*1024}
s_add_u32 s{sB9}, s{sB0}, s{sT}
s_nop 7
""")
    def tile_off(qt_expr_sgpr, i, dst):
        pass
    b(f"s_mul_i32 s{sBK}, s{sW}, {2*5*1024}")
    tiles=[]
    for i in range(5):
        tiles.append((ACC0+4*i,0,i)); tiles.append((ACC1+4*i,5*1024,i))
    def toff(extra,i,dst):
        b(f"s_lshl_b32 s{dst}, s{80+i}, 10")
        b(f"s_add_u32 s{dst}, s{dst}, s{sBK}")
        if extra: b(f"s_add_u32 s{dst}, s{dst}, {extra}")
    for (acc,extra,i) in tiles:
        toff(extra,i,sT)
        b(f"s_add_u32 s{sT}, s{sT}, s{sB9}")
        b(f"buffer_store_dwordx4 {vr(acc)}, v{VL}, {sr(sPT)}, s{sT} offen sc1")
    b(f"s_lshl_b32 s{sT}, s80, 10")
    b(f"s_add_u32 s{sT}, s{sT}, {40*1024}")
    b(f"s_add_u32 s{sT}, s{sT}, s{sB9}")
    b(f"buffer_store_dwordx4 {vr(ACC9)}, v{VL}, {sr(sPT)}, s{sT} offen sc1")
    b(f"s_cmp_lg_u32 s{sW}, 0")
    b("s_cbranch_scc1 K2_P1")
    b(f"s_add_u32 s{sT}, s{sB9}, {44*1024}")
    b(f"buffer_store_dwordx4 {vr(ACC9+4)}, v{VL}, {sr(sPT)}, s{sT} offen sc1")
    b.label("K2_P1")
    b("s_waitcnt vmcnt(0)")
    b("s_barrier")
    b(f"s_cmp_lg_u32 s{sW}, 0")
    b("s_cbranch_scc1 K2_P2")
    b(f"""
s_and_b32 s{sT}, s{sSEL}, 3
s_lshl_b32 s{sT}, s{sT}, 3
s_lshl_b32 s{sT2}, 1, s{sT}
v_mov_b32 v60, s{sT2}
s_lshr_b32 s{sT2}, s{sSEL}, 2
s_lshl_b32 s{sT2}, s{sT2}, 2
v_mov_b32 v61, 0
s_mov_b64 exec, 1
buffer_atomic_add v60, v61, {sr(sDBG)}, s{sT2} offen sc0 sc1
s_waitcnt vmcnt(0)
v_lshrrev_b32 v60, s{sT}, v60
v_and_b32 v60, 255, v60
ds_write_b32 v61, v60
s_waitcnt lgkmcnt(0)
s_mov_b64 exec, -1
""")
    b.label("K2_P2")
    b("s_barrier")
    b("""
v_mov_b32 v61, 0
ds_read_b32 v60, v61
s_waitcnt lgkmcnt(0)
""")
    b(f"v_readfirstlane_b32 s{sT}, v60")
    b(f"s_cmp_eq_u32 s{sT}, 3")
    b("s_cbranch_scc0 K2_DONE")
    LD=64
    def addparts(acc,offs_dst):
        for d in range(1,4):
            b(f"s_add_u32 s{sIT}, s{sHQ}, {d}")
            b(f"s_and_b32 s{sIT}, s{sIT}, 3")
            b(f"s_mul_i32 s{sIT}, s{sIT}, {45*1024}")
            b(f"s_add_u32 s{sIT}, s{sIT}, s{sB0}")
            b(f"s_add_u32 s{sIT}, s{sIT}, s{offs_dst}")
            b(f"buffer_load_dwordx4 {vr(acc+4*(d-1))}, v{VL}, {sr(sPT)}, s{sIT} offen sc1")
    k=0
    ldmap=[]
    for (acc,extra,i) in tiles:
        toff(extra,i,sT)
        addparts(LD+12*k,sT); ldmap.append((acc,LD+12*k)); k+=1
    b(f"s_lshl_b32 s{sT}, s80, 10")
    b(f"s_add_u32 s{sT}, s{sT}, {40*1024}")
    addparts(LD+12*k,sT); ldmap.append((ACC9,LD+12*k)); k+=1
    b(f"s_mov_b32 s{sT}, {44*1024}")
    addparts(LD+12*k,sT); ldmap.append((ACC9+4,LD+12*k)); k+=1
    b(f"""
s_mul_i32 s{sLAST}, s{sB}, 144
v_add_u32 v3, s{sLAST}, v1
v_mul_u32_u24 v3, 2560, v3
v_lshl_add_u32 v3, v2, 3, v3
s_mul_i32 s{sLAST}, s{sBR}, 1280
s_mul_i32 s{sT2}, s{sNT}, 160
s_add_u32 s{sLAST}, s{sLAST}, s{sT2}
s_waitcnt vmcnt(0)
""")
    for idx,(acc,ld) in enumerate(ldmap):
        for d in range(3):
            for r in range(4): b(f"v_add_f32 v{acc+r}, v{acc+r}, v{ld+4*d+r}")
        b(f"v_cvt_pk_bf16_f32 v{acc}, v{acc}, v{acc+1}")
        b(f"v_cvt_pk_bf16_f32 v{acc+1}, v{acc+2}, v{acc+3}")
        if idx<10:
            (a2,extra,i)=tiles[idx]
            b(f"s_lshl_b32 s{sT}, s{sW}, 1")
            if extra: b(f"s_add_u32 s{sT}, s{sT}, 1")
            b(f"s_mul_i32 s{sT}, s{sT}, {16*2560}")
            b(f"s_lshl_b32 s{sT2}, s{80+i}, 5")
        elif idx==10:
            b(f"s_mov_b32 s{sT}, {128*2560}")
            b(f"s_lshl_b32 s{sT2}, s80, 5")
        else:
            b(f"s_cmp_lg_u32 s{sW}, 0")
            b("s_cbranch_scc1 K2_DONE")
            b(f"s_mov_b32 s{sT}, {128*2560}")
            b(f"s_mov_b32 s{sT2}, {4*32}")
        b(f"s_add_u32 s{sT}, s{sT}, s{sT2}")
        b(f"s_add_u32 s{sT}, s{sT}, s{sLAST}")
        b(f"buffer_store_dwordx2 {vr(acc,2)}, v3, {sr(sOUT)}, s{sT} offen")
    b.label("K2_DONE")
    if OPT['stamps']:
        b("s_waitcnt vmcnt(0)")
        for i in (2,3,4): stamp(b,i)
        dump_stamps(b,5,sOF,52<<20)
    b.label("K2_END")
    b("s_endpgm")
    ins,added=fix_hazards(b.ins)
    print(f"; k2: {len(ins)} instrs, {added} nop states added",file=sys.stderr)
    return ins

def emit(name,ins):
    s=f".globl {name}\n.p2align 8\n.type {name},@function\n{name}:\n"
    for i in ins:
        s+= (i.text+'\n') if i.kind=='label' else ('    '+i.text+'\n')
    return s
def desc(name,vgpr=256,sgpr=102):
    return f""".amdhsa_kernel {name}
  .amdhsa_next_free_vgpr {vgpr}
  .amdhsa_next_free_sgpr {sgpr}
  .amdhsa_accum_offset {(vgpr+3)//4*4}
  .amdhsa_group_segment_fixed_size 0
  .amdhsa_kernarg_size 104
  .amdhsa_user_sgpr_count 2
  .amdhsa_user_sgpr_kernarg_segment_ptr 1
  .amdhsa_system_sgpr_workgroup_id_x 1
.end_amdhsa_kernel
"""
if __name__=='__main__':
    outp=sys.argv[1]
    for a in sys.argv[2:]:
        k,v=a.split('='); OPT[k]=int(v)
    ks=[]
    if not OPT['k2only']: ks.append(('k1_kernel',gen_k1()))
    if not OPT['k1only'] and not OPT['qponly'] and not OPT['dbg_q']: ks.append(('k2_kernel',gen_k2()))
    txt=''
    for n,_ in ks: txt+=f"; @launch kernel={n} grid=(512,1,1) block=(256,1,1) lds=81920\n"
    txt+='.amdgcn_target "amdgcn-amd-amdhsa--gfx950"\n.text\n'
    for n,i in ks: txt+=emit(n,i)
    txt+='.section .rodata,"a"\n'
    for n,_ in ks: txt+='.p2align 6\n'+desc(n)
    open(outp,'w').write(txt)
```

```python
import re
REG_RE=re.compile(r'\b([vsa])\[(\d+):(\d+)\]|\b([vsa])(\d+)\b|\b(vcc|m0|exec|scc)\b')
def regs_of(tok):
    out=[]
    for m in REG_RE.finditer(tok):
        if m.group(1):
            out+= [f"{m.group(1)}{i}" for i in range(int(m.group(2)),int(m.group(3))+1)]
        elif m.group(4):
            out.append(f"{m.group(4)}{m.group(5)}")
        else:
            out.append(m.group(6))
    return out
TRANS=('v_exp_f32','v_log_f32','v_rcp_f32','v_rsq_f32','v_sqrt_f32','v_sin_f32','v_cos_f32')
class I:
    __slots__=('text','op','kind','rd','wr','tag','srcc','srcab','prio','skip')
    def __init__(s,text,tag=None,prio=0):
        s.text=text.strip(); s.tag=tag; s.prio=prio; s.skip=False
        t=s.text.split(';')[0].strip()
        s.srcc=set(); s.srcab=set()
        if t.endswith(':') or t.startswith('.') or t=='':
            s.op=''; s.kind='label'; s.rd=set(); s.wr=set(); return
        parts=t.split(None,1); op=parts[0]; s.op=op
        ops=[x.strip() for x in split_ops(parts[1])] if len(parts)>1 else []
        rd=set(); wr=set()
        base=op.replace('_e32','').replace('_e64','').replace('_dpp','').replace('_sdwa','')
        if op.startswith('v_mfma'):
            s.kind='mfma'; wr|=set(regs_of(ops[0])); s.srcab=set(regs_of(ops[1]))|set(regs_of(ops[2])); s.srcc=set(regs_of(ops[3])); rd|=s.srcab|s.srcc
        elif op.startswith('v_cmp'):
            s.kind='valu'; wr|=set(regs_of(ops[0]));
            for o in ops[1:]: rd|=set(regs_of(o))
            if op.startswith('v_cmpx'): wr.add('exec')
        elif op.startswith('v_readfirstlane') or op.startswith('v_readlane'):
            s.kind='valu'; wr|=set(regs_of(ops[0]))
            for o in ops[1:]: rd|=set(regs_of(o))
        elif op.startswith('v_permlane') and 'swap' in op:
            s.kind='valu'; r=set(regs_of(ops[0]))|set(regs_of(ops[1])); wr|=r; rd|=r
        elif op.startswith('v_'):
            s.kind='trans' if base in TRANS else 'valu'
            wr|=set(regs_of(ops[0]))
            rest=ops[1:]
            if base in('v_add_co_u32','v_sub_co_u32','v_addc_co_u32','v_subb_co_u32','v_subrev_co_u32'):
                wr|=set(regs_of(ops[1])); rest=ops[2:]
            for o in rest: rd|=set(regs_of(o))
            if base.startswith('v_fmac') or base.startswith('v_mac') or base.startswith('v_dot2c') or base=='v_writelane_b32' or base.startswith('v_pk_fmac'): rd|=set(regs_of(ops[0]))
            if base=='v_cndmask_b32' and len(ops)==3: rd.add('vcc')
        elif op.startswith('ds_'):
            if op.startswith('ds_read') or op.startswith('ds_bpermute') or op.startswith('ds_permute') or op.startswith('ds_swizzle'):
                s.kind='dsr'; wr|=set(regs_of(ops[0]))
                for o in ops[1:]: rd|=set(regs_of(o.split(' offset')[0]))
            else:
                s.kind='dsw'
                for o in ops: rd|=set(regs_of(o.split(' offset')[0]))
        elif op.startswith('buffer_') or op.startswith('global_'):
            islds=bool(re.search(r'\blds\b',t)) or '_lds_' in op
            if op.startswith('buffer_wbl2') or op.startswith('buffer_inv'):
                s.kind='vmisc'
            elif 'load' in op:
                if islds:
                    s.kind='dma'
                    for o in ops: rd|=set(regs_of(o))
                    rd.add('m0')
                else:
                    s.kind='vld'; wr|=set(regs_of(ops[0]))
                    for o in ops[1:]: rd|=set(regs_of(o))
            elif 'atomic' in op:
                s.kind='vst'
                for o in ops: rd|=set(regs_of(o))
                if re.search(r'\bsc0\b',t): s.kind='vld'; wr|=set(regs_of(ops[0])[:1])
            else:
                s.kind='vst'
                for o in ops: rd|=set(regs_of(o))
        elif op.startswith('s_'):
            if op in('s_waitcnt','s_nop','s_barrier','s_endpgm','s_setprio','s_sleep','s_branch') :
                s.kind={'s_waitcnt':'wait','s_nop':'nop','s_barrier':'barrier','s_endpgm':'end','s_branch':'branch'}.get(op,'salu')
            elif op.startswith('s_cbranch'):
                s.kind='branch'
                if 'scc' in op: rd.add('scc')
                if 'vcc' in op: rd.add('vcc')
                if 'exec' in op: rd.add('exec')
            elif op.startswith('s_cmp') or op.startswith('s_bitcmp'):
                s.kind='salu'; wr.add('scc')
                for o in ops: rd|=set(regs_of(o))
            elif op.startswith('s_load') or op.startswith('s_memtime') or op.startswith('s_memrealtime') or op.startswith('s_buffer_load'):
                s.kind='smem'; wr|=set(regs_of(ops[0]))
                for o in ops[1:]: rd|=set(regs_of(o))
            else:
                s.kind='salu'; wr|=set(regs_of(ops[0]))
                for o in ops[1:]: rd|=set(regs_of(o))
                if op.startswith(('s_add','s_sub','s_and','s_or','s_xor','s_lshl','s_lshr','s_min','s_max','s_ashr','s_andn2','s_not','s_bfe')): wr.add('scc')
                if op.startswith(('s_addc','s_subb','s_cselect')): rd.add('scc')
                if 'saveexec' in op: wr.add('exec'); rd.add('exec')
                if op.startswith('s_addk') or op.startswith('s_mulk'): rd|=set(regs_of(ops[0]))
        else:
            raise ValueError('unknown op '+t)
        s.rd=rd; s.wr=wr
    def __repr__(s): return s.text
def split_ops(s):
    out=[];d=0;cur=''
    for ch in s:
        if ch=='[': d+=1
        if ch==']': d-=1
        if ch==',' and d==0: out.append(cur); cur=''
        else: cur+=ch
    out.append(cur); return out
def isv(r): return r[0]=='v' and r!='vcc'
def mfma_passes(i):
    if '32x32x16' in i.op or '32x32x8' in i.op: return 8
    if '16x16x32' in i.op or '16x16x16' in i.op: return 4
    raise ValueError(i.op)
D2V={4:8,8:12}; D2AB={4:8,8:12}; COVL={4:6,8:10}; WARC={4:3,8:7}
def states(i):
    if i.kind=='label' or i.skip: return 0
    if i.kind=='nop': return int(i.text.split()[1],0)+1
    return 1
def need_gap(p,c):
    n=0
    pv=p.kind in('valu','trans'); cv=c.kind in('valu','trans')
    if pv and c.kind=='mfma':
        if {r for r in p.wr if isv(r)} & c.rd: n=max(n,2)
        if 'exec' in p.wr: n=max(n,4)
    if p.kind=='mfma':
        ps=mfma_passes(p)
        if c.kind=='mfma':
            if p.wr & c.srcab: n=max(n,D2AB[ps])
            if p.wr & c.srcc:
                if not (p.wr==c.srcc and mfma_passes(c)==ps): n=max(n,COVL[ps])
        elif cv or c.kind in('dsr','dsw','vld','vst','dma'):
            if p.wr & (c.rd|c.wr): n=max(n,D2V[ps])
            if cv and (p.srcc & c.wr): n=max(n,WARC[ps])
    if p.kind=='trans' and cv and c.kind!='trans':
        if p.wr & c.rd: n=max(n,1)
    if p.kind=='trans' and c.kind=='trans' and (p.wr&c.rd): n=max(n,1)
    if pv:
        sw={r for r in p.wr if r[0]=='s' or r=='vcc'}
        if sw:
            if c.kind in('vld','vst','dma') and (sw & c.rd): n=max(n,5)
            if cv and (sw & c.rd): n=max(n,2)
            if c.op.startswith(('v_readlane','v_writelane')) and (sw&c.rd): n=max(n,4)
            if c.kind in('salu','branch') and (sw & c.rd): n=max(n,4)
            if c.kind=='branch' and 'vcc' in sw and 'vcc' in c.rd: n=max(n,5)
        vw={r for r in p.wr if isv(r)}
        if c.op.startswith(('v_readfirstlane','v_readlane')) and (vw&c.rd): n=max(n,1)
        if (c.op.startswith('v_permlane') or 'dpp' in c.text) and (vw&c.rd): n=max(n,2)
        if 'exec' in p.wr:
            if c.op.startswith(('v_readfirstlane','v_readlane','v_writelane','v_permlane')): n=max(n,4)
            if 'dpp' in c.text: n=max(n,5)
    if p.kind=='salu' and 'm0' in p.wr and c.kind=='dma': n=max(n,1)
    if p.kind=='vst' and ('x4' in p.op or 'x3' in p.op):
        if cv and (p.rd & c.wr & {r for r in p.rd if isv(r)}): n=max(n,2)
        elif c.wr & {r for r in p.rd if isv(r)}: n=max(n,1)
    if p.kind=='salu' and 'exec' in p.wr:
        pass
    return n
MAXLOOK=24
def fix_hazards(ins, wrap=None, verbose=False):
    out=[]; added=0
    for c in ins:
        if c.kind=='label': out.append(c); continue
        dist=0; need=0
        for p in reversed(out):
            if dist>=MAXLOOK: break
            if p.kind=='label': continue
            g=need_gap(p,c)
            if g>dist: need=max(need,g-dist)
            dist+=states(p)
        while need>0:
            k=min(need,16)
            out.append(I(f"s_nop {k-1}")); added+=k; need-=k
        out.append(c)
    return out,added
def check_loop_hazards(body):
    o,a=fix_hazards(body+body)
    o1,a1=fix_hazards(body)
    return a-2*a1
def insert_lgkm(ins, pending=None):
    q=list(pending or [])
    out=[]
    for c in ins:
        if c.kind=='wait':
            m=re.search(r'lgkmcnt\((\d+)\)',c.text)
            if m:
                n=int(m.group(1));
                while len(q)>n: q.pop(0)
            out.append(c); continue
        if c.kind in('label',): out.append(c); continue
        idx=-1
        for k,p in enumerate(q):
            if p.kind=='dsr' and (p.wr & (c.rd|c.wr)): idx=k
            if p.kind=='dsw' and False: pass
        if idx>=0:
            n=len(q)-1-idx
            n=min(n,15)
            out.append(I(f"s_waitcnt lgkmcnt({n})"))
            while len(q)>n: q.pop(0)
        if c.kind in('dsr','dsw'):
            if len(q)>=15:
                out.append(I("s_waitcnt lgkmcnt(14)"))
                while len(q)>14: q.pop(0)
            q.append(c)
        if c.kind=='smem': raise ValueError('smem inside lgkm-tracked code')
        out.append(c)
    return out,q

def cost(i):
    if i.kind=='mfma': return 8
    if i.kind=='trans': return 8
    if i.kind=='valu': return 4
    return 4
def schedule(ref, lds_lat=140, mfma_lat_extra=24, fixed_head=0, verbose=False):
    n=len(ref)
    preds=[[] for _ in range(n)]
    lastw={}; readers={}
    prev_mfma=None
    for j,c in enumerate(ref):
        deps={}
        for r in c.rd:
            if r in lastw:
                p=lastw[r]; P=ref[p]
                if P.kind=='dsr' or P.kind=='vld': lat=lds_lat
                elif P.kind=='mfma':
                    if c.kind=='mfma' and r in c.srcc and P.wr==c.srcc: lat=8
                    else: lat=16*mfma_passes(P)//4+mfma_lat_extra
                elif P.kind=='trans': lat=12
                else: lat=cost(P)+ (4 if c.kind=='mfma' else 0)
                deps[p]=max(deps.get(p,0),lat)
        for r in c.wr:
            if r in lastw:
                p=lastw[r]; P=ref[p]
                lat=cost(P)
                if P.kind=='mfma' and c.kind!='mfma': lat=16+mfma_lat_extra
                if P.kind=='dsr': lat=lds_lat
                deps[p]=max(deps.get(p,0),lat)
            for p in readers.get(r,[]):
                if p!=j:
                    P=ref[p]; lat=cost(P) if P.kind!='mfma' else 8
                    if P.kind=='mfma' and r in P.srcc and c.kind!='mfma': lat=20
                    deps[p]=max(deps.get(p,0),lat)
        if c.kind=='mfma':
            if prev_mfma is not None: deps[prev_mfma]=max(deps.get(prev_mfma,0),0)
            prev_mfma=j
        preds[j]=list(deps.items())
        for r in c.rd: readers.setdefault(r,[]).append(j)
        for r in c.wr:
            lastw[r]=j; readers[r]=[]
    succs=[[] for _ in range(n)]
    for j in range(n):
        for p,l in preds[j]: succs[p].append((j,l))
    cp=[0]*n
    for j in range(n-1,-1,-1):
        t=cost(ref[j]) if ref[j].kind!='mfma' else 16
        cp[j]=max([t]+[l+cp[s] for s,l in succs[j]])
    done=[False]*n; start=[None]*n
    order=[]
    t=0; port_free=0; pipe_free=0
    npred=[len(preds[j]) for j in range(n)]
    ready=[j for j in range(n) if npred[j]==0]
    lds_out=[]
    while len(order)<n:
        best=None
        cands=[]
        for j in ready:
            c=ref[j]
            e=t
            for p,l in preds[j]: e=max(e,start[p]+l)
            if c.kind=='mfma': e=max(e,port_free,pipe_free)
            elif c.kind in('valu','trans'): e=max(e,port_free)
            cands.append((e,j))
        emin=min(e for e,j in cands)
        avail=[(j) for e,j in cands if e<=emin]
        def key(j):
            c=ref[j]
            return (0 if c.kind=='mfma' else 1 if c.kind in('dsr','dsw','dma','salu') else 2, -cp[j]-c.prio, j)
        mf=[(e,j) for e,j in cands if ref[j].kind=='mfma']
        j=min(avail,key=key)
        c=ref[j]
        if c.kind!='mfma' and mf:
            em,jm=mf[0]
            if c.kind in('valu','trans') and em<emin+cost(c) and em>emin and em-emin<=3:
                j=jm; emin=em; c=ref[j]
        start[j]=emin
        order.append(j); ready.remove(j)
        if c.kind=='mfma':
            port_free=emin+8; pipe_free=emin+4*mfma_passes(c); t=emin+4
        elif c.kind in('valu','trans'):
            port_free=emin+cost(c); t=emin+4
        else:
            t=emin+4
        for s,l in succs[j]:
            npred[s]-=1
            if npred[s]==0: ready.append(s)
    if verbose: print('sched makespan',max(t,pipe_free),'n',n)
    return [ref[j] for j in order], max(t,pipe_free)
```

```python
import sys, math, struct
from isa import *
NAME='concat_heads__mha_block_cached__gqa_block_cached__near_ridge_kernel'
OPT=dict(dbg_q=0, stamps=0, qponly=0, qst=0, wxpf=1, kvpf=1, prio=2, k1only=0, k2only=0, fst=0, tw=2, tnt=1, kvpfl=1, rot=1, ost=0, opnobr=0, opnolds=0, oponly=0, opown=1, thr=0, ldelay=0, dsleep=16, nodma=0, nobar=0, noexp=0, novalu=0, nolds=0, not9=0, ldslat=140, dmk=3, dmv=9, lateexit=0, samekv=0, prioL=0, opmode=2, opnob=0, opnow=0, opnop=0, oplb=8, oplw=2, attla=3, wopf=1, wotit=5, pollld=0, psleep=64, dupst=1, bsc1=1, qtwice=0, prioatt=0, k0it=1, kvit=2, nok0=0)
class P:
    def __init__(s): s.ins=[]; s.n=0
    def __call__(s,text,**kw):
        for l in text.strip('\n').split('\n'):
            l=l.strip()
            if l and not l.startswith(';'): s.ins.append(I(l,**kw))
    def add(s,lst): s.ins+=lst
    def label(s,name): s.ins.append(I(name+':'))
    CNT=[0]
    def new(s,p='L'):
        P.CNT[0]+=1; return f'{p}_{P.CNT[0]}'
def vr(a,n=4): return f"v[{a}:{a+n-1}]"
def sr(a,n=4): return f"s[{a}:{a+n-1}]"
def mfma(d,a,b,c):
    cs=c if isinstance(c,str) else vr(c)
    return f"v_mfma_f32_16x16x32_bf16 {vr(d)}, {vr(a)}, {vr(b)}, {cs}"
def f2u(f): return struct.unpack('<I',struct.pack('<f',f))[0]
CSC=math.log2(math.e)/math.sqrt(128.0)

O0,O1,O9=4,36,68
Q0,Q1,Q9=76,92,108
NM0,NM1,NM9=124,128,132
S0=[136,144]; S1=[152,160]; S9=168
KF=[176,180,184,188,240,244]; VF=[192,196,200,204,248,252]; P9F=208
L0=[212,213]; L1=[214,215]; L9=[216,217]
KA=[218,219,220,221]; VA=list(range(222,230))
DK=[230,231]; DV=[232,233]; P9A=234; BP16=235; BP32=236
sW=4; sH=5; sB=6; sBR=7
sK=8; sV=12; sWQ=16; sX=20; sO=24
sIT=42; sSOFF=43; sM0=44; sT=47; sT2=48; sSEL=49; sLAST=50
sXK=51; sWK=52; sQH=55; sDH=56; sXM=57; sXS=58; sWM=53
SLOT=16384
XS=[0,18432]; WB=36864; K0B=69632; P9B=77824; L9B=79872; QB=16384
WS_O=0; WS_PART=20<<20; O_BYTES=18874368; PART_BYTES=512*45*1024

def finish(body,**kw):
    o,ms=schedule(body,**kw)
    o,q=insert_lgkm(o)
    return o,ms,q
def stamp(b,idx):
    if OPT['stamps']:
        b(f"s_memrealtime s[92:93]")
        b(f"s_memtime s[94:95]")
        b("s_waitcnt lgkmcnt(0)")
        b(f"s_mov_b32 s{60+2*idx}, s92")
        b(f"s_mov_b32 s{61+2*idx}, s94")
def dump_stamps(b,n,srd,base):
    if OPT['stamps']:
        b(f"s_lshl_b32 s{sT}, s2, 2")
        b(f"s_add_u32 s{sT}, s{sT}, s{sW}")
        b(f"s_lshl_b32 s{sT}, s{sT}, 7")
        b(f"s_add_u32 s{sT}, s{sT}, {base}")
        b(f"s_mov_b32 s{srd+2}, 0x10000000")
        for i in range(n):
            b(f"v_mov_b32 v{2*i+4}, s{60+2*i}")
            b(f"v_mov_b32 v{2*i+5}, s{61+2*i}")
        b("v_mov_b32 v3, 0")
        b("s_mov_b64 exec, 1")
        for i in range(n):
            b(f"buffer_store_dwordx2 v[{2*i+4}:{2*i+5}], v3, s[{srd}:{srd+3}], s{sT} offen offset:{8*i}")
        b("s_waitcnt vmcnt(0)")

def att_step(p,ver):
    cur=p&1; nxt=cur^1; slot=p*SLOT; nslot=((p+1)%4)*SLOT
    b=P()
    b(f"ds_read_b128 {vr(P9F)}, v{P9A} offset:{cur*1024}")
    t9kt={'t9a':0,'t9b':1}.get(ver,None)
    if ver!='final':
        bufs={(0,0):KF[0],(0,1):KF[1],(0,2):KF[2],(0,3):KF[3],(1,0):KF[4],(1,1):KF[5],(1,2):KF[0],(1,3):KF[1]}
        b(f"ds_read_b128 {vr(KF[4])}, v{KA[0]} offset:{slot+4096}")
        b(f"ds_read_b128 {vr(KF[5])}, v{KA[1]} offset:{slot+4096}")
        for kt in range(2):
            for s in range(4):
                kf=bufs[(kt,s)]
                if kt==1 and s>=2:
                    b(f"ds_read_b128 {vr(kf)}, v{KA[s]} offset:{slot+4096}")
                lst=[(S0[nxt]+4*kt,Q0,NM0),(S1[nxt]+4*kt,Q1,NM1)]
                if t9kt==kt: lst.append((S9,Q9,NM9))
                for (d,Qx,NM) in lst:
                    b(mfma(d,kf,Qx+4*s, NM if s==0 else d))
    def softmax(S,L,n=8):
        for r in range(n): b(f"v_exp_f32 v{S+r}, v{S+r}")
        for r in range(n): b(f"v_add_f32 v{L[r&1]}, v{L[r&1]}, v{S+r}")
        for r in range(n//2): b(f"v_cvt_pk_bf16_f32 v{S+r}, v{S+2*r}, v{S+2*r+1}")
    softmax(S1[cur],L1)
    if t9kt is not None:
        softmax(S9,L9,4)
        b(f"ds_write_b64 v{P9A}, {vr(S9,2)} offset:{nxt*1024+8*t9kt}")
    for i in range(8):
        vf=VF[i%len(VF)]
        b(f"ds_read_b64_tr_b16 {vr(vf,2)}, v{VA[i]} offset:{slot}")
        b(f"ds_read_b64_tr_b16 {vr(vf+2,2)}, v{VA[i]} offset:{slot+4096}")
        b(mfma(O0+4*i,vf,S0[cur],O0+4*i))
        b(mfma(O1+4*i,vf,S1[cur],O1+4*i))
        if i<2: b(mfma(O9+4*i,vf,P9F,O9+4*i))
    if ver!='final':
        softmax(S0[nxt],L0)
        for s in range(4):
            b(f"ds_read_b128 {vr(KF[s])}, v{KA[s]} offset:{nslot}")
    return b.ins

def dma_macros(p,LA):
    P_=P()
    slotpos=(p+LA)%4
    jl=28+p; tgt=jl+LA
    out=[]
    for part in ('K','V'):
        skip_last = (tgt>=31) if part=='K' else (tgt>=32)
        m=[]
        lab=P_.new('DM')
        if skip_last:
            m.append(I(f"s_cmp_eq_u32 s{sLAST}, 1"))
            m.append(I(f"s_cbranch_scc1 {lab}"))
        body=[]
        if part=='K':
            body+=[f"s_add_u32 m0, s{sM0}, {slotpos*SLOT}", f"s_add_u32 s{sT}, s{sSOFF}, 8192",
                   f"buffer_load_dwordx4 v{DK[0]}, {sr(sK)}, s{sT} offen nt lds",
                   f"buffer_load_dwordx4 v{DK[1]}, {sr(sK)}, s{sT} offen offset:1024 nt lds"]
        else:
            body+=[f"s_add_u32 m0, s{sM0}, {slotpos*SLOT+8192}", "s_nop 0",
                   f"buffer_load_dwordx4 v{DV[0]}, {sr(sV)}, s{sSOFF} offen nt lds",
                   f"buffer_load_dwordx4 v{DV[1]}, {sr(sV)}, s{sSOFF} offen offset:1024 nt lds",
                   f"s_add_u32 s{sSOFF}, s{sSOFF}, 8192"]
        for l in body:
            i=I(l); i.skip=skip_last; m.append(i)
        if skip_last: m.append(I(lab+':'))
        out.append(m)
    return out

def place_macros(o,macros,positions):
    res=[]; n=0; todo=dict(zip(positions,macros))
    for i in o:
        res.append(i)
        if i.kind=='mfma':
            n+=1
            if n in todo: res+=todo.pop(n)
    for k in sorted(todo): res+=todo[k]
    return res

def dma_slot(b,slotpos,kpart=True,vpart=True):
    if kpart:
        b(f"s_add_u32 m0, s{sM0}, {slotpos*SLOT}")
        b(f"s_add_u32 s{sT}, s{sSOFF}, 8192")
        b(f"buffer_load_dwordx4 v{DK[0]}, {sr(sK)}, s{sT} offen nt lds")
        b(f"buffer_load_dwordx4 v{DK[1]}, {sr(sK)}, s{sT} offen offset:1024 nt lds")
    if vpart:
        b(f"s_add_u32 m0, s{sM0}, {slotpos*SLOT+8192}")
        b(f"s_nop 0")
        b(f"buffer_load_dwordx4 v{DV[0]}, {sr(sV)}, s{sSOFF} offen nt lds")
        b(f"buffer_load_dwordx4 v{DV[1]}, {sr(sV)}, s{sSOFF} offen offset:1024 nt lds")

def decode_ids(b):
    b(f"""
s_bfe_u32 s{sBR}, s2, 0x10002
s_and_b32 s{sH}, s2, 3
s_lshl_b32 s{sH}, s{sH}, 3
s_bfe_u32 s{sT}, s2, 0x30003
s_add_u32 s{sH}, s{sH}, s{sT}
s_bfe_u32 s{sB}, s2, 0x20006
s_lshr_b32 s{sT}, s2, 8
s_lshl_b32 s{sT}, s{sT}, 2
s_add_u32 s{sB}, s{sB}, s{sT}
""")

def gen_k1():
    b=P()
    b("s_cmp_ge_u32 s2, 512")
    b("s_cbranch_scc1 K1_END")
    if OPT['lateexit']:
        b("s_cmp_ge_u32 s2, 256")
        b("s_cbranch_scc1 K1_END")
    decode_ids(b)
    b(f"""
s_mul_i32 s3, s{sBR}, 40
s_add_u32 s28, s0, s3
s_addc_u32 s29, s1, 0
s_load_dwordx8 s[32:39], s[28:29], 0
s_load_dwordx2 s[40:41], s[0:1], 96
s_load_dwordx2 s[84:85], s[28:29], 32
s_load_dwordx4 s[96:99], s[0:1], 80
v_lshrrev_b32 v1, 6, v0
v_and_b32 v0, 63, v0
s_nop 0
v_readfirstlane_b32 s{sW}, v1
v_and_b32 v1, 15, v0
v_lshrrev_b32 v2, 4, v0
""")
    stamp(b,0)
    if OPT['stamps']:
        for i in (5,6,7,8,9):
            b(f"s_mov_b32 s{60+2*i}, s60"); b(f"s_mov_b32 s{61+2*i}, s61")
    if OPT['prio']:
        b("s_cmp_lt_u32 s2, 256")
        b("s_cbranch_scc0 K1_NOPRIO")
        b(f"s_setprio {OPT['prio']}")
        b.label("K1_NOPRIO")
    qWA=[148,149,150,151]; qXB=[152,153]; qX9=[154,155]; qDX=[156,157]; qDW=[158,159,160]
    FA=[76,112]
    b(f"""
v_lshrrev_b32 v3, 3, v0
v_mul_u32_u24 v3, 1280, v3
v_and_b32 v4, 7, v0
v_xor_b32 v5, v4, v2
v_lshl_add_u32 v{qDX[0]}, v5, 4, v3
v_xor_b32 v5, 4, v5
v_lshl_add_u32 v{qDX[1]}, v5, 4, v3
""")
    for e in range(3):
        b(f"""
s_mul_i32 s{sT}, s{sW}, 3
s_add_u32 s{sT}, s{sT}, {e}
s_min_u32 s{sT}, s{sT}, 7
s_bfe_u32 s{sT2}, s{sT}, 0x10001
s_lshl_b32 s{sT2}, s{sT2}, 3
v_lshlrev_b32 v3, 1, v2
v_add_u32 v3, s{sT2}, v3
v_xor_b32 v3, v1, v3
v_lshlrev_b32 v3, 4, v3
v_lshl_add_u32 v3, v2, 13, v3
s_lshl_b32 s{sT2}, s{sT}, 15
v_add_u32 v{qDW[e]}, s{sT2}, v3
s_lshl_b32 s{86+e}, s{sT}, 10
s_add_u32 s{86+e}, s{86+e}, {WB}
""")
    b(f"""
s_mul_i32 s{sXM}, s{sW}, {6*1024}
s_mul_i32 s{sXS}, s{sW}, {6*10240}
s_mov_b32 s{sXK}, 0
s_mov_b32 s{sWK}, 0
s_and_b32 s{sQH}, s{sW}, 1
s_lshr_b32 s{sDH}, s{sW}, 1
s_lshl_b32 s{sM0}, s{sW}, 11
s_waitcnt lgkmcnt(0)
""")
    if OPT['fst']: stamp(b,1)
    b(f"""
s_mul_i32 s{sT}, s{sB}, 184320
s_add_u32 s{sX}, s32, s{sT}
s_addc_u32 s{sX+1}, s33, 0
s_mov_b32 s{sX+2}, 184320
s_mov_b32 s{sX+3}, 0x20000
s_lshl_b32 s{sT}, s{sH}, 8
s_add_u32 s{sWQ}, s38, s{sT}
s_addc_u32 s{sWQ+1}, s39, 0
s_sub_u32 s{sWQ+2}, 5242880, s{sT}
s_mov_b32 s{sWQ+3}, 0x20000
s_lshl_b32 s{sT}, s{sB}, 5
s_add_u32 s{sT}, s{sT}, s{sH}
s_lshr_b32 s{sT2}, s{sT}, 14
s_lshl_b32 s{sT}, s{sT}, 18
{"s_and_b32 s47, s47, 0x1c0000" + chr(10) + "s_mov_b32 s48, 0" if OPT['samekv'] else ""}
s_add_u32 s{sK}, s34, s{sT}
s_addc_u32 s{sK+1}, s35, s{sT2}
s_mov_b32 s{sK+2}, 262144
s_mov_b32 s{sK+3}, 0x20000
s_add_u32 s{sV}, s36, s{sT}
s_addc_u32 s{sV+1}, s37, s{sT2}
s_mov_b32 s{sV+2}, 262144
s_mov_b32 s{sV+3}, 0x20000
s_mov_b32 s{sO}, s40
s_mov_b32 s{sO+1}, s41
s_mov_b32 s{sO+2}, {O_BYTES}
s_mov_b32 s{sO+3}, 0x20000
""")
    if OPT['oponly']:
        b(f"""
s_mov_b32 s28, s98
s_mov_b32 s29, s99
s_mov_b32 s30, 256
s_mov_b32 s31, 0x20000
""")
        b("s_branch K1_OPONLY")
    def xops(slot):
        ops=[]
        for e in range(6):
            o=[]
            if e==0:
                o.append(f"s_add_u32 s{sT}, s{sXS}, s{sXK}")
                o.append(f"s_add_u32 m0, s{sXM}, {XS[slot]}")
                o.append(f"s_add_u32 s{sXK}, s{sXK}, 128")
                o.append(f"s_cmp_eq_u32 s{sXK}, 1280")
                o.append(f"s_cselect_b32 s{sXK}, 0, s{sXK}")
            else:
                o.append(f"s_add_u32 m0, m0, 1024")
                o.append(f"s_add_u32 s{sT}, s{sT}, 10240")
            o.append(f"buffer_load_dwordx4 v{qDX[e&1]}, {sr(sX)}, s{sT} offen lds")
            ops.append(o)
        return ops
    def wops(slot):
        ops=[]
        for e in range(3):
            o=[f"s_add_u32 m0, s{86+e}, {slot*8192}"]
            o.append("s_nop 0")
            o.append(f"buffer_load_dwordx4 v{qDW[e]}, {sr(sWQ)}, s{sWK} offen lds")
            if e==2:
                o.append(f"s_add_u32 s{sWK}, s{sWK}, {32*8192}")
                o.append(f"s_cmp_eq_u32 s{sWK}, {640*8192}")
                o.append(f"s_cselect_b32 s{sWK}, 0, s{sWK}")
            ops.append(o)
        return ops
    def emit_ops(ops):
        for o in ops:
            for l in o: b(l)
    if OPT['rot']:
        b(f"""
s_mul_i32 s{sT}, s{sB}, 3
s_and_b32 s{sT2}, s{sH}, 7
s_add_u32 s{sT}, s{sT}, s{sT2}
s_cmp_ge_u32 s{sT}, 20
s_cselect_b32 s{sT2}, 20, 0
s_sub_u32 s{sT}, s{sT}, s{sT2}
s_cmp_ge_u32 s{sT}, 10
s_cselect_b32 s{sT2}, 10, 0
s_sub_u32 s{sT}, s{sT}, s{sT2}
s_lshl_b32 s{sXK}, s{sT}, 7
s_lshl_b32 s{sWK}, s{sT}, 19
""")
    def wtouch(t,dst):
        b(f"v_add_u32 v5, {32*t}, v3")
        b(f"v_lshlrev_b32 v5, 2, v5")
        b(f"v_add_u32 v5, s{sB}, v5")
        b(f"v_lshl_add_u32 v5, v5, 13, v4")
        b(f"buffer_load_dword v{dst}, v5, {sr(sWQ)}, 0 offen{' nt' if OPT['tnt'] else ''}")
    def xtouch(t,dst):
        b(f"v_add_u32 v5, {64*t}, v0")
        b(f"v_min_u32 v5, 179, v5")
        b(f"v_mul_u32_u24 v6, s{sT2}, v5")
        b(f"v_lshrrev_b32 v6, 16, v6")
        b(f"v_mul_u32_u24 v7, 18, v6")
        b(f"v_sub_u32 v7, v5, v7")
        b(f"v_lshlrev_b32 v7, 3, v7")
        b(f"v_add_u32 v7, s{sT}, v7")
        b(f"v_mul_u32_u24 v7, 1280, v7")
        b(f"v_lshl_add_u32 v7, v6, 7, v7")
        b(f"buffer_load_dword v{dst}, v7, {sr(sX)}, 0 offen{' nt' if OPT['tnt'] else ''}")
    def k0load():
        for vw in range(4):
            b(f"""
v_add_u32 v190, {8*vw}, v2
v_lshlrev_b32 v191, 8, v190
v_and_b32 v192, 15, v190
v_xor_b32 v192, v1, v192
v_lshl_add_u32 v193, v192, 4, v191
v_add_u32 v192, 4, v190
v_and_b32 v192, 15, v192
v_xor_b32 v192, v1, v192
v_lshl_add_u32 v194, v192, 4, v191
s_mov_b32 m0, {K0B+vw*2048}
s_nop 0
buffer_load_dwordx4 v193, {sr(sK)}, 0 offen nt lds
buffer_load_dwordx4 v194, {sr(sK)}, 0 offen offset:1024 nt lds
""")
    def kvtouch(n):
        if n==0: return
        b(f"v_lshlrev_b32 v195, 7, v0")
        for t in range(n):
            b(f"s_mov_b32 s{sLAST}, {(t+1)*8192}")
            b(f"buffer_load_dword v{172+2*t}, v195, {sr(sK)}, s{sLAST} offen nt")
            b(f"s_mov_b32 s{sLAST}, {t*8192}")
            b(f"buffer_load_dword v{173+2*t}, v195, {sr(sV)}, s{sLAST} offen nt")
    if OPT['ldelay']:
        b("s_cmp_lt_u32 s2, 256")
        b("s_cbranch_scc1 K1_NODELAY")
        b(f"s_cmp_lg_u32 s{sW}, 0")
        b("s_cbranch_scc1 K1_DELAYB")
        b(f"""
s_mov_b32 s28, s98
s_mov_b32 s29, s99
s_mov_b32 s30, 256
s_mov_b32 s31, 0x20000
s_sub_u32 s{sT}, s2, 256
s_lshr_b32 s{sT2}, s{sT}, 5
s_lshl_b32 s{sT2}, s{sT2}, 2
s_add_u32 s{sT2}, s{sT2}, 192
s_and_b32 s{sLAST}, s{sT}, 31
s_mov_b32 s{sIT}, 0
v_mov_b32 v61, 0
s_mov_b64 exec, 1
""")
        b.label("K1_DPOLL")
        b(f"""
v_mov_b32 v60, 0
buffer_atomic_or v60, v61, s[28:31], s{sT2} offen sc0 sc1
s_waitcnt vmcnt(0)
v_readfirstlane_b32 s{sT}, v60
s_lshr_b32 s{sT}, s{sT}, s{sLAST}
s_and_b32 s{sT}, s{sT}, 1
s_cmp_eq_u32 s{sT}, 1
s_cbranch_scc1 K1_DPOLLED
s_add_u32 s{sIT}, s{sIT}, 1
s_cmp_lt_u32 s{sIT}, 64
s_cbranch_scc0 K1_DPOLLED
s_sleep {OPT['dsleep']}
s_branch K1_DPOLL
""")
        b.label("K1_DPOLLED")
        b("s_mov_b64 exec, -1")
        b.label("K1_DELAYB")
        b("s_barrier")
        b.label("K1_NODELAY")
    if OPT['rot']:
        b(f"s_cmp_eq_u32 s{sW}, 3")
        b("s_cbranch_scc1 K1_SETUP")
        emit_ops(xops(0)); emit_ops(wops(0)); emit_ops(wops(1))
        b("s_branch K1_SETUP")
    b(f"s_cmp_eq_u32 s{sW}, 3")
    b("s_cbranch_scc0 K1_SETUP")
    b(f"v_lshrrev_b32 v3, 1, v0")
    b(f"v_and_b32 v4, 1, v0")
    b(f"v_lshlrev_b32 v4, 7, v4")
    b(f"s_and_b32 s{sT}, s{sH}, 7")
    b(f"s_mov_b32 s{sT2}, {(1<<16)//18+1}")
    b("s_cmp_lt_u32 s2, 256")
    b("s_cbranch_scc0 K1_TLATE")
    wtouch(0,164); xtouch(0,165); wtouch(1,166); wtouch(2,167); xtouch(1,168); wtouch(3,169); xtouch(2,170); wtouch(4,171)
    b("s_branch K1_SETUP")
    b.label("K1_TLATE")
    k0load()
    kvtouch(OPT['kvpfl'])
    xtouch(0,165); xtouch(1,168); xtouch(2,170)
    b.label("K1_SETUP")
    b(f"""
s_lshl_b32 s{sT}, s{sW}, 3
v_add_u32 v3, s{sT}, v2
v_lshlrev_b32 v4, 8, v3
v_and_b32 v5, 15, v3
v_xor_b32 v5, v1, v5
v_lshl_add_u32 v{DK[0]}, v5, 4, v4
v_add_u32 v5, 4, v3
v_and_b32 v5, 15, v5
v_xor_b32 v5, v1, v5
v_lshl_add_u32 v{DK[1]}, v5, 4, v4
v_lshlrev_b32 v5, 1, v2
v_xor_b32 v5, v1, v5
v_lshl_add_u32 v{DV[0]}, v5, 4, v4
v_lshlrev_b32 v5, 1, v2
v_add_u32 v5, 8, v5
v_xor_b32 v5, v1, v5
v_lshl_add_u32 v{DV[1]}, v5, 4, v4
""")
    b(f"""
v_bfe_u32 v3, v0, 2, 2
v_and_b32 v4, 1, v2
v_lshl_add_u32 v4, v4, 2, v3
v_lshl_add_u32 v5, v2, 3, v3
v_lshlrev_b32 v5, 8, v5
v_and_b32 v6, 3, v0
v_lshl_add_u32 v5, v6, 3, v5
v_add_u32 v5, {WB}, v5
""")
    for i in range(4):
        b(f"""
s_lshl_b32 s{sT}, s{sQH}, 1
s_add_u32 s{sT}, s{sT}, {i}
s_and_b32 s{sT}, s{sT}, 3
s_lshl_b32 s{sT2}, s{sDH}, 2
s_add_u32 s{sT}, s{sT}, s{sT2}
v_xor_b32 v6, s{sT}, v4
v_lshl_add_u32 v{qWA[i]}, v6, 5, v5
""")
    b(f"""
v_lshrrev_b32 v3, 1, v1
v_xor_b32 v3, v3, v2
v_lshlrev_b32 v3, 4, v3
v_lshl_add_u32 v3, v1, 7, v3
s_lshl_b32 s{sT}, s{sQH}, 13
v_add_u32 v{qXB[0]}, s{sT}, v3
v_xor_b32 v{qXB[1]}, 64, v{qXB[0]}
v_add_u32 v{qX9[0]}, 16384, v3
v_xor_b32 v{qX9[1]}, 64, v{qX9[0]}
""")
    for r in range(O0,O0+72): b(f"v_mov_b32 v{r}, 0")
    def qreads(k,fs):
        wb=(k%4)*8192; xb=XS[(k>>1)&1]; e=k&1
        o=[]
        for t in range(4):
            o.append(f"ds_read_b128 {vr(fs+16+4*t)}, v{qXB[e]} offset:{xb+t*2048}")
            o.append(f"ds_read_b64_tr_b16 {vr(fs+4*t,2)}, v{qWA[t]} offset:{wb}")
            o.append(f"ds_read_b64_tr_b16 {vr(fs+4*t+2,2)}, v{qWA[t]} offset:{wb+1024}")
        o.append(f"ds_read_b128 {vr(fs+32)}, v{qX9[e]} offset:{xb}")
        return o
    def qstep(p,dma):
        cur=FA[p&1]; nxt=FA[(p&1)^1]
        if OPT['qst']:
            b("s_memtime s[90:91]")
            b("s_waitcnt lgkmcnt(0)")
            b(f"s_lshl_b32 s92, s{sIT}, 2")
            b(f"s_add_u32 s92, s92, {p}")
            b("s_mov_b32 m0, s92")
            b("s_sub_u32 s90, s90, s61")
            b("v_writelane_b32 v200, s90, m0")
        rd=qreads(p+1,nxt)
        mf=[]
        for i in range(4):
            for t in range(4): mf.append(mfma(O0+16*t+4*i,cur+4*i,cur+16+4*t,O0+16*t+4*i))
            if i<2: mf.append(mfma(O9+4*i,cur+4*i,cur+32,O9+4*i))
        ops=[]
        if dma:
            if p%2==1: ops+=xops((p>>1)&1)
            ops+=wops(p)
        pos={}
        n=len(ops)
        for idx in range(n): pos[7+idx*10//max(n,1)]=ops[idx]
        for idx,m in enumerate(mf):
            b(m)
            for r_ in rd[2*idx:2*idx+2]: b(r_)
            if idx in pos:
                for l in pos[idx]: b(l)
    if OPT['qtwice']:
        b("s_mov_b32 s95, 0")
        b.label("K1_QAGAIN")
        b("s_cmp_eq_u32 s95, 0")
        b("s_cbranch_scc1 K1_QFIRST")
        b("s_barrier")
        b("s_memtime s[62:63]")
        b("s_memrealtime s[60:61]")
        b("s_waitcnt lgkmcnt(0)")
        b(f"s_cmp_eq_u32 s{sW}, 3")
        b("s_cbranch_scc1 K1_QFIRST")
        emit_ops(xops(0)); emit_ops(wops(0)); emit_ops(wops(1))
        b.label("K1_QFIRST")
    b(f"s_cmp_eq_u32 s{sW}, 3")
    b("s_cbranch_scc1 K1_Q3")
    if not OPT['rot']:
        b("s_barrier")
        if OPT['fst']: stamp(b,2)
        emit_ops(xops(0)); emit_ops(wops(0)); emit_ops(wops(1)); emit_ops(xops(1)); emit_ops(wops(2)); emit_ops(wops(3))
    elif OPT['fst']: stamp(b,2)
    b("s_waitcnt vmcnt(3)")
    b("s_barrier")
    if OPT['fst']: stamp(b,3)
    for l in qreads(0,FA[0]): b(l)
    emit_ops(xops(1)); emit_ops(wops(2)); emit_ops(wops(3))
    b(f"s_mov_b32 s{sIT}, 0")
    if OPT['thr']:
        b(f"s_lshr_b32 s{sSEL}, s2, 8")
        b(f"s_mul_i32 s{sSEL}, s{sSEL}, {OPT['thr']}")
    b.label("K1_QLOOP")
    for p in range(4):
        b(f"s_waitcnt vmcnt({12 if p%2==0 else 6}) lgkmcnt(0)")
        if OPT['thr']:
            lt=b.new('TH')
            b(f"s_cmp_lt_u32 s{sIT}, s{sSEL}")
            b(f"s_cbranch_scc0 {lt}")
            b("s_waitcnt vmcnt(0)")
            b.label(lt)
        b("s_barrier")
        qstep(p,True)
    b(f"s_add_u32 s{sIT}, s{sIT}, 1")
    b(f"s_cmp_lt_u32 s{sIT}, 4")
    b("s_cbranch_scc1 K1_QLOOP")
    for p in range(4):
        b(f"s_waitcnt vmcnt({[12,3,0,0][p]}) lgkmcnt(0)")
        b("s_barrier")
        qstep(p,False)
    b("s_branch K1_QDONE")
    b.label("K1_Q3")
    if OPT['rot']:
        if OPT['fst']: stamp(b,2)
        b("s_barrier")
        if OPT['fst']: stamp(b,3)
        for l in qreads(0,FA[0]): b(l)
        b(f"s_mov_b32 s{sIT}, 0")
        b("s_branch K1_QLOOP3")
    b("s_cmp_lt_u32 s2, 256")
    b("s_cbranch_scc0 K1_Q3L")
    b(f"s_waitcnt vmcnt({8-OPT['tw']})")
    b("s_barrier")
    if OPT['fst']: stamp(b,2)
    k0load()
    kvtouch(OPT['kvpf'])
    b("s_branch K1_Q3J")
    b.label("K1_Q3L")
    b("s_waitcnt vmcnt(0)")
    b("s_barrier")
    if OPT['fst']: stamp(b,2)
    b.label("K1_Q3J")
    b("s_barrier")
    if OPT['fst']: stamp(b,3)
    for l in qreads(0,FA[0]): b(l)
    b(f"s_mov_b32 s{sIT}, 0")
    b.label("K1_QLOOP3")
    if OPT['rot']:
        l1=b.new('W3'); l2=b.new('W3')
        b(f"s_cmp_eq_u32 s{sIT}, {OPT['k0it']}")
        b(f"s_cbranch_scc0 {l1}")
        k0load()
        b.label(l1)
        b(f"s_cmp_eq_u32 s{sIT}, {OPT['kvit']}")
        b(f"s_cbranch_scc0 {l2}")
        b("s_cmp_lt_u32 s2, 256")
        b(f"s_cbranch_scc0 {l2}L")
        kvtouch(OPT['kvpf'])
        b(f"s_branch {l2}")
        b.label(l2+"L")
        kvtouch(OPT['kvpfl'])
        b.label(l2)
    for p in range(4):
        b(f"s_waitcnt lgkmcnt(0)")
        b("s_barrier")
        qstep(p,False)
    b(f"s_add_u32 s{sIT}, s{sIT}, 1")
    b(f"s_cmp_lt_u32 s{sIT}, 5")
    b("s_cbranch_scc1 K1_QLOOP3")
    b.label("K1_QDONE")
    if OPT['ldelay']:
        ls=b.new('LS')
        b("s_cmp_lt_u32 s2, 256")
        b(f"s_cbranch_scc0 {ls}")
        b(f"s_cmp_lg_u32 s{sW}, 3")
        b(f"s_cbranch_scc1 {ls}")
        b(f"""
s_mov_b32 s28, s98
s_mov_b32 s29, s99
s_mov_b32 s30, 256
s_mov_b32 s31, 0x20000
s_lshr_b32 s{sT2}, s2, 5
s_lshl_b32 s{sT2}, s{sT2}, 2
s_add_u32 s{sT2}, s{sT2}, 192
s_and_b32 s{sLAST}, s2, 31
s_lshl_b32 s{sT}, 1, s{sLAST}
v_mov_b32 v196, s{sT}
v_mov_b32 v197, 0
s_mov_b64 exec, 1
buffer_atomic_or v196, v197, s[28:31], s{sT2} offen sc1
s_mov_b64 exec, -1
""")
        b.label(ls)
    if OPT['qtwice']:
        b("s_waitcnt vmcnt(0) lgkmcnt(0)")
        b("s_add_u32 s95, s95, 1")
        b("s_cmp_lt_u32 s95, 2")
        b("s_cbranch_scc1 K1_QAGAIN")
    if not OPT['fst']: stamp(b,1)
    if OPT['qponly']:
        b("s_waitcnt vmcnt(0)")
        if OPT['qst']:
            b(f"s_lshl_b32 s{sT}, s2, 2")
            b(f"s_add_u32 s{sT}, s{sT}, s{sW}")
            b(f"s_lshl_b32 s{sT}, s{sT}, 8")
            b(f"s_add_u32 s{sT}, s{sT}, {60<<20}")
            b(f"s_mov_b32 s{sO+2}, 0x10000000")
            b("v_lshlrev_b32 v3, 2, v0")
            b(f"buffer_store_dword v200, v3, {sr(sO)}, s{sT} offen")
        for i in ((4,) if OPT['fst'] else (2,3,4)): stamp(b,i)
        dump_stamps(b,10,sO,50<<20)
        b("s_endpgm")
    b("s_waitcnt vmcnt(0) lgkmcnt(0)")
    b("s_barrier")
    b(f"s_mov_b32 s{sSOFF}, 0")
    dma_slot(b,0)
    b(f"s_mov_b32 s{sSEL}, {f2u(CSC)}")
    b(f"""
v_lshlrev_b32 v3, 8, v1
v_and_b32 v76, 1, v2
v_lshl_add_u32 v3, v76, 3, v3
v_add_u32 v3, {QB}, v3
v_lshrrev_b32 v77, 1, v2
s_lshl_b32 s{sT2}, s{sQH}, 14
v_add_u32 v78, s{sT2}, v3
""")
    for i in range(4):
        b(f"""
s_lshl_b32 s{sIT}, s{sQH}, 1
s_add_u32 s{sIT}, s{sIT}, {i}
s_and_b32 s{sIT}, s{sIT}, 3
s_lshl_b32 s{sT2}, s{sDH}, 2
s_add_u32 s{sIT}, s{sIT}, s{sT2}
s_lshl_b32 s{sIT}, s{sIT}, 1
v_add_u32 v79, s{sIT}, v77
v_xor_b32 v79, v79, v1
v_lshlrev_b32 v79, 4, v79
v_add_u32 v80, v79, v78
""")
        for t in range(4):
            acc=O0+16*t+4*i
            for r in range(4): b(f"v_mul_f32 v{acc+r}, s{sSEL}, v{acc+r}")
            b(f"v_cvt_pk_bf16_f32 v{acc}, v{acc}, v{acc+1}")
            b(f"v_cvt_pk_bf16_f32 v{acc+1}, v{acc+2}, v{acc+3}")
            b(f"ds_write_b64 v80, {vr(acc,2)} offset:{t*4096}")
        if i<2:
            acc=O9+4*i
            b(f"v_add_u32 v82, v79, v3")
            for r in range(4): b(f"v_mul_f32 v{acc+r}, s{sSEL}, v{acc+r}")
            b(f"v_cvt_pk_bf16_f32 v{acc}, v{acc}, v{acc+1}")
            b(f"v_cvt_pk_bf16_f32 v{acc+1}, v{acc+2}, v{acc+3}")
            b(f"ds_write_b64 v82, {vr(acc,2)} offset:32768")
    for s in range(4):
        b(f"""
v_add_u32 v79, {4*s}, v2
v_xor_b32 v79, v79, v1
v_lshlrev_b32 v79, 4, v79
v_lshl_add_u32 v{KA[s]}, v1, 8, v79
""")
    b(f"s_lshl_b32 s{sT2}, s{sW}, 13")
    b(f"s_add_u32 s{sT2}, s{sT2}, {QB}")
    for s in range(4):
        b(f"v_add_u32 v{236+s}, s{sT2}, v{KA[s]}")
        b(f"v_add_u32 v{S1[1]+s}, {K0B}, v{KA[s]}")
    b("s_waitcnt lgkmcnt(0)")
    b("s_barrier")
    for s in range(4): b(f"ds_read_b128 {vr(Q0+4*s)}, v{236+s} offset:0")
    for s in range(4): b(f"ds_read_b128 {vr(Q1+4*s)}, v{236+s} offset:4096")
    for s in range(4): b(f"ds_read_b128 {vr(Q9+4*s)}, v{KA[s]} offset:{QB+32768}")
    b(f"""
v_bfe_u32 v3, v0, 2, 2
v_and_b32 v4, 1, v2
v_lshl_add_u32 v4, v4, 2, v3
v_lshl_add_u32 v5, v2, 2, v3
v_lshlrev_b32 v5, 8, v5
v_and_b32 v6, 3, v0
v_lshl_add_u32 v5, v6, 3, v5
v_add_u32 v5, 8192, v5
s_lshl_b32 s{sT}, s{sW}, 1
""")
    for i in range(8):
        b(f"""
s_add_u32 s{sT2}, s{sT}, {i}
s_and_b32 s{sT2}, s{sT2}, 7
v_xor_b32 v6, s{sT2}, v4
v_lshl_add_u32 v{VA[i]}, v6, 5, v5
""")
    b(f"""
v_lshlrev_b32 v{P9A}, 4, v0
v_add_u32 v{P9A}, {P9B}, v{P9A}
v_xor_b32 v{BP16}, 16, v0
v_lshlrev_b32 v{BP16}, 2, v{BP16}
""")
    for r in range(O0,O0+72): b(f"v_mov_b32 v{r}, 0")
    for r in L0+L1+L9: b(f"v_mov_b32 v{r}, 0")
    b("s_waitcnt lgkmcnt(0)")
    b(f"v_xor_b32 v{BP32}, 32, v0")
    b(f"v_lshlrev_b32 v{BP32}, 2, v{BP32}")
    b("s_barrier")
    if OPT['dbg_q']:
        b(f"""
s_mul_i32 s{sT}, s2, {4*12*1024}
s_mul_i32 s{sT2}, s{sW}, {12*1024}
s_add_u32 s{sT}, s{sT}, s{sT2}
v_lshlrev_b32 v3, 4, v0
s_mov_b32 s{sO+2}, 0x10000000
""")
        for f in range(12):
            b(f"buffer_store_dwordx4 {vr(Q0+4*f)}, v3, {sr(sO)}, s{sT} offen")
            b(f"s_add_u32 s{sT}, s{sT}, 1024")
        b("s_waitcnt vmcnt(0)")
        b("s_branch K1_END")
    LA=OPT['attla']
    for sl in range(1,LA):
        b(f"s_mov_b32 s{sSOFF}, {sl*8192}")
        dma_slot(b,sl)
    b(f"s_mov_b32 s{sSOFF}, {LA*8192}")
    pb=P()
    for kt in range(2):
        for s in range(4):
            kf=KF[(kt*4+s)%len(KF)]
            pb(f"ds_read_b128 {vr(kf)}, v{S1[1]+s} offset:{kt*4096}")
            for (Sx,Qx) in ((S0[0],Q0),(S1[0],Q1),(S9,Q9)):
                d=Sx+4*kt
                pb(mfma(d,kf,Qx+4*s,'0' if s==0 else d))
    o,ms,q=finish(pb.ins); b.add(o)
    TT=((S0[0],NM0),(S1[0],NM1),(S9,NM9))
    for (Sx,NM) in TT:
        b(f"""
v_max3_f32 v{NM}, v{Sx}, v{Sx+1}, v{Sx+2}
v_max3_f32 v{NM+2}, v{Sx+3}, v{Sx+4}, v{Sx+5}
v_max3_f32 v{NM}, v{NM}, v{Sx+6}, v{Sx+7}
v_max_f32 v{NM}, v{NM}, v{NM+2}
ds_bpermute_b32 v{NM+1}, v{BP16}, v{NM}
""")
    b("s_waitcnt lgkmcnt(0)")
    for (Sx,NM) in TT:
        b(f"v_max_f32 v{NM}, v{NM}, v{NM+1}")
        b(f"ds_bpermute_b32 v{NM+1}, v{BP32}, v{NM}")
    b("s_waitcnt lgkmcnt(0)")
    for (Sx,NM) in TT:
        b(f"""
v_max_f32 v{NM}, v{NM}, v{NM+1}
v_sub_f32 v{NM}, 0, v{NM}
v_mov_b32 v{NM+1}, v{NM}
v_mov_b32 v{NM+2}, v{NM}
v_mov_b32 v{NM+3}, v{NM}
""")
        for r in range(8): b(f"v_add_f32 v{Sx+r}, v{Sx+r}, v{NM}")
    def softmax_seq(S,L):
        for r in range(8): b(f"v_exp_f32 v{S+r}, v{S+r}")
        for r in range(8): b(f"v_add_f32 v{L[r&1]}, v{L[r&1]}, v{S+r}")
        for r in range(4): b(f"v_cvt_pk_bf16_f32 v{S+r}, v{S+2*r}, v{S+2*r+1}")
    softmax_seq(S0[0],L0)
    b(f"s_cmp_lg_u32 s{sW}, 0")
    b("s_cbranch_scc1 K1_NOP9")
    softmax_seq(S9,L9)
    b(f"ds_write_b128 v{P9A}, {vr(S9)} offset:0")
    b.label("K1_NOP9")
    b(f"s_mov_b32 s{sIT}, 0")
    if not OPT['prioatt']: b("s_setprio 0")
    if OPT['prioL']:
        b("s_cmp_lt_u32 s2, 256")
        b("s_cbranch_scc1 K1_PL")
        b(f"s_setprio {OPT['prioL']}")
        b.label("K1_PL")
    stamp(b,2)
    LA=OPT['attla']
    assert LA==3
    b("s_waitcnt vmcnt(10) lgkmcnt(0)")
    b("s_barrier")
    for s_ in range(4): b(f"ds_read_b128 {vr(KF[s_])}, v{KA[s_]} offset:0")
    bodies={}
    for p in range(4):
        for ver in ('plain','t9a','t9b')+(('final',) if p==3 else ()):
            if ver=='t9a' or ver=='t9b':
                pass
            o,ms=schedule(att_step(p,ver),lds_lat=OPT['ldslat'])
            if ver!='final' and not OPT['nodma']:
                o=place_macros(o,dma_macros(p,LA),[OPT['dmk'],OPT['dmv']])
            if OPT['noexp']: o=[x for x in o if x.kind!='trans']
            if OPT['novalu']: o=[x for x in o if x.kind not in('trans','valu')]
            if OPT['nolds']: o=[x for x in o if x.kind not in('dsr','dsw')]
            o,q=insert_lgkm(o)
            bodies[(p,ver)]=o
            if p==0 or ver=='final': print(f"; step p={p} {ver}: est {ms} cycles, {len(o)} instrs",file=sys.stderr)
    b.label("K1_LOOP")
    b(f"s_cmp_eq_u32 s{sIT}, 7")
    b(f"s_cselect_b32 s{sLAST}, 1, 0")
    for p in range(4):
        d1=b.new('D'); d2=b.new('D')
        lastcnt=[6,4,2,0][p]
        if lastcnt==6:
            b(f"s_waitcnt vmcnt(6) lgkmcnt(0)")
            if not OPT['nobar']: b("s_barrier")
        else:
            if p!=0: b(f"s_cmp_eq_u32 s{sLAST}, 1")
            b(f"s_cbranch_scc1 K1_LW_{p}")
            b(f"s_waitcnt vmcnt(6) lgkmcnt(0)")
            if not OPT['nobar']: b("s_barrier")
            b.label(f"K1_LWB_{p}")
        if p==0 and OPT['wopf']:
            lw=b.new('WO')
            b(f"s_cmp_eq_u32 s{sIT}, {OPT['wotit']}")
            b(f"s_cbranch_scc0 {lw}")
            b("s_cmp_lt_u32 s2, 256")
            b(f"s_cbranch_scc0 {lw}")
            b(f"""
s_lshr_b32 s{sT}, s{sH}, 3
s_lshl_b32 s{sT}, s{sT}, 5
s_bfe_u32 s{sT2}, s2, 0x50003
s_add_u32 s{sT}, s{sT}, s{sT2}
s_mul_i32 s{sT}, s{sT}, 40960
s_add_u32 s80, s84, s{sT}
s_addc_u32 s81, s85, 0
s_mov_b32 s82, 40960
s_mov_b32 s83, 0x20000
v_lshlrev_b32 v3, 7, v0
s_lshl_b32 s{sT}, s{sW}, 13
buffer_load_dword v1, v3, s[80:83], s{sT} offen
s_mov_b32 s{sT}, 32768
buffer_load_dword v2, v3, s[80:83], s{sT} offen
""")
            b.label(lw)
        wa=0 if p%2==0 else 2
        if not OPT['not9']:
            b(f"s_cmp_eq_u32 s{sW}, {wa}")
            b(f"s_cbranch_scc1 K1_T9A_{p}")
            b(f"s_cmp_eq_u32 s{sW}, {wa+1}")
            b(f"s_cbranch_scc1 K1_T9B_{p}")
        b.add(bodies[(p,'plain')])
        b.label(f"K1_NEXT_{p}")
    b(f"s_add_u32 s{sIT}, s{sIT}, 1")
    b("s_branch K1_LOOP")
    for p in range(4):
        b.label(f"K1_T9A_{p}")
        b.add(bodies[(p,'t9a')])
        b(f"s_branch K1_NEXT_{p}")
        b.label(f"K1_T9B_{p}")
        b.add(bodies[(p,'t9b')])
        b(f"s_branch K1_NEXT_{p}")
    for p in (1,2,3):
        b.label(f"K1_LW_{p}")
        b(f"s_waitcnt vmcnt({[6,4,2,0][p]}) lgkmcnt(0)")
        b("s_barrier")
        if p==3: b("s_branch K1_FINAL")
        else: b(f"s_branch K1_LWB_{p}")
    b.label("K1_FINAL")
    b.add(bodies[(3,'final')])
    b("s_waitcnt lgkmcnt(0)")
    stamp(b,3)
    LL=(L0,L1,L9)
    for L in LL:
        b(f"v_add_f32 v{L[0]}, v{L[0]}, v{L[1]}")
        b(f"ds_bpermute_b32 v{L[1]}, v{BP16}, v{L[0]}")
    b("s_waitcnt lgkmcnt(0)")
    for L in LL:
        b(f"v_add_f32 v{L[0]}, v{L[0]}, v{L[1]}")
        b(f"ds_bpermute_b32 v{L[1]}, v{BP32}, v{L[0]}")
    b("s_waitcnt lgkmcnt(0)")
    for L in LL: b(f"v_add_f32 v{L[0]}, v{L[0]}, v{L[1]}")
    b(f"""
s_lshl_b32 s{sT}, s{sW}, 8
v_lshlrev_b32 v3, 2, v0
v_add_u32 v3, {L9B}, v3
v_add_u32 v1, s{sT}, v3
ds_write_b32 v1, v{L9[0]}
v_rcp_f32 v{L0[0]}, v{L0[0]}
v_rcp_f32 v{L1[0]}, v{L1[0]}
s_waitcnt lgkmcnt(0)
s_barrier
ds_read_b32 v{S9}, v3
ds_read_b32 v{S9+1}, v3 offset:256
ds_read_b32 v{S9+2}, v3 offset:512
ds_read_b32 v{S9+3}, v3 offset:768
""")
    b(f"""
s_lshl_b32 s{sT}, s{sBR}, 3
s_add_u32 s{sT}, s{sT}, s{sB}
s_mul_i32 s{sT}, s{sT}, 9
s_lshl_b32 s{sT2}, s{sW}, 1
s_add_u32 s{sSEL}, s{sT}, s{sT2}
s_lshl_b32 s{sSEL}, s{sSEL}, 5
s_add_u32 s{sSEL}, s{sSEL}, s{sH}
s_lshl_b32 s{sSEL}, s{sSEL}, 12
s_add_u32 s{sT}, s{sT}, 8
s_lshl_b32 s{sT}, s{sT}, 5
s_add_u32 s{sT}, s{sT}, s{sH}
s_lshl_b32 s{sIT}, s{sT}, 12
v_lshlrev_b32 v3, 4, v0
""")
    def ostore(r):
        b(f"buffer_store_dwordx4 {vr(r)}, v3, {sr(sO)}, s{sLAST} offen sc1")
        if OPT['dupst']: b(f"buffer_store_dwordx4 {vr(r)}, v3, {sr(sO)}, s{sLAST} offen")
    def pack(acc,i,L):
        for r in range(8): b(f"v_mul_f32 v{acc+4*i+r}, v{acc+4*i+r}, v{L}")
        b(f"v_cvt_pk_bf16_f32 v{acc+4*i}, v{acc+4*i}, v{acc+4*i+1}")
        b(f"v_cvt_pk_bf16_f32 v{acc+4*i+1}, v{acc+4*i+2}, v{acc+4*i+3}")
        b(f"v_cvt_pk_bf16_f32 v{acc+4*i+2}, v{acc+4*i+4}, v{acc+4*i+5}")
        b(f"v_cvt_pk_bf16_f32 v{acc+4*i+3}, v{acc+4*i+6}, v{acc+4*i+7}")
    for i in (0,2,4,6):
        b(f"""
s_add_u32 s{sT2}, s{sW}, {i//2}
s_and_b32 s{sT2}, s{sT2}, 3
s_lshl_b32 s{sT2}, s{sT2}, 10
s_add_u32 s{sLAST}, s{sT2}, s{sSEL}
""")
        pack(O0,i,L0[0])
        ostore(O0+4*i)
        b(f"s_add_u32 s{sLAST}, s{sLAST}, {32*4096}")
        pack(O1,i,L1[0])
        ostore(O1+4*i)
    b(f"""
s_waitcnt lgkmcnt(0)
v_add_f32 v{S9}, v{S9}, v{S9+1}
v_add_f32 v{S9+2}, v{S9+2}, v{S9+3}
v_add_f32 v{L9[0]}, v{S9}, v{S9+2}
v_rcp_f32 v{L9[0]}, v{L9[0]}
s_lshl_b32 s{sT2}, s{sW}, 10
s_add_u32 s{sLAST}, s{sT2}, s{sIT}
""")
    pack(O9,0,L9[0])
    ostore(O9)
    sDBG=28
    b(f"""
s_mov_b32 s{sDBG}, s98
s_mov_b32 s{sDBG+1}, s99
s_mov_b32 s{sDBG+2}, 256
s_mov_b32 s{sDBG+3}, 0x20000
s_waitcnt vmcnt(0)
s_barrier
s_cmp_lg_u32 s{sW}, 0
s_cbranch_scc1 K1_SIG
s_lshl_b32 s{sT}, s{sBR}, 3
s_add_u32 s{sT}, s{sT}, s{sB}
s_lshl_b32 s{sT}, s{sT}, 2
s_add_u32 s{sT}, s{sT}, 128
s_lshl_b32 s{sT2}, 1, s{sH}
v_mov_b32 v4, s{sT2}
v_mov_b32 v5, 0
s_mov_b64 exec, 1
buffer_atomic_or v4, v5, {sr(sDBG)}, s{sT} offen sc1
s_mov_b64 exec, -1
""")
    b.label("K1_SIG")
    b.label("K1_OPONLY")
    stamp(b,4)
    if not OPT['opown']:
        b("s_cmp_lt_u32 s2, 256")
        b("s_cbranch_scc0 K1_FIN")
    if OPT['opmode']: op_phase(b)
    b.label("K1_FIN")
    if OPT['ost']:
        b(f"s_lshl_b32 s{sT}, s2, 2")
        b(f"s_add_u32 s{sT}, s{sT}, s{sW}")
        b(f"s_lshl_b32 s{sT}, s{sT}, 8")
        b(f"s_add_u32 s{sT}, s{sT}, {60<<20}")
        b(f"s_mov_b32 s{sO+2}, 0x10000000")
        b("v_lshlrev_b32 v3, 2, v0")
        b(f"buffer_store_dword v230, v3, {sr(sO)}, s{sT} offen")
    if OPT['stamps']:
        b("s_waitcnt vmcnt(0)")
        stamp(b,9)
        dump_stamps(b,10,sO,50<<20)
    b.label("K1_END")
    b("s_endpgm")
    ins,added=fix_hazards(b.ins)
    print(f"; k1: {len(ins)} instrs, {added} nop states added",file=sys.stderr)
    return ins

def op_phase(b):
    sWO=8; sOF=12; sPT=16; sOUT=20; sDBG=28
    sNT=45; sHQ=46; sBI=51; sB0=52; sB9=53; sWK2=54; sWM2=55; sBK=56; sITEM=57; sPOLL=58
    ACC0,ACC1,ACC9=4,24,44
    BF=64; AF=[160,180]
    WAd=[216,217,218,219,220]; DWO=[221,222,223,224,225]; VL=210; WAd2=[211,212,213,214,215]
    UNIT=20480
    bsc=' sc1' if OPT['bsc1'] else ''
    b(f"s_setprio 0")
    b(f"""
s_and_b32 s{sNT}, s{sH}, 7
s_lshr_b32 s{sHQ}, s{sH}, 3
v_and_b32 v1, 15, v0
v_lshrrev_b32 v2, 4, v0
v_lshlrev_b32 v{VL}, 4, v0
s_mov_b32 s{sT2}, {(1<<16)//10+1}
""")
    for e in range(5):
        b(f"""
v_add_u32 v3, {64*e}, v0
v_mul_u32_u24 v4, s{sT2}, v3
v_lshrrev_b32 v4, 16, v4
v_mul_u32_u24 v5, 10, v4
v_sub_u32 v5, v3, v5
v_mul_u32_u24 v4, 1280, v4
v_lshl_add_u32 v{DWO[e]}, v5, 4, v4
""")
        if 0<e<4: b(f"v_subrev_u32 v{DWO[e]}, {e*1024}, v{DWO[e]}")
    b(f"""
v_bfe_u32 v3, v0, 2, 2
v_lshl_add_u32 v3, v2, 2, v3
v_mul_u32_u24 v3, 160, v3
v_and_b32 v4, 3, v0
v_lshl_add_u32 v3, v4, 3, v3
""")
    for i in range(5):
        b(f"""
s_add_u32 s{sT}, s{sW}, {i}
s_cmp_ge_u32 s{sT}, 5
s_cselect_b32 s{sT2}, 5, 0
s_sub_u32 s{sT}, s{sT}, s{sT2}
s_mov_b32 s{33+i}, s{sT}
s_lshl_b32 s{sT}, s{sT}, 5
v_add_u32 v{WAd[i]}, s{sT}, v3
v_add_u32 v{WAd2[i]}, {2*UNIT}, v{WAd[i]}
""")
    b(f"""
s_mul_i32 s{sT}, s{sHQ}, {1024*1280}
s_mul_i32 s{sT2}, s{sNT}, 160
s_add_u32 s{sT}, s{sT}, s{sT2}
s_add_u32 s{sWO}, s84, s{sT}
s_addc_u32 s{sWO+1}, s85, 0
s_sub_u32 s{sWO+2}, 5242880, s{sT}
s_mov_b32 s{sWO+3}, 0x20000
s_mov_b32 s{sOF}, s40
s_mov_b32 s{sOF+1}, s41
s_mov_b32 s{sOF+2}, {O_BYTES}
s_mov_b32 s{sOF+3}, 0x20000
s_add_u32 s{sPT}, s40, {WS_PART}
s_addc_u32 s{sPT+1}, s41, 0
s_mov_b32 s{sPT+2}, {PART_BYTES}
s_mov_b32 s{sPT+3}, 0x20000
s_mov_b32 s{sOUT}, s96
s_mov_b32 s{sOUT+1}, s97
s_mov_b32 s{sOUT+2}, {8*144*1280*2}
s_mov_b32 s{sOUT+3}, 0x20000
s_mov_b32 s{sITEM}, 0
""")
    b.label("OP_ITEM")
    b(f"""
s_lshl_b32 s{sBI}, s{sITEM}, {2 if not OPT['opown'] else 0}
{"s_add_u32 s%d, s%d, s%d"%(sBI,sBI,sB) if not OPT['opown'] else "s_mov_b32 s%d, s%d"%(sBI,sB)}
s_mul_i32 s{sWK2}, s{sW}, {32*1280}
s_mul_i32 s{sT}, s{sNT}, {128*1280}
s_add_u32 s{sWK2}, s{sWK2}, s{sT}
s_mul_i32 s{sWM2}, s{sW}, 5120
s_mul_i32 s{sBK}, s{sW}, {32*1280}
s_add_u32 s{sBK}, s{sBK}, {8*128*1280}
""")
    def wunit(slot):
        b(f"s_add_u32 m0, s{sWM2}, {slot*UNIT}")
        b("s_nop 0")
        for e in range(4):
            b(f"buffer_load_dwordx4 v{DWO[e]}, {sr(sWO)}, s{sWK2} offen offset:{e*1024} lds")
        b(f"s_add_u32 m0, m0, 4096")
        b(f"s_add_u32 s{sT}, s{sWK2}, {128*1280}")
        b(f"buffer_load_dwordx4 v{DWO[4]}, {sr(sWO)}, s{sWK2} offen lds")
        b(f"s_cmp_ge_u32 s{sT}, s{sBK}")
        b(f"s_cselect_b32 s{sT2}, {1024*1280}, 0")
        b(f"s_sub_u32 s{sWK2}, s{sT}, s{sT2}")
    b("s_barrier")
    LB=OPT['oplb']; LW=OPT['oplw']
    for u_ in range(LW): wunit(u_)
    for r in range(4,52): b(f"v_mov_b32 v{r}, 0")
    if OPT['oponly']: b("s_branch OP_WAITED")
    b(f"s_cmp_lg_u32 s{sW}, 0")
    b("s_cbranch_scc1 OP_WAITED")
    b(f"""
s_lshl_b32 s{sT}, s{sBR}, 3
s_add_u32 s{sT}, s{sT}, s{sBI}
s_lshl_b32 s{sT}, s{sT}, 2
s_add_u32 s{sT}, s{sT}, 128
s_lshl_b32 s{sLAST}, s{sHQ}, 3
s_mov_b32 s{sPOLL}, 0
v_mov_b32 v61, 0
s_mov_b64 exec, 1
""")
    b.label("OP_POLL")
    b(f"""
{"buffer_load_dword v60, v61, "+sr(sDBG)+f", s{sT} offen sc1" if OPT['pollld'] else "v_mov_b32 v60, 0"+chr(10)+"buffer_atomic_or v60, v61, "+sr(sDBG)+f", s{sT} offen sc0 sc1"}
s_waitcnt vmcnt(0)
v_readfirstlane_b32 s{sT2}, v60
s_lshr_b32 s{sT2}, s{sT2}, s{sLAST}
s_and_b32 s{sT2}, s{sT2}, 255
s_cmp_eq_u32 s{sT2}, 255
s_cbranch_scc1 OP_POLLED
s_add_u32 s{sPOLL}, s{sPOLL}, 1
s_cmp_lt_u32 s{sPOLL}, 200000
s_cbranch_scc0 OP_POLLED
s_sleep {OPT['psleep']}
s_branch OP_POLL
""")
    b.label("OP_POLLED")
    b("s_mov_b64 exec, -1")
    b.label("OP_WAITED")
    b("s_barrier")
    if OPT['stamps']:
        l=b.new('ST'); b(f"s_cmp_eq_u32 s{sITEM}, 0"); b(f"s_cbranch_scc0 {l}a"); stamp(b,5); b(f"s_branch {l}b"); b.label(l+'a'); stamp(b,7); b.label(l+'b')
    b(f"""
s_lshl_b32 s{sT}, s{sBR}, 3
s_add_u32 s{sT}, s{sT}, s{sBI}
s_mul_i32 s{sT}, s{sT}, 9
s_lshl_b32 s{sT2}, s{sW}, 1
s_add_u32 s{sB0}, s{sT}, s{sT2}
s_lshl_b32 s{sB0}, s{sB0}, 17
s_add_u32 s{sB9}, s{sT}, 8
s_lshl_b32 s{sB9}, s{sB9}, 17
s_lshl_b32 s{sT}, s{sHQ}, 15
s_add_u32 s{sB0}, s{sB0}, s{sT}
s_add_u32 s{sB9}, s{sB9}, s{sT}
s_lshl_b32 s{sSEL}, s{sNT}, 12
""")
    def bload(kk):
        r=BF+12*(kk%8)
        b(f"s_add_u32 s{sT}, s{sB0}, s{sSEL}")
        b(f"s_add_u32 s{sT2}, s{sB9}, s{sSEL}")
        b(f"buffer_load_dwordx4 {vr(r)}, v{VL}, {sr(sOF)}, s{sT} offen{bsc}")
        b(f"s_add_u32 s{sT}, s{sT}, {32*4096}")
        b(f"buffer_load_dwordx4 {vr(r+8)}, v{VL}, {sr(sOF)}, s{sT2} offen{bsc}")
        b(f"buffer_load_dwordx4 {vr(r+4)}, v{VL}, {sr(sOF)}, s{sT} offen{bsc}")
        b(f"s_add_u32 s{sSEL}, s{sSEL}, 1024")
        b(f"s_and_b32 s{sSEL}, s{sSEL}, 32767")
    for kk in range(LB): bload(kk)
    def areads(slot,ks,fs):
        base=(slot%2)*UNIT+ks*5120
        WW=WAd if slot<2 else WAd2
        o=[]
        for i in range(5):
            o.append(f"ds_read_b64_tr_b16 {vr(fs+4*i,2)}, v{WW[i]} offset:{base}")
            o.append(f"ds_read_b64_tr_b16 {vr(fs+4*i+2,2)}, v{WW[i]} offset:{base+2560}")
        return o
    def unit_code(u,first,last):
        U=u+(4 if last else 0)
        q=[]
        for u_ in range(LW): q+=[('W',u_)]*5
        for k in range(LB): q+=[('B',k)]*3
        waits={}
        for UU in range(8):
            def after(tag):
                idx=max(i for i,t in enumerate(q) if t==tag)
                return len(q)-1-idx
            waits[('bar',UU)]=min(after(('W',UU)),after(('B',4*UU)))
            if UU+LW<8: q+=[('W',UU+LW)]*5
            for ks in range(4):
                waits[('k',4*UU+ks)]=after(('B',4*UU+ks))
                if 4*UU+ks+LB<32: q+=[('B',4*UU+ks+LB)]*3
        return waits
    waits=unit_code(0,0,0)
    b(f"s_mov_b32 s{sIT}, 0")
    for UU in range(8):
        u=UU%4
        b(f"s_waitcnt vmcnt({waits[('bar',UU)]})")
        b("s_barrier")
        if OPT['ost']:
            b("s_memtime s[90:91]")
            b("s_waitcnt lgkmcnt(0)")
            b(f"s_lshl_b32 s92, s{sITEM}, 4")
            b(f"s_add_u32 s92, s92, {UU}")
            b("s_mov_b32 m0, s92")
            b("s_nop 1")
            b("v_writelane_b32 v230, s90, m0")
        rd=areads(u,0,AF[0])
        for l in rd: b(l)
        if UU+LW<8 and not OPT['opnow']: wunit((u+LW)%4)
        pend=[I(l) for l in rd]
        for ks in range(4):
            kk=4*UU+ks
            fs=AF[ks&1]
            b(f"s_waitcnt vmcnt({min(63,waits[('k',kk)] + (5 if (ks==0 and UU+2<8) else 0) if False else waits[('k',kk)])})")
            r=BF+12*(kk%8)
            mm=[]
            for i in range(5):
                mm.append(mfma(ACC0+4*i,fs+4*i,r,ACC0+4*i))
                mm.append(mfma(ACC1+4*i,fs+4*i,r+4,ACC1+4*i))
                if i==0: mm.append(mfma(ACC9,fs,r+8,ACC9))
            nxt=areads(u,ks+1,AF[(ks+1)&1]) if ks<3 else []
            seq=[]
            for idx,m in enumerate(mm):
                seq.append(I(m))
                if idx<len(nxt): seq.append(I(nxt[idx]))
            if OPT['opnolds']: seq=[x for x in seq if x.kind!='dsr']; pend=[]
            o,pend=insert_lgkm(seq,pending=pend)
            b.add(o)
            if not OPT['opnobr']:
                lw=b.new('OPW')
                b(f"s_cmp_lg_u32 s{sW}, 0")
                b(f"s_cbranch_scc1 {lw}")
                b(mfma(ACC9+4,fs+16,r+8,ACC9+4))
                b.label(lw)
            if kk+LB<32 and not OPT['opnob']: bload(kk+LB)
    if OPT['stamps']:
        l=b.new('ST'); b(f"s_cmp_eq_u32 s{sITEM}, {0 if OPT['opown'] else 1}"); b(f"s_cbranch_scc0 {l}b"); stamp(b,8); b.label(l+'b')
    if OPT['ost']:
        b("s_memtime s[90:91]")
        b("s_waitcnt lgkmcnt(0)")
        b(f"s_lshl_b32 s92, s{sITEM}, 4")
        b(f"s_add_u32 s92, s92, 8")
        b("s_mov_b32 m0, s92")
        b("s_nop 1")
        b("v_writelane_b32 v230, s90, m0")
    b(f"""
s_lshl_b32 s{sT}, s{sBR}, 3
s_add_u32 s{sT}, s{sT}, s{sBI}
s_lshl_b32 s{sT}, s{sT}, 3
s_add_u32 s{sSEL}, s{sT}, s{sNT}
s_mul_i32 s{sB0}, s{sSEL}, {4*45*1024}
s_mul_i32 s{sT}, s{sHQ}, {45*1024}
s_add_u32 s{sB9}, s{sB0}, s{sT}
s_mul_i32 s{sBK}, s{sW}, {2*5*1024}
s_nop 7
""")
    tiles=[]
    for i in range(5):
        tiles.append((ACC0+4*i,0,i)); tiles.append((ACC1+4*i,5*1024,i))
    def toff(extra,i,dst):
        b(f"s_lshl_b32 s{dst}, s{33+i}, 10")
        b(f"s_add_u32 s{dst}, s{dst}, s{sBK}")
        if extra: b(f"s_add_u32 s{dst}, s{dst}, {extra}")
    for (acc,extra,i) in tiles:
        toff(extra,i,sT)
        b(f"s_add_u32 s{sT}, s{sT}, s{sB9}")
        if not OPT['opnop']: b(f"buffer_store_dwordx4 {vr(acc)}, v{VL}, {sr(sPT)}, s{sT} offen sc1")
    b(f"s_lshl_b32 s{sT}, s33, 10")
    b(f"s_add_u32 s{sT}, s{sT}, {40*1024}")
    b(f"s_add_u32 s{sT}, s{sT}, s{sB9}")
    b(f"buffer_store_dwordx4 {vr(ACC9)}, v{VL}, {sr(sPT)}, s{sT} offen sc1")
    b(f"s_cmp_lg_u32 s{sW}, 0")
    b("s_cbranch_scc1 OP_P1")
    b(f"s_add_u32 s{sT}, s{sB9}, {44*1024}")
    b(f"buffer_store_dwordx4 {vr(ACC9+4)}, v{VL}, {sr(sPT)}, s{sT} offen sc1")
    b.label("OP_P1")
    b("s_waitcnt vmcnt(0)")
    b("s_barrier")
    b(f"s_cmp_lg_u32 s{sW}, 0")
    b("s_cbranch_scc1 OP_P2")
    b(f"""
s_and_b32 s{sT}, s{sSEL}, 3
s_lshl_b32 s{sT}, s{sT}, 3
s_lshl_b32 s{sT2}, 1, s{sT}
v_mov_b32 v60, s{sT2}
s_lshr_b32 s{sT2}, s{sSEL}, 2
s_lshl_b32 s{sT2}, s{sT2}, 2
v_mov_b32 v61, 0
s_mov_b64 exec, 1
buffer_atomic_add v60, v61, {sr(sDBG)}, s{sT2} offen sc0 sc1
s_waitcnt vmcnt(0)
v_lshrrev_b32 v60, s{sT}, v60
v_and_b32 v60, 255, v60
ds_write_b32 v61, v60
s_waitcnt lgkmcnt(0)
s_mov_b64 exec, -1
""")
    b.label("OP_P2")
    b("s_barrier")
    b("""
v_mov_b32 v61, 0
ds_read_b32 v60, v61
s_waitcnt lgkmcnt(0)
""")
    b(f"v_readfirstlane_b32 s{sT}, v60")
    b(f"s_cmp_eq_u32 s{sT}, 3")
    b("s_cbranch_scc0 OP_DONE")
    LD=64
    def addparts(acc,offs_dst):
        for d in range(1,4):
            b(f"s_add_u32 s{sIT}, s{sHQ}, {d}")
            b(f"s_and_b32 s{sIT}, s{sIT}, 3")
            b(f"s_mul_i32 s{sIT}, s{sIT}, {45*1024}")
            b(f"s_add_u32 s{sIT}, s{sIT}, s{sB0}")
            b(f"s_add_u32 s{sIT}, s{sIT}, s{offs_dst}")
            b(f"buffer_load_dwordx4 {vr(acc+4*(d-1))}, v{VL}, {sr(sPT)}, s{sIT} offen sc1")
    k=0; ldmap=[]
    for (acc,extra,i) in tiles:
        toff(extra,i,sT)
        addparts(LD+12*k,sT); ldmap.append((acc,LD+12*k)); k+=1
    b(f"s_lshl_b32 s{sT}, s33, 10")
    b(f"s_add_u32 s{sT}, s{sT}, {40*1024}")
    addparts(LD+12*k,sT); ldmap.append((ACC9,LD+12*k)); k+=1
    b(f"s_mov_b32 s{sT}, {44*1024}")
    addparts(LD+12*k,sT); ldmap.append((ACC9+4,LD+12*k)); k+=1
    b(f"""
s_mul_i32 s{sLAST}, s{sBI}, 144
v_add_u32 v3, s{sLAST}, v1
v_mul_u32_u24 v3, 2560, v3
v_lshl_add_u32 v3, v2, 3, v3
s_mul_i32 s{sLAST}, s{sBR}, 1280
s_mul_i32 s{sT2}, s{sNT}, 160
s_add_u32 s{sLAST}, s{sLAST}, s{sT2}
s_waitcnt vmcnt(0)
""")
    for idx,(acc,ld) in enumerate(ldmap):
        for d in range(3):
            for r in range(4): b(f"v_add_f32 v{acc+r}, v{acc+r}, v{ld+4*d+r}")
        b(f"v_cvt_pk_bf16_f32 v{acc}, v{acc}, v{acc+1}")
        b(f"v_cvt_pk_bf16_f32 v{acc+1}, v{acc+2}, v{acc+3}")
        if idx<10:
            (a2,extra,i)=tiles[idx]
            b(f"s_lshl_b32 s{sT}, s{sW}, 1")
            if extra: b(f"s_add_u32 s{sT}, s{sT}, 1")
            b(f"s_mul_i32 s{sT}, s{sT}, {16*2560}")
            b(f"s_lshl_b32 s{sT2}, s{33+i}, 5")
        elif idx==10:
            b(f"s_mov_b32 s{sT}, {128*2560}")
            b(f"s_lshl_b32 s{sT2}, s33, 5")
        else:
            b(f"s_cmp_lg_u32 s{sW}, 0")
            b("s_cbranch_scc1 OP_DONE")
            b(f"s_mov_b32 s{sT}, {128*2560}")
            b(f"s_mov_b32 s{sT2}, {4*32}")
        b(f"s_add_u32 s{sT}, s{sT}, s{sT2}")
        b(f"s_add_u32 s{sT}, s{sT}, s{sLAST}")
        b(f"buffer_store_dwordx2 {vr(acc,2)}, v3, {sr(sOUT)}, s{sT} offen")
    b.label("OP_DONE")
    if OPT['stamps']:
        l=b.new('ST'); b(f"s_cmp_eq_u32 s{sITEM}, 0"); b(f"s_cbranch_scc0 {l}b"); stamp(b,6); b.label(l+'b')
    b(f"s_add_u32 s{sITEM}, s{sITEM}, 1")
    if not OPT['opown'] or OPT['oponly']:
        b(f"s_cmp_lt_u32 s{sITEM}, {OPT['opmode']}")
        b("s_cbranch_scc1 OP_ITEM")

def emit(name,ins):
    s=f".globl {name}\n.p2align 8\n.type {name},@function\n{name}:\n"
    for i in ins:
        s+= (i.text+'\n') if i.kind=='label' else ('    '+i.text+'\n')
    return s
def desc(name,vgpr=256,sgpr=102):
    return f""".amdhsa_kernel {name}
  .amdhsa_next_free_vgpr {vgpr}
  .amdhsa_next_free_sgpr {sgpr}
  .amdhsa_accum_offset {(vgpr+3)//4*4}
  .amdhsa_group_segment_fixed_size 0
  .amdhsa_kernarg_size 104
  .amdhsa_user_sgpr_count 2
  .amdhsa_user_sgpr_kernarg_segment_ptr 1
  .amdhsa_system_sgpr_workgroup_id_x 1
.end_amdhsa_kernel
"""
if __name__=='__main__':
    outp=sys.argv[1]
    for a in sys.argv[2:]:
        k,v=a.split('='); OPT[k]=int(v)
    k1=gen_k1()
    txt="; @launch grid=(512,1,1) block=(256,1,1) lds=81920\n"
    txt+='.amdgcn_target "amdgcn-amd-amdhsa--gfx950"\n.text\n'
    txt+=emit(NAME,k1)
    txt+='.section .rodata,"a"\n.p2align 6\n'+desc(NAME)
    open(outp,'w').write(txt)
```

```python
import re
REG_RE=re.compile(r'\b([vsa])\[(\d+):(\d+)\]|\b([vsa])(\d+)\b|\b(vcc|m0|exec|scc)(?:_lo|_hi)?\b')
def regs_of(tok):
    out=[]
    for m in REG_RE.finditer(tok):
        if m.group(1):
            out+= [f"{m.group(1)}{i}" for i in range(int(m.group(2)),int(m.group(3))+1)]
        elif m.group(4):
            out.append(f"{m.group(4)}{m.group(5)}")
        else:
            out.append(m.group(6))
    return out
TRANS=('v_exp_f32','v_log_f32','v_rcp_f32','v_rsq_f32','v_sqrt_f32','v_sin_f32','v_cos_f32')
class I:
    __slots__=('text','op','kind','rd','wr','tag','srcc','srcab','prio','skip')
    def __init__(s,text,tag=None,prio=0):
        s.text=text.strip(); s.tag=tag; s.prio=prio; s.skip=False
        t=s.text.split(';')[0].strip()
        s.srcc=set(); s.srcab=set()
        if t.endswith(':') or t.startswith('.') or t=='':
            s.op=''; s.kind='label'; s.rd=set(); s.wr=set(); return
        parts=t.split(None,1); op=parts[0]; s.op=op
        ops=[x.strip() for x in split_ops(parts[1])] if len(parts)>1 else []
        rd=set(); wr=set()
        base=op.replace('_e32','').replace('_e64','').replace('_dpp','').replace('_sdwa','')
        if op.startswith('v_mfma'):
            s.kind='mfma'; wr|=set(regs_of(ops[0])); s.srcab=set(regs_of(ops[1]))|set(regs_of(ops[2])); s.srcc=set(regs_of(ops[3])); rd|=s.srcab|s.srcc
        elif op.startswith('v_cmp'):
            s.kind='valu'; wr|=set(regs_of(ops[0]));
            for o in ops[1:]: rd|=set(regs_of(o))
            if op.startswith('v_cmpx'): wr.add('exec')
        elif op.startswith('v_readfirstlane') or op.startswith('v_readlane'):
            s.kind='valu'; wr|=set(regs_of(ops[0]))
            for o in ops[1:]: rd|=set(regs_of(o))
        elif op.startswith('v_permlane') and 'swap' in op:
            s.kind='valu'; r=set(regs_of(ops[0]))|set(regs_of(ops[1])); wr|=r; rd|=r
        elif op.startswith('v_'):
            s.kind='trans' if base in TRANS else 'valu'
            wr|=set(regs_of(ops[0]))
            rest=ops[1:]
            if base in('v_add_co_u32','v_sub_co_u32','v_addc_co_u32','v_subb_co_u32','v_subrev_co_u32'):
                wr|=set(regs_of(ops[1])); rest=ops[2:]
            for o in rest: rd|=set(regs_of(o))
            if base.startswith('v_fmac') or base.startswith('v_mac') or base.startswith('v_dot2c') or base=='v_writelane_b32' or base.startswith('v_pk_fmac'): rd|=set(regs_of(ops[0]))
            if base=='v_cndmask_b32' and len(ops)==3: rd.add('vcc')
        elif op.startswith('ds_'):
            if op.startswith('ds_read') or op.startswith('ds_bpermute') or op.startswith('ds_permute') or op.startswith('ds_swizzle'):
                s.kind='dsr'; wr|=set(regs_of(ops[0]))
                for o in ops[1:]: rd|=set(regs_of(o.split(' offset')[0]))
            else:
                s.kind='dsw'
                for o in ops: rd|=set(regs_of(o.split(' offset')[0]))
        elif op.startswith('buffer_') or op.startswith('global_'):
            islds=bool(re.search(r'\blds\b',t)) or '_lds_' in op
            if op.startswith('buffer_wbl2') or op.startswith('buffer_inv'):
                s.kind='vmisc'
            elif 'load' in op:
                if islds:
                    s.kind='dma'
                    for o in ops: rd|=set(regs_of(o))
                    rd.add('m0')
                else:
                    s.kind='vld'; wr|=set(regs_of(ops[0]))
                    for o in ops[1:]: rd|=set(regs_of(o))
            elif 'atomic' in op:
                s.kind='vst'
                for o in ops: rd|=set(regs_of(o))
                if re.search(r'\bsc0\b',t): s.kind='vld'; wr|=set(regs_of(ops[0])[:1])
            else:
                s.kind='vst'
                for o in ops: rd|=set(regs_of(o))
        elif op.startswith('s_'):
            if op in('s_waitcnt','s_nop','s_barrier','s_endpgm','s_setprio','s_sleep','s_branch') :
                s.kind={'s_waitcnt':'wait','s_nop':'nop','s_barrier':'barrier','s_endpgm':'end','s_branch':'branch'}.get(op,'salu')
            elif op.startswith('s_cbranch'):
                s.kind='branch'
                if 'scc' in op: rd.add('scc')
                if 'vcc' in op: rd.add('vcc')
                if 'exec' in op: rd.add('exec')
            elif op.startswith('s_cmp') or op.startswith('s_bitcmp'):
                s.kind='salu'; wr.add('scc')
                for o in ops: rd|=set(regs_of(o))
            elif op.startswith('s_load') or op.startswith('s_memtime') or op.startswith('s_memrealtime') or op.startswith('s_buffer_load'):
                s.kind='smem'; wr|=set(regs_of(ops[0]))
                for o in ops[1:]: rd|=set(regs_of(o))
            else:
                s.kind='salu'; wr|=set(regs_of(ops[0]))
                for o in ops[1:]: rd|=set(regs_of(o))
                if op.startswith(('s_add','s_sub','s_and','s_or','s_xor','s_lshl','s_lshr','s_min','s_max','s_ashr','s_andn2','s_not','s_bfe')): wr.add('scc')
                if op.startswith(('s_addc','s_subb','s_cselect')): rd.add('scc')
                if 'saveexec' in op: wr.add('exec'); rd.add('exec')
                if op.startswith('s_addk') or op.startswith('s_mulk'): rd|=set(regs_of(ops[0]))
        else:
            raise ValueError('unknown op '+t)
        s.rd=rd; s.wr=wr
    def __repr__(s): return s.text
def split_ops(s):
    out=[];d=0;cur=''
    for ch in s:
        if ch=='[': d+=1
        if ch==']': d-=1
        if ch==',' and d==0: out.append(cur); cur=''
        else: cur+=ch
    out.append(cur); return out
def isv(r): return r[0]=='v' and r!='vcc'
def mfma_passes(i):
    if '32x32x16' in i.op or '32x32x8' in i.op: return 8
    if '16x16x32' in i.op or '16x16x16' in i.op: return 4
    raise ValueError(i.op)
D2V={4:8,8:12}; D2AB={4:8,8:12}; COVL={4:6,8:10}; WARC={4:3,8:7}
def states(i):
    if i.kind=='label' or i.skip: return 0
    if i.kind=='nop': return int(i.text.split()[1],0)+1
    return 1
def need_gap(p,c):
    n=0
    pv=p.kind in('valu','trans'); cv=c.kind in('valu','trans')
    if pv and c.kind=='mfma':
        if {r for r in p.wr if isv(r)} & c.rd: n=max(n,2)
        if 'exec' in p.wr: n=max(n,4)
    if p.kind=='mfma':
        ps=mfma_passes(p)
        if c.kind=='mfma':
            if p.wr & c.srcab: n=max(n,D2AB[ps])
            if p.wr & c.srcc:
                if not (p.wr==c.srcc and mfma_passes(c)==ps): n=max(n,COVL[ps])
        elif cv or c.kind in('dsr','dsw','vld','vst','dma'):
            if p.wr & (c.rd|c.wr): n=max(n,D2V[ps])
            if cv and (p.srcc & c.wr): n=max(n,WARC[ps])
    if p.kind=='trans' and cv and c.kind!='trans':
        if p.wr & c.rd: n=max(n,1)
    if p.kind=='trans' and c.kind=='trans' and (p.wr&c.rd): n=max(n,1)
    if pv:
        sw={r for r in p.wr if r[0]=='s' or r=='vcc'}
        if sw:
            if c.kind in('vld','vst','dma') and (sw & c.rd): n=max(n,5)
            if cv and (sw & c.rd): n=max(n,2)
            if c.op.startswith(('v_readlane','v_writelane')) and (sw&c.rd): n=max(n,4)
            if c.kind in('salu','branch') and (sw & c.rd): n=max(n,4)
            if c.kind=='branch' and 'vcc' in sw and 'vcc' in c.rd: n=max(n,5)
        vw={r for r in p.wr if isv(r)}
        if c.op.startswith(('v_readfirstlane','v_readlane')) and (vw&c.rd): n=max(n,1)
        if (c.op.startswith('v_permlane') or 'dpp' in c.text) and (vw&c.rd): n=max(n,2)
        if 'exec' in p.wr:
            if c.op.startswith(('v_readfirstlane','v_readlane','v_writelane','v_permlane')): n=max(n,4)
            if 'dpp' in c.text: n=max(n,5)
    if p.kind=='salu' and 'm0' in p.wr and c.kind=='dma': n=max(n,1)
    if p.kind=='vst' and ('x4' in p.op or 'x3' in p.op):
        if cv and (p.rd & c.wr & {r for r in p.rd if isv(r)}): n=max(n,2)
        elif c.wr & {r for r in p.rd if isv(r)}: n=max(n,1)
    if p.kind=='salu' and 'exec' in p.wr:
        pass
    return n
MAXLOOK=24
def fix_hazards(ins, wrap=None, verbose=False):
    out=[]; added=0
    for c in ins:
        if c.kind=='label': out.append(c); continue
        dist=0; need=0
        for p in reversed(out):
            if dist>=MAXLOOK: break
            if p.kind=='label': continue
            g=need_gap(p,c)
            if g>dist: need=max(need,g-dist)
            dist+=states(p)
        while need>0:
            k=min(need,16)
            out.append(I(f"s_nop {k-1}")); added+=k; need-=k
        out.append(c)
    return out,added
def check_loop_hazards(body):
    o,a=fix_hazards(body+body)
    o1,a1=fix_hazards(body)
    return a-2*a1
def insert_lgkm(ins, pending=None):
    q=list(pending or [])
    out=[]
    for c in ins:
        if c.kind=='wait':
            m=re.search(r'lgkmcnt\((\d+)\)',c.text)
            if m:
                n=int(m.group(1));
                while len(q)>n: q.pop(0)
            out.append(c); continue
        if c.kind in('label',): out.append(c); continue
        idx=-1
        for k,p in enumerate(q):
            if p.kind=='dsr' and (p.wr & (c.rd|c.wr)): idx=k
            if p.kind=='dsw' and False: pass
        if idx>=0:
            n=len(q)-1-idx
            n=min(n,15)
            out.append(I(f"s_waitcnt lgkmcnt({n})"))
            while len(q)>n: q.pop(0)
        if c.kind in('dsr','dsw'):
            if len(q)>=15:
                out.append(I("s_waitcnt lgkmcnt(14)"))
                while len(q)>14: q.pop(0)
            q.append(c)
        if c.kind=='smem': raise ValueError('smem inside lgkm-tracked code')
        out.append(c)
    return out,q

def cost(i):
    if i.kind=='mfma': return 8
    if i.kind=='trans': return 8
    if i.kind=='valu': return 4
    return 4
def schedule(ref, lds_lat=140, mfma_lat_extra=24, lds_ahead=99, lds_per_gap=9, verbose=False):
    n=len(ref)
    preds=[[] for _ in range(n)]
    lastw={}; readers={}
    prev_mfma=None
    midx={}; cnt=0
    for j,c in enumerate(ref):
        if c.kind=='mfma': midx[j]=cnt; cnt+=1
    for j,c in enumerate(ref):
        deps={}
        for r in c.rd:
            if r in lastw:
                p=lastw[r]; Pp=ref[p]
                if Pp.kind=='dsr' or Pp.kind=='vld': lat=lds_lat
                elif Pp.kind=='mfma':
                    if c.kind=='mfma' and r in c.srcc and Pp.wr==c.srcc: lat=8
                    else: lat=4*mfma_passes(Pp)+mfma_lat_extra
                elif Pp.kind=='trans': lat=12
                else: lat=cost(Pp)+ (8 if c.kind=='mfma' else 0)
                deps[p]=max(deps.get(p,0),lat)
        for r in c.wr:
            if r in lastw:
                p=lastw[r]; Pp=ref[p]
                lat=cost(Pp)
                if Pp.kind=='mfma' and c.kind!='mfma': lat=4*mfma_passes(Pp)+mfma_lat_extra
                if Pp.kind=='dsr': lat=lds_lat
                deps[p]=max(deps.get(p,0),lat)
            for p in readers.get(r,[]):
                if p!=j:
                    Pp=ref[p]; lat=cost(Pp) if Pp.kind!='mfma' else 8
                    if Pp.kind=='mfma' and r in Pp.srcc and c.kind!='mfma': lat=20
                    deps[p]=max(deps.get(p,0),lat)
        if c.kind=='mfma':
            if prev_mfma is not None: deps[prev_mfma]=max(deps.get(prev_mfma,0),0)
            prev_mfma=j
        preds[j]=list(deps.items())
        for r in c.rd: readers.setdefault(r,[]).append(j)
        for r in c.wr:
            lastw[r]=j; readers[r]=[]
    succs=[[] for _ in range(n)]
    for j in range(n):
        for p,l in preds[j]: succs[p].append((j,l))
    need={}
    for j,c in enumerate(ref):
        if c.kind=='dsr':
            ms=[midx[s_] for s_,l in succs[j] if ref[s_].kind=='mfma' and (c.wr & ref[s_].rd)]
            need[j]=min(ms) if ms else 10**6
    dl=[10**6]*n
    for j in range(n-1,-1,-1):
        c=ref[j]
        if c.kind=='mfma': dl[j]=midx[j]
        else:
            for s_,l in succs[j]:
                dl[j]=min(dl[j], dl[s_]-(0 if ref[s_].kind=='mfma' else 0.01))
    start=[None]*n; order=[]
    t=0; port_free=0; pipe_free=0
    npred=[len(preds[j]) for j in range(n)]
    ready=[j for j in range(n) if npred[j]==0]
    nm=0; lds_in_gap=0
    nmf=cnt
    while len(order)<n:
        cands=[]
        for j in ready:
            c=ref[j]
            if c.kind=='dsr':
                nd=need[j]
                if nd>=10**6: nd=nmf+lds_ahead-6
                if nm < nd-lds_ahead and any(ref[k].kind=='mfma' for k in range(n) if start[k] is None): continue
                if lds_in_gap>=lds_per_gap and nm<nmf: continue
            e=t
            for p,l in preds[j]: e=max(e,start[p]+l)
            if c.kind=='mfma': e=max(e,port_free,pipe_free)
            elif c.kind in('valu','trans'): e=max(e,port_free)
            cands.append((e,j))
        if not cands:
            lds_in_gap=0; nm_backup=nm; nm=10**6
            cands=[(max([t]+[start[p]+l for p,l in preds[j]]),j) for j in ready]
            nm=nm_backup
        emin=min(e for e,j in cands)
        mf=[(e,j) for e,j in cands if ref[j].kind=='mfma']
        def key(j):
            c=ref[j]
            k0=0 if c.kind=='mfma' else 1 if c.kind in('valu','trans','dsw') else 2
            return (k0, dl[j] if c.kind!='dsr' else need[j], j)
        avail=[j for e,j in cands if e<=emin]
        j=min(avail,key=key)
        c=ref[j]
        if c.kind!='mfma' and mf:
            em,jm=mf[0]
            if c.kind in('valu','trans') and emin+cost(c)>em+2:
                alt=[k for k in avail if ref[k].kind not in('valu','trans','mfma')]
                if alt: j=min(alt,key=key); c=ref[j]
                elif em-emin<=4: j=jm; emin=em; c=ref[j]
        start[j]=emin
        order.append(j); ready.remove(j)
        if c.kind=='mfma':
            port_free=emin+8; pipe_free=emin+4*mfma_passes(c); t=emin+4; nm+=1; lds_in_gap=0
        elif c.kind in('valu','trans'):
            port_free=emin+cost(c); t=emin+4
        else:
            t=emin+4
            if c.kind=='dsr': lds_in_gap+=1
        for s_,l in succs[j]:
            npred[s_]-=1
            if npred[s_]==0: ready.append(s_)
    return [ref[j] for j in order], max(t,pipe_free)
```

```python
import sys, math, struct
from isa import *
NAME='concat_heads__mha_block_cached__gqa_block_cached__near_ridge_kernel'
OPT=dict(dbg_q=0, stamps=0, qponly=0, qst=0, wxpf=1, kvpf=1, prio=2, k1only=0, k2only=0, fst=0, tw=2, tnt=1, kvpfl=1, rot=1, dred=1, rsleep=32, lah=99, lpg=9, dmmode=0, dmo1=3, dmo2=5, ast=0, ost=0, opnobr=0, opnolds=0, oponly=0, opown=1, thr=0, ldelay=0, dsleep=16, dmax=24, nodma=0, nobar=0, noexp=0, novalu=0, nolds=0, not9=0, ldslat=140, dmk=3, dmv=9, lateexit=0, samekv=0, prioL=0, opmode=2, opnob=0, opnow=0, opnop=0, oplb=4, oplw=2, attla=3, wopf=1, wotit=5, pollld=0, psleep=64, dupst=1, bsc1=1, qtwice=0, prioatt=0, k0it=1, kvit=2, nok0=0)
class P:
    def __init__(s): s.ins=[]; s.n=0
    def __call__(s,text,**kw):
        for l in text.strip('\n').split('\n'):
            l=l.strip()
            if l and not l.startswith(';'): s.ins.append(I(l,**kw))
    def add(s,lst): s.ins+=lst
    def label(s,name): s.ins.append(I(name+':'))
    CNT=[0]
    def new(s,p='L'):
        P.CNT[0]+=1; return f'{p}_{P.CNT[0]}'
def vr(a,n=4): return f"v[{a}:{a+n-1}]"
def sr(a,n=4): return f"s[{a}:{a+n-1}]"
def mfma(d,a,b,c):
    cs=c if isinstance(c,str) else vr(c)
    return f"v_mfma_f32_16x16x32_bf16 {vr(d)}, {vr(a)}, {vr(b)}, {cs}"
def f2u(f): return struct.unpack('<I',struct.pack('<f',f))[0]
CSC=math.log2(math.e)/math.sqrt(128.0)

O0,O1,O9=4,36,68
Q0,Q1,Q9=76,92,108
NM0,NM1,NM9=124,128,132
S0=[136,144]; S1=[152,160]; S9=168
KF=[176,180,184,188,240,244]; VF=[192,196,200,204,248,252]; P9F=208
L0=[212,213]; L1=[214,215]; L9=[216,217]
KA=[218,219,220,221]; VA=list(range(222,230))
DK=[230,231]; DV=[232,233]; P9A=234; BP16=235; BP32=236
sW=4; sH=5; sB=6; sBR=7
sK=8; sV=12; sWQ=16; sX=20; sO=24
sIT=42; sSOFF=43; sM0=44; sT=47; sT2=48; sSEL=49; sLAST=50
sXK=51; sWK=52; sQH=55; sDH=56; sXM=57; sXS=58; sWM=53
SLOT=16384
XS=[0,18432]; WB=36864; K0B=69632; P9B=77824; L9B=79872; QB=16384
WS_O=0; WS_PART=20<<20; O_BYTES=18874368; PART_BYTES=512*45*1024

def finish(body,**kw):
    o,ms=schedule(body,**kw)
    o,q=insert_lgkm(o)
    return o,ms,q
def stamp(b,idx):
    if OPT['stamps']:
        b(f"s_memrealtime s[92:93]")
        b(f"s_memtime s[94:95]")
        b("s_waitcnt lgkmcnt(0)")
        b(f"s_mov_b32 s{60+2*idx}, s92")
        b(f"s_mov_b32 s{61+2*idx}, s94")
def dump_stamps(b,n,srd,base):
    if OPT['stamps']:
        b(f"s_lshl_b32 s{sT}, s2, 2")
        b(f"s_add_u32 s{sT}, s{sT}, s{sW}")
        b(f"s_lshl_b32 s{sT}, s{sT}, 7")
        b(f"s_add_u32 s{sT}, s{sT}, {base}")
        b(f"s_mov_b32 s{srd+2}, 0x10000000")
        for i in range(n):
            b(f"v_mov_b32 v{2*i+4}, s{60+2*i}")
            b(f"v_mov_b32 v{2*i+5}, s{61+2*i}")
        b("v_mov_b32 v3, 0")
        b("s_mov_b64 exec, 1")
        for i in range(n):
            b(f"buffer_store_dwordx2 v[{2*i+4}:{2*i+5}], v3, s[{srd}:{srd+3}], s{sT} offen offset:{8*i}")
        b("s_waitcnt vmcnt(0)")

def att_step(p,ver):
    cur=p&1; nxt=cur^1; slot=p*SLOT; nslot=((p+1)%4)*SLOT
    b=P()
    b(f"ds_read_b128 {vr(P9F)}, v{P9A} offset:{cur*1024}")
    t9kt={'t9a':0,'t9b':1}.get(ver,None)
    if ver!='final':
        bufs={(0,0):KF[0],(0,1):KF[1],(0,2):KF[2],(0,3):KF[3],(1,0):KF[4],(1,1):KF[5],(1,2):KF[0],(1,3):KF[1]}
        b(f"ds_read_b128 {vr(KF[4])}, v{KA[0]} offset:{slot+4096}")
        b(f"ds_read_b128 {vr(KF[5])}, v{KA[1]} offset:{slot+4096}")
        for kt in range(2):
            for s in range(4):
                kf=bufs[(kt,s)]
                if kt==1 and s>=2:
                    b(f"ds_read_b128 {vr(kf)}, v{KA[s]} offset:{slot+4096}")
                lst=[(S0[nxt]+4*kt,Q0,NM0),(S1[nxt]+4*kt,Q1,NM1)]
                if t9kt==kt: lst.append((S9,Q9,NM9))
                for (d,Qx,NM) in lst:
                    b(mfma(d,kf,Qx+4*s, NM if s==0 else d))
    def softmax(S,L,n=8):
        for r in range(n): b(f"v_exp_f32 v{S+r}, v{S+r}")
        for r in range(n): b(f"v_add_f32 v{L[r&1]}, v{L[r&1]}, v{S+r}")
        for r in range(n//2): b(f"v_cvt_pk_bf16_f32 v{S+r}, v{S+2*r}, v{S+2*r+1}")
    softmax(S1[cur],L1)
    if t9kt is not None:
        softmax(S9,L9,4)
        b(f"ds_write_b64 v{P9A}, {vr(S9,2)} offset:{nxt*1024+8*t9kt}")
    for i in range(8):
        vf=VF[i%len(VF)]
        b(f"ds_read_b64_tr_b16 {vr(vf,2)}, v{VA[i]} offset:{slot}")
        b(f"ds_read_b64_tr_b16 {vr(vf+2,2)}, v{VA[i]} offset:{slot+4096}")
        b(mfma(O0+4*i,vf,S0[cur],O0+4*i))
        b(mfma(O1+4*i,vf,S1[cur],O1+4*i))
        if i<2: b(mfma(O9+4*i,vf,P9F,O9+4*i))
    if ver!='final':
        softmax(S0[nxt],L0)
        for s in range(4):
            b(f"ds_read_b128 {vr(KF[s])}, v{KA[s]} offset:{nslot}")
    return b.ins

def dma_macros(p,LA):
    P_=P()
    slotpos=(p+LA)%4
    jl=28+p; tgt=jl+LA
    out=[]
    for part,e_ in (('K',0),('K',1),('V',0),('V',1)):
        skip_last = (tgt>=31) if part=='K' else (tgt>=32)
        m=[]
        lab=P_.new('DM')
        if skip_last:
            m.append(I(f"s_cmp_eq_u32 s{sLAST}, 1"))
            m.append(I(f"s_cbranch_scc1 {lab}"))
        off=" offset:1024" if e_ else ""
        if part=='K':
            body=[f"s_add_u32 m0, s{sM0}, {slotpos*SLOT}", f"s_add_u32 s{sT}, s{sSOFF}, 8192",
                   f"buffer_load_dwordx4 v{DK[e_]}, {sr(sK)}, s{sT} offen{off} nt lds"]
        else:
            body=[f"s_add_u32 m0, s{sM0}, {slotpos*SLOT+8192}", "s_nop 0",
                   f"buffer_load_dwordx4 v{DV[e_]}, {sr(sV)}, s{sSOFF} offen{off} nt lds"]
            if e_==1: body.append(f"s_add_u32 s{sSOFF}, s{sSOFF}, 8192")
        for l in body:
            i=I(l); i.skip=skip_last; m.append(i)
        if skip_last: m.append(I(lab+':'))
        out.append(m)
    return out

def dmpos(ver):
    m=OPT['dmmode']
    if m==0: return [3,4,9,10] if False else [3,3.5,9,9.5]
    off={'plain':0,'t9a':OPT['dmo1'],'t9b':OPT['dmo2']}[ver]
    return [x+off for x in {1:[2,10,18,26],2:[1,5,9,13],3:[16,20,24,28]}[m]]
def place_macros(o,macros,positions):
    res=[]; n=0; todo=sorted(zip(positions,range(len(macros))))
    for i in o:
        res.append(i)
        if i.kind=='mfma':
            n+=1
            while todo and int(todo[0][0])<=n: res+=macros[todo.pop(0)[1]]
    for _,k in todo: res+=macros[k]
    return res

def dma_slot(b,slotpos,kpart=True,vpart=True):
    if kpart:
        b(f"s_add_u32 m0, s{sM0}, {slotpos*SLOT}")
        b(f"s_add_u32 s{sT}, s{sSOFF}, 8192")
        b(f"buffer_load_dwordx4 v{DK[0]}, {sr(sK)}, s{sT} offen nt lds")
        b(f"buffer_load_dwordx4 v{DK[1]}, {sr(sK)}, s{sT} offen offset:1024 nt lds")
    if vpart:
        b(f"s_add_u32 m0, s{sM0}, {slotpos*SLOT+8192}")
        b(f"s_nop 0")
        b(f"buffer_load_dwordx4 v{DV[0]}, {sr(sV)}, s{sSOFF} offen nt lds")
        b(f"buffer_load_dwordx4 v{DV[1]}, {sr(sV)}, s{sSOFF} offen offset:1024 nt lds")

def decode_ids(b):
    b(f"""
s_bfe_u32 s{sBR}, s2, 0x10002
s_and_b32 s{sH}, s2, 3
s_lshl_b32 s{sH}, s{sH}, 3
s_bfe_u32 s{sT}, s2, 0x30003
s_add_u32 s{sH}, s{sH}, s{sT}
s_bfe_u32 s{sB}, s2, 0x20006
s_lshr_b32 s{sT}, s2, 8
s_lshl_b32 s{sT}, s{sT}, 2
s_add_u32 s{sB}, s{sB}, s{sT}
""")

def gen_k1():
    b=P()
    b("s_cmp_ge_u32 s2, 512")
    b("s_cbranch_scc1 K1_END")
    if OPT['lateexit']:
        b("s_cmp_ge_u32 s2, 256")
        b("s_cbranch_scc1 K1_END")
    decode_ids(b)
    b(f"""
s_mul_i32 s3, s{sBR}, 40
s_add_u32 s28, s0, s3
s_addc_u32 s29, s1, 0
s_load_dwordx8 s[32:39], s[28:29], 0
s_load_dwordx2 s[40:41], s[0:1], 96
s_load_dwordx2 s[84:85], s[28:29], 32
s_load_dwordx4 s[96:99], s[0:1], 80
v_lshrrev_b32 v1, 6, v0
v_and_b32 v0, 63, v0
s_nop 0
v_readfirstlane_b32 s{sW}, v1
v_and_b32 v1, 15, v0
v_lshrrev_b32 v2, 4, v0
""")
    stamp(b,0)
    if OPT['stamps']:
        for i in (5,6,7,8,9):
            b(f"s_mov_b32 s{60+2*i}, s60"); b(f"s_mov_b32 s{61+2*i}, s61")
    if OPT['prio']:
        b("s_cmp_lt_u32 s2, 256")
        b("s_cbranch_scc0 K1_NOPRIO")
        b(f"s_setprio {OPT['prio']}")
        b.label("K1_NOPRIO")
    qWA=[148,149,150,151]; qXB=[152,153]; qX9=[154,155]; qDX=[156,157]; qDW=[158,159,160]
    FA=[76,112]
    b(f"""
v_lshrrev_b32 v3, 3, v0
v_mul_u32_u24 v3, 1280, v3
v_and_b32 v4, 7, v0
v_xor_b32 v5, v4, v2
v_lshl_add_u32 v{qDX[0]}, v5, 4, v3
v_xor_b32 v5, 4, v5
v_lshl_add_u32 v{qDX[1]}, v5, 4, v3
""")
    for e in range(3):
        b(f"""
s_mul_i32 s{sT}, s{sW}, 3
s_add_u32 s{sT}, s{sT}, {e}
s_min_u32 s{sT}, s{sT}, 7
s_bfe_u32 s{sT2}, s{sT}, 0x10001
s_lshl_b32 s{sT2}, s{sT2}, 3
v_lshlrev_b32 v3, 1, v2
v_add_u32 v3, s{sT2}, v3
v_xor_b32 v3, v1, v3
v_lshlrev_b32 v3, 4, v3
v_lshl_add_u32 v3, v2, 13, v3
s_lshl_b32 s{sT2}, s{sT}, 15
v_add_u32 v{qDW[e]}, s{sT2}, v3
s_lshl_b32 s{86+e}, s{sT}, 10
s_add_u32 s{86+e}, s{86+e}, {WB}
""")
    b(f"""
s_mul_i32 s{sXM}, s{sW}, {6*1024}
s_mul_i32 s{sXS}, s{sW}, {6*10240}
s_mov_b32 s{sXK}, 0
s_mov_b32 s{sWK}, 0
s_and_b32 s{sQH}, s{sW}, 1
s_lshr_b32 s{sDH}, s{sW}, 1
s_lshl_b32 s{sM0}, s{sW}, 11
s_waitcnt lgkmcnt(0)
""")
    if OPT['fst']: stamp(b,1)
    b(f"""
s_mul_i32 s{sT}, s{sB}, 184320
s_add_u32 s{sX}, s32, s{sT}
s_addc_u32 s{sX+1}, s33, 0
s_mov_b32 s{sX+2}, 184320
s_mov_b32 s{sX+3}, 0x20000
s_lshl_b32 s{sT}, s{sH}, 8
s_add_u32 s{sWQ}, s38, s{sT}
s_addc_u32 s{sWQ+1}, s39, 0
s_sub_u32 s{sWQ+2}, 5242880, s{sT}
s_mov_b32 s{sWQ+3}, 0x20000
s_lshl_b32 s{sT}, s{sB}, 5
s_add_u32 s{sT}, s{sT}, s{sH}
s_lshr_b32 s{sT2}, s{sT}, 14
s_lshl_b32 s{sT}, s{sT}, 18
{"s_and_b32 s47, s47, 0x1c0000" + chr(10) + "s_mov_b32 s48, 0" if OPT['samekv'] else ""}
s_add_u32 s{sK}, s34, s{sT}
s_addc_u32 s{sK+1}, s35, s{sT2}
s_mov_b32 s{sK+2}, 262144
s_mov_b32 s{sK+3}, 0x20000
s_add_u32 s{sV}, s36, s{sT}
s_addc_u32 s{sV+1}, s37, s{sT2}
s_mov_b32 s{sV+2}, 262144
s_mov_b32 s{sV+3}, 0x20000
s_mov_b32 s{sO}, s40
s_mov_b32 s{sO+1}, s41
s_mov_b32 s{sO+2}, {O_BYTES}
s_mov_b32 s{sO+3}, 0x20000
""")
    if OPT['oponly']:
        b(f"""
s_mov_b32 s28, s98
s_mov_b32 s29, s99
s_mov_b32 s30, 256
s_mov_b32 s31, 0x20000
""")
        b("s_branch K1_OPONLY")
    def xops(slot):
        ops=[]
        for e in range(6):
            o=[]
            if e==0:
                o.append(f"s_add_u32 s{sT}, s{sXS}, s{sXK}")
                o.append(f"s_add_u32 m0, s{sXM}, {XS[slot]}")
                o.append(f"s_add_u32 s{sXK}, s{sXK}, 128")
                o.append(f"s_cmp_eq_u32 s{sXK}, 1280")
                o.append(f"s_cselect_b32 s{sXK}, 0, s{sXK}")
            else:
                o.append(f"s_add_u32 m0, m0, 1024")
                o.append(f"s_add_u32 s{sT}, s{sT}, 10240")
            o.append(f"buffer_load_dwordx4 v{qDX[e&1]}, {sr(sX)}, s{sT} offen lds")
            ops.append(o)
        return ops
    def wops(slot):
        ops=[]
        for e in range(3):
            o=[f"s_add_u32 m0, s{86+e}, {slot*8192}"]
            o.append("s_nop 0")
            o.append(f"buffer_load_dwordx4 v{qDW[e]}, {sr(sWQ)}, s{sWK} offen lds")
            if e==2:
                o.append(f"s_add_u32 s{sWK}, s{sWK}, {32*8192}")
                o.append(f"s_cmp_eq_u32 s{sWK}, {640*8192}")
                o.append(f"s_cselect_b32 s{sWK}, 0, s{sWK}")
            ops.append(o)
        return ops
    def emit_ops(ops):
        for o in ops:
            for l in o: b(l)
    if OPT['rot']:
        b(f"""
s_mul_i32 s{sT}, s{sB}, 3
s_and_b32 s{sT2}, s{sH}, 7
s_add_u32 s{sT}, s{sT}, s{sT2}
s_cmp_ge_u32 s{sT}, 20
s_cselect_b32 s{sT2}, 20, 0
s_sub_u32 s{sT}, s{sT}, s{sT2}
s_cmp_ge_u32 s{sT}, 10
s_cselect_b32 s{sT2}, 10, 0
s_sub_u32 s{sT}, s{sT}, s{sT2}
s_lshl_b32 s{sXK}, s{sT}, 7
s_lshl_b32 s{sWK}, s{sT}, 19
""")
    def wtouch(t,dst):
        b(f"v_add_u32 v5, {32*t}, v3")
        b(f"v_lshlrev_b32 v5, 2, v5")
        b(f"v_add_u32 v5, s{sB}, v5")
        b(f"v_lshl_add_u32 v5, v5, 13, v4")
        b(f"buffer_load_dword v{dst}, v5, {sr(sWQ)}, 0 offen{' nt' if OPT['tnt'] else ''}")
    def xtouch(t,dst):
        b(f"v_add_u32 v5, {64*t}, v0")
        b(f"v_min_u32 v5, 179, v5")
        b(f"v_mul_u32_u24 v6, s{sT2}, v5")
        b(f"v_lshrrev_b32 v6, 16, v6")
        b(f"v_mul_u32_u24 v7, 18, v6")
        b(f"v_sub_u32 v7, v5, v7")
        b(f"v_lshlrev_b32 v7, 3, v7")
        b(f"v_add_u32 v7, s{sT}, v7")
        b(f"v_mul_u32_u24 v7, 1280, v7")
        b(f"v_lshl_add_u32 v7, v6, 7, v7")
        b(f"buffer_load_dword v{dst}, v7, {sr(sX)}, 0 offen{' nt' if OPT['tnt'] else ''}")
    def k0load():
        for vw in range(4):
            b(f"""
v_add_u32 v190, {8*vw}, v2
v_lshlrev_b32 v191, 8, v190
v_and_b32 v192, 15, v190
v_xor_b32 v192, v1, v192
v_lshl_add_u32 v193, v192, 4, v191
v_add_u32 v192, 4, v190
v_and_b32 v192, 15, v192
v_xor_b32 v192, v1, v192
v_lshl_add_u32 v194, v192, 4, v191
s_mov_b32 m0, {K0B+vw*2048}
s_nop 0
buffer_load_dwordx4 v193, {sr(sK)}, 0 offen nt lds
buffer_load_dwordx4 v194, {sr(sK)}, 0 offen offset:1024 nt lds
""")
    def kvtouch(n):
        if n==0: return
        b(f"v_lshlrev_b32 v195, 7, v0")
        for t in range(n):
            b(f"s_mov_b32 s{sLAST}, {(t+1)*8192}")
            b(f"buffer_load_dword v{172+2*t}, v195, {sr(sK)}, s{sLAST} offen nt")
            b(f"s_mov_b32 s{sLAST}, {t*8192}")
            b(f"buffer_load_dword v{173+2*t}, v195, {sr(sV)}, s{sLAST} offen nt")
    if OPT['ldelay']:
        FL=48<<20
        b(f"""
s_add_u32 s28, s40, {FL}
s_addc_u32 s29, s41, 0
s_mov_b32 s30, 32768
s_mov_b32 s31, 0x20000
s_and_b32 s{sT}, s2, 255
s_lshl_b32 s89, s{sT}, 7
v_mov_b32 v61, 0
""")
        b("s_cmp_lt_u32 s2, 256")
        b("s_cbranch_scc0 K1_DLATE")
        b(f"s_cmp_lg_u32 s{sW}, 3")
        b("s_cbranch_scc1 K1_NODELAY")
        b(f"buffer_load_dword v199, v61, s[28:31], s89 offen sc1")
        b("s_branch K1_NODELAY")
        b.label("K1_DLATE")
        b(f"s_cmp_lg_u32 s{sW}, 0")
        b("s_cbranch_scc1 K1_DELAYB")
        b(f"buffer_load_dword v62, v61, s[28:31], s89 offen sc1")
        b(f"s_mov_b32 s{sIT}, 0")
        b("s_waitcnt vmcnt(0)")
        b(f"v_readfirstlane_b32 s{sLAST}, v62")
        b.label("K1_DPOLL")
        b(f"""
s_sleep {OPT['dsleep']}
buffer_load_dword v60, v61, s[28:31], s89 offen sc1
s_waitcnt vmcnt(0)
v_readfirstlane_b32 s{sT}, v60
s_cmp_lg_u32 s{sT}, s{sLAST}
s_cbranch_scc1 K1_DELAYB
s_add_u32 s{sIT}, s{sIT}, 1
s_cmp_lt_u32 s{sIT}, {OPT['dmax']}
s_cbranch_scc1 K1_DPOLL
""")
        b.label("K1_DELAYB")
        b("s_barrier")
        b.label("K1_NODELAY")
    if OPT['rot']:
        b(f"s_cmp_eq_u32 s{sW}, 3")
        b("s_cbranch_scc1 K1_SETUP")
        emit_ops(xops(0)); emit_ops(wops(0)); emit_ops(wops(1))
        b("s_branch K1_SETUP")
    b(f"s_cmp_eq_u32 s{sW}, 3")
    b("s_cbranch_scc0 K1_SETUP")
    b(f"v_lshrrev_b32 v3, 1, v0")
    b(f"v_and_b32 v4, 1, v0")
    b(f"v_lshlrev_b32 v4, 7, v4")
    b(f"s_and_b32 s{sT}, s{sH}, 7")
    b(f"s_mov_b32 s{sT2}, {(1<<16)//18+1}")
    b("s_cmp_lt_u32 s2, 256")
    b("s_cbranch_scc0 K1_TLATE")
    wtouch(0,164); xtouch(0,165); wtouch(1,166); wtouch(2,167); xtouch(1,168); wtouch(3,169); xtouch(2,170); wtouch(4,171)
    b("s_branch K1_SETUP")
    b.label("K1_TLATE")
    k0load()
    kvtouch(OPT['kvpfl'])
    xtouch(0,165); xtouch(1,168); xtouch(2,170)
    b.label("K1_SETUP")
    b(f"""
s_lshl_b32 s{sT}, s{sW}, 3
v_add_u32 v3, s{sT}, v2
v_lshlrev_b32 v4, 8, v3
v_and_b32 v5, 15, v3
v_xor_b32 v5, v1, v5
v_lshl_add_u32 v{DK[0]}, v5, 4, v4
v_add_u32 v5, 4, v3
v_and_b32 v5, 15, v5
v_xor_b32 v5, v1, v5
v_lshl_add_u32 v{DK[1]}, v5, 4, v4
v_lshlrev_b32 v5, 1, v2
v_xor_b32 v5, v1, v5
v_lshl_add_u32 v{DV[0]}, v5, 4, v4
v_lshlrev_b32 v5, 1, v2
v_add_u32 v5, 8, v5
v_xor_b32 v5, v1, v5
v_lshl_add_u32 v{DV[1]}, v5, 4, v4
""")
    b(f"""
v_bfe_u32 v3, v0, 2, 2
v_and_b32 v4, 1, v2
v_lshl_add_u32 v4, v4, 2, v3
v_lshl_add_u32 v5, v2, 3, v3
v_lshlrev_b32 v5, 8, v5
v_and_b32 v6, 3, v0
v_lshl_add_u32 v5, v6, 3, v5
v_add_u32 v5, {WB}, v5
""")
    for i in range(4):
        b(f"""
s_lshl_b32 s{sT}, s{sQH}, 1
s_add_u32 s{sT}, s{sT}, {i}
s_and_b32 s{sT}, s{sT}, 3
s_lshl_b32 s{sT2}, s{sDH}, 2
s_add_u32 s{sT}, s{sT}, s{sT2}
v_xor_b32 v6, s{sT}, v4
v_lshl_add_u32 v{qWA[i]}, v6, 5, v5
""")
    b(f"""
v_lshrrev_b32 v3, 1, v1
v_xor_b32 v3, v3, v2
v_lshlrev_b32 v3, 4, v3
v_lshl_add_u32 v3, v1, 7, v3
s_lshl_b32 s{sT}, s{sQH}, 13
v_add_u32 v{qXB[0]}, s{sT}, v3
v_xor_b32 v{qXB[1]}, 64, v{qXB[0]}
v_add_u32 v{qX9[0]}, 16384, v3
v_xor_b32 v{qX9[1]}, 64, v{qX9[0]}
""")
    for r in range(O0,O0+72): b(f"v_mov_b32 v{r}, 0")
    def qreads(k,fs):
        wb=(k%4)*8192; xb=XS[(k>>1)&1]; e=k&1
        o=[]
        for t in range(4):
            o.append(f"ds_read_b128 {vr(fs+16+4*t)}, v{qXB[e]} offset:{xb+t*2048}")
            o.append(f"ds_read_b64_tr_b16 {vr(fs+4*t,2)}, v{qWA[t]} offset:{wb}")
            o.append(f"ds_read_b64_tr_b16 {vr(fs+4*t+2,2)}, v{qWA[t]} offset:{wb+1024}")
        o.append(f"ds_read_b128 {vr(fs+32)}, v{qX9[e]} offset:{xb}")
        return o
    def qstep(p,dma):
        cur=FA[p&1]; nxt=FA[(p&1)^1]
        if OPT['qst']:
            b("s_memtime s[90:91]")
            b("s_waitcnt lgkmcnt(0)")
            b(f"s_lshl_b32 s92, s{sIT}, 2")
            b(f"s_add_u32 s92, s92, {p}")
            b("s_mov_b32 m0, s92")
            b("s_sub_u32 s90, s90, s61")
            b("v_writelane_b32 v200, s90, m0")
        rd=qreads(p+1,nxt)
        mf=[]
        for i in range(4):
            for t in range(4): mf.append(mfma(O0+16*t+4*i,cur+4*i,cur+16+4*t,O0+16*t+4*i))
            if i<2: mf.append(mfma(O9+4*i,cur+4*i,cur+32,O9+4*i))
        ops=[]
        if dma:
            if p%2==1: ops+=xops((p>>1)&1)
            ops+=wops(p)
        pos={}
        n=len(ops)
        for idx in range(n): pos[7+idx*10//max(n,1)]=ops[idx]
        for idx,m in enumerate(mf):
            b(m)
            for r_ in rd[2*idx:2*idx+2]: b(r_)
            if idx in pos:
                for l in pos[idx]: b(l)
    if OPT['qtwice']:
        b("s_mov_b32 s95, 0")
        b.label("K1_QAGAIN")
        b("s_cmp_eq_u32 s95, 0")
        b("s_cbranch_scc1 K1_QFIRST")
        b("s_barrier")
        b("s_memtime s[62:63]")
        b("s_memrealtime s[60:61]")
        b("s_waitcnt lgkmcnt(0)")
        b(f"s_cmp_eq_u32 s{sW}, 3")
        b("s_cbranch_scc1 K1_QFIRST")
        emit_ops(xops(0)); emit_ops(wops(0)); emit_ops(wops(1))
        b.label("K1_QFIRST")
    b(f"s_cmp_eq_u32 s{sW}, 3")
    b("s_cbranch_scc1 K1_Q3")
    if not OPT['rot']:
        b("s_barrier")
        if OPT['fst']: stamp(b,2)
        emit_ops(xops(0)); emit_ops(wops(0)); emit_ops(wops(1)); emit_ops(xops(1)); emit_ops(wops(2)); emit_ops(wops(3))
    elif OPT['fst']: stamp(b,2)
    b("s_waitcnt vmcnt(3)")
    b("s_barrier")
    if OPT['fst']: stamp(b,3)
    for l in qreads(0,FA[0]): b(l)
    emit_ops(xops(1)); emit_ops(wops(2)); emit_ops(wops(3))
    b(f"s_mov_b32 s{sIT}, 0")
    if OPT['thr']:
        b(f"s_lshr_b32 s{sSEL}, s2, 8")
        b(f"s_mul_i32 s{sSEL}, s{sSEL}, {OPT['thr']}")
    b.label("K1_QLOOP")
    for p in range(4):
        b(f"s_waitcnt vmcnt({12 if p%2==0 else 6}) lgkmcnt(0)")
        if OPT['thr']:
            lt=b.new('TH')
            b(f"s_cmp_lt_u32 s{sIT}, s{sSEL}")
            b(f"s_cbranch_scc0 {lt}")
            b("s_waitcnt vmcnt(0)")
            b.label(lt)
        b("s_barrier")
        qstep(p,True)
    b(f"s_add_u32 s{sIT}, s{sIT}, 1")
    b(f"s_cmp_lt_u32 s{sIT}, 4")
    b("s_cbranch_scc1 K1_QLOOP")
    for p in range(4):
        b(f"s_waitcnt vmcnt({[12,3,0,0][p]}) lgkmcnt(0)")
        b("s_barrier")
        qstep(p,False)
    b("s_branch K1_QDONE")
    b.label("K1_Q3")
    if OPT['rot']:
        if OPT['fst']: stamp(b,2)
        b("s_barrier")
        if OPT['fst']: stamp(b,3)
        for l in qreads(0,FA[0]): b(l)
        b(f"s_mov_b32 s{sIT}, 0")
        b("s_branch K1_QLOOP3")
    b("s_cmp_lt_u32 s2, 256")
    b("s_cbranch_scc0 K1_Q3L")
    b(f"s_waitcnt vmcnt({8-OPT['tw']})")
    b("s_barrier")
    if OPT['fst']: stamp(b,2)
    k0load()
    kvtouch(OPT['kvpf'])
    b("s_branch K1_Q3J")
    b.label("K1_Q3L")
    b("s_waitcnt vmcnt(0)")
    b("s_barrier")
    if OPT['fst']: stamp(b,2)
    b.label("K1_Q3J")
    b("s_barrier")
    if OPT['fst']: stamp(b,3)
    for l in qreads(0,FA[0]): b(l)
    b(f"s_mov_b32 s{sIT}, 0")
    b.label("K1_QLOOP3")
    if OPT['rot']:
        l1=b.new('W3'); l2=b.new('W3')
        b(f"s_cmp_eq_u32 s{sIT}, {OPT['k0it']}")
        b(f"s_cbranch_scc0 {l1}")
        k0load()
        b.label(l1)
        b(f"s_cmp_eq_u32 s{sIT}, {OPT['kvit']}")
        b(f"s_cbranch_scc0 {l2}")
        b("s_cmp_lt_u32 s2, 256")
        b(f"s_cbranch_scc0 {l2}L")
        kvtouch(OPT['kvpf'])
        b(f"s_branch {l2}")
        b.label(l2+"L")
        kvtouch(OPT['kvpfl'])
        b.label(l2)
    for p in range(4):
        b(f"s_waitcnt lgkmcnt(0)")
        b("s_barrier")
        qstep(p,False)
    b(f"s_add_u32 s{sIT}, s{sIT}, 1")
    b(f"s_cmp_lt_u32 s{sIT}, 5")
    b("s_cbranch_scc1 K1_QLOOP3")
    b.label("K1_QDONE")
    if OPT['ldelay']:
        ls=b.new('LS')
        b("s_cmp_lt_u32 s2, 256")
        b(f"s_cbranch_scc0 {ls}")
        b(f"s_cmp_lg_u32 s{sW}, 3")
        b(f"s_cbranch_scc1 {ls}")
        b("s_waitcnt vmcnt(0)")
        b("v_add_u32 v199, 1, v199")
        b("v_mov_b32 v198, 0")
        b(f"buffer_store_dword v199, v198, s[28:31], s89 offen sc1")
        b.label(ls)
    if OPT['qtwice']:
        b("s_waitcnt vmcnt(0) lgkmcnt(0)")
        b("s_add_u32 s95, s95, 1")
        b("s_cmp_lt_u32 s95, 2")
        b("s_cbranch_scc1 K1_QAGAIN")
    if not OPT['fst']: stamp(b,1)
    if OPT['qponly']:
        b("s_waitcnt vmcnt(0)")
        if OPT['qst']:
            b(f"s_lshl_b32 s{sT}, s2, 2")
            b(f"s_add_u32 s{sT}, s{sT}, s{sW}")
            b(f"s_lshl_b32 s{sT}, s{sT}, 8")
            b(f"s_add_u32 s{sT}, s{sT}, {60<<20}")
            b(f"s_mov_b32 s{sO+2}, 0x10000000")
            b("v_lshlrev_b32 v3, 2, v0")
            b(f"buffer_store_dword v200, v3, {sr(sO)}, s{sT} offen")
        for i in ((4,) if OPT['fst'] else (2,3,4)): stamp(b,i)
        dump_stamps(b,10,sO,50<<20)
        b("s_endpgm")
    b("s_waitcnt vmcnt(0) lgkmcnt(0)")
    b("s_barrier")
    b(f"s_mov_b32 s{sSOFF}, 0")
    dma_slot(b,0)
    b(f"s_mov_b32 s{sSEL}, {f2u(CSC)}")
    b(f"""
v_lshlrev_b32 v3, 8, v1
v_and_b32 v76, 1, v2
v_lshl_add_u32 v3, v76, 3, v3
v_add_u32 v3, {QB}, v3
v_lshrrev_b32 v77, 1, v2
s_lshl_b32 s{sT2}, s{sQH}, 14
v_add_u32 v78, s{sT2}, v3
""")
    for i in range(4):
        b(f"""
s_lshl_b32 s{sIT}, s{sQH}, 1
s_add_u32 s{sIT}, s{sIT}, {i}
s_and_b32 s{sIT}, s{sIT}, 3
s_lshl_b32 s{sT2}, s{sDH}, 2
s_add_u32 s{sIT}, s{sIT}, s{sT2}
s_lshl_b32 s{sIT}, s{sIT}, 1
v_add_u32 v79, s{sIT}, v77
v_xor_b32 v79, v79, v1
v_lshlrev_b32 v79, 4, v79
v_add_u32 v80, v79, v78
""")
        for t in range(4):
            acc=O0+16*t+4*i
            for r in range(4): b(f"v_mul_f32 v{acc+r}, s{sSEL}, v{acc+r}")
            b(f"v_cvt_pk_bf16_f32 v{acc}, v{acc}, v{acc+1}")
            b(f"v_cvt_pk_bf16_f32 v{acc+1}, v{acc+2}, v{acc+3}")
            b(f"ds_write_b64 v80, {vr(acc,2)} offset:{t*4096}")
        if i<2:
            acc=O9+4*i
            b(f"v_add_u32 v82, v79, v3")
            for r in range(4): b(f"v_mul_f32 v{acc+r}, s{sSEL}, v{acc+r}")
            b(f"v_cvt_pk_bf16_f32 v{acc}, v{acc}, v{acc+1}")
            b(f"v_cvt_pk_bf16_f32 v{acc+1}, v{acc+2}, v{acc+3}")
            b(f"ds_write_b64 v82, {vr(acc,2)} offset:32768")
    for s in range(4):
        b(f"""
v_add_u32 v79, {4*s}, v2
v_xor_b32 v79, v79, v1
v_lshlrev_b32 v79, 4, v79
v_lshl_add_u32 v{KA[s]}, v1, 8, v79
""")
    b(f"s_lshl_b32 s{sT2}, s{sW}, 13")
    b(f"s_add_u32 s{sT2}, s{sT2}, {QB}")
    for s in range(4):
        b(f"v_add_u32 v{236+s}, s{sT2}, v{KA[s]}")
        b(f"v_add_u32 v{S1[1]+s}, {K0B}, v{KA[s]}")
    b("s_waitcnt lgkmcnt(0)")
    b("s_barrier")
    for s in range(4): b(f"ds_read_b128 {vr(Q0+4*s)}, v{236+s} offset:0")
    for s in range(4): b(f"ds_read_b128 {vr(Q1+4*s)}, v{236+s} offset:4096")
    for s in range(4): b(f"ds_read_b128 {vr(Q9+4*s)}, v{KA[s]} offset:{QB+32768}")
    b(f"""
v_bfe_u32 v3, v0, 2, 2
v_and_b32 v4, 1, v2
v_lshl_add_u32 v4, v4, 2, v3
v_lshl_add_u32 v5, v2, 2, v3
v_lshlrev_b32 v5, 8, v5
v_and_b32 v6, 3, v0
v_lshl_add_u32 v5, v6, 3, v5
v_add_u32 v5, 8192, v5
s_lshl_b32 s{sT}, s{sW}, 1
""")
    for i in range(8):
        b(f"""
s_add_u32 s{sT2}, s{sT}, {i}
s_and_b32 s{sT2}, s{sT2}, 7
v_xor_b32 v6, s{sT2}, v4
v_lshl_add_u32 v{VA[i]}, v6, 5, v5
""")
    b(f"""
v_lshlrev_b32 v{P9A}, 4, v0
v_add_u32 v{P9A}, {P9B}, v{P9A}
v_xor_b32 v{BP16}, 16, v0
v_lshlrev_b32 v{BP16}, 2, v{BP16}
""")
    for r in range(O0,O0+72): b(f"v_mov_b32 v{r}, 0")
    for r in L0+L1+L9: b(f"v_mov_b32 v{r}, 0")
    b("s_waitcnt lgkmcnt(0)")
    b(f"v_xor_b32 v{BP32}, 32, v0")
    b(f"v_lshlrev_b32 v{BP32}, 2, v{BP32}")
    b("s_barrier")
    if OPT['dbg_q']:
        b(f"""
s_mul_i32 s{sT}, s2, {4*12*1024}
s_mul_i32 s{sT2}, s{sW}, {12*1024}
s_add_u32 s{sT}, s{sT}, s{sT2}
v_lshlrev_b32 v3, 4, v0
s_mov_b32 s{sO+2}, 0x10000000
""")
        for f in range(12):
            b(f"buffer_store_dwordx4 {vr(Q0+4*f)}, v3, {sr(sO)}, s{sT} offen")
            b(f"s_add_u32 s{sT}, s{sT}, 1024")
        b("s_waitcnt vmcnt(0)")
        b("s_branch K1_END")
    LA=OPT['attla']
    for sl in range(1,LA):
        b(f"s_mov_b32 s{sSOFF}, {sl*8192}")
        dma_slot(b,sl)
    b(f"s_mov_b32 s{sSOFF}, {LA*8192}")
    pb=P()
    for kt in range(2):
        for s in range(4):
            kf=KF[(kt*4+s)%len(KF)]
            pb(f"ds_read_b128 {vr(kf)}, v{S1[1]+s} offset:{kt*4096}")
            for (Sx,Qx) in ((S0[0],Q0),(S1[0],Q1),(S9,Q9)):
                d=Sx+4*kt
                pb(mfma(d,kf,Qx+4*s,'0' if s==0 else d))
    o,ms,q=finish(pb.ins); b.add(o)
    TT=((S0[0],NM0),(S1[0],NM1),(S9,NM9))
    for (Sx,NM) in TT:
        b(f"""
v_max3_f32 v{NM}, v{Sx}, v{Sx+1}, v{Sx+2}
v_max3_f32 v{NM+2}, v{Sx+3}, v{Sx+4}, v{Sx+5}
v_max3_f32 v{NM}, v{NM}, v{Sx+6}, v{Sx+7}
v_max_f32 v{NM}, v{NM}, v{NM+2}
ds_bpermute_b32 v{NM+1}, v{BP16}, v{NM}
""")
    b("s_waitcnt lgkmcnt(0)")
    for (Sx,NM) in TT:
        b(f"v_max_f32 v{NM}, v{NM}, v{NM+1}")
        b(f"ds_bpermute_b32 v{NM+1}, v{BP32}, v{NM}")
    b("s_waitcnt lgkmcnt(0)")
    for (Sx,NM) in TT:
        b(f"""
v_max_f32 v{NM}, v{NM}, v{NM+1}
v_sub_f32 v{NM}, 0, v{NM}
v_mov_b32 v{NM+1}, v{NM}
v_mov_b32 v{NM+2}, v{NM}
v_mov_b32 v{NM+3}, v{NM}
""")
        for r in range(8): b(f"v_add_f32 v{Sx+r}, v{Sx+r}, v{NM}")
    def softmax_seq(S,L):
        for r in range(8): b(f"v_exp_f32 v{S+r}, v{S+r}")
        for r in range(8): b(f"v_add_f32 v{L[r&1]}, v{L[r&1]}, v{S+r}")
        for r in range(4): b(f"v_cvt_pk_bf16_f32 v{S+r}, v{S+2*r}, v{S+2*r+1}")
    softmax_seq(S0[0],L0)
    b(f"s_cmp_lg_u32 s{sW}, 0")
    b("s_cbranch_scc1 K1_NOP9")
    softmax_seq(S9,L9)
    b(f"ds_write_b128 v{P9A}, {vr(S9)} offset:0")
    b.label("K1_NOP9")
    b(f"s_mov_b32 s{sIT}, 0")
    if not OPT['prioatt']: b("s_setprio 0")
    if OPT['prioL']:
        b("s_cmp_lt_u32 s2, 256")
        b("s_cbranch_scc1 K1_PL")
        b(f"s_setprio {OPT['prioL']}")
        b.label("K1_PL")
    stamp(b,2)
    LA=OPT['attla']
    assert LA==3
    b("s_waitcnt vmcnt(10) lgkmcnt(0)")
    b("s_barrier")
    for s_ in range(4): b(f"ds_read_b128 {vr(KF[s_])}, v{KA[s_]} offset:0")
    bodies={}
    for p in range(4):
        for ver in ('plain','t9a','t9b')+(('final',) if p==3 else ()):
            if ver=='t9a' or ver=='t9b':
                pass
            o,ms=schedule(att_step(p,ver),lds_lat=OPT['ldslat'],lds_ahead=(OPT['lah'] if ver!='final' else 99),lds_per_gap=(OPT['lpg'] if ver!='final' else 9))
            if ver!='final' and not OPT['nodma']:
                o=place_macros(o,dma_macros(p,LA),dmpos(ver))
            if OPT['noexp']: o=[x for x in o if x.kind!='trans']
            if OPT['novalu']: o=[x for x in o if x.kind not in('trans','valu')]
            if OPT['nolds']: o=[x for x in o if x.kind not in('dsr','dsw')]
            o,q=insert_lgkm(o)
            bodies[(p,ver)]=o
            if p==0 or ver=='final': print(f"; step p={p} {ver}: est {ms} cycles, {len(o)} instrs",file=sys.stderr)
    b.label("K1_LOOP")
    b(f"s_cmp_eq_u32 s{sIT}, 7")
    b(f"s_cselect_b32 s{sLAST}, 1, 0")
    for p in range(4):
        d1=b.new('D'); d2=b.new('D')
        lastcnt=[6,4,2,0][p]
        if lastcnt==6:
            b(f"s_waitcnt vmcnt(6) lgkmcnt(0)")
            if not OPT['nobar']: b("s_barrier")
        else:
            if p!=0: b(f"s_cmp_eq_u32 s{sLAST}, 1")
            b(f"s_cbranch_scc1 K1_LW_{p}")
            b(f"s_waitcnt vmcnt(6) lgkmcnt(0)")
            if not OPT['nobar']: b("s_barrier")
            b.label(f"K1_LWB_{p}")
        if p==0 and OPT['wopf']:
            lw=b.new('WO')
            b(f"s_cmp_eq_u32 s{sIT}, {OPT['wotit']}")
            b(f"s_cbranch_scc0 {lw}")
            b(f"""
s_lshr_b32 s{sT}, s{sH}, 3
s_lshl_b32 s{sT}, s{sT}, 5
s_bfe_u32 s{sT2}, s2, 0x50003
s_add_u32 s{sT}, s{sT}, s{sT2}
s_mul_i32 s{sT}, s{sT}, 40960
s_add_u32 s80, s84, s{sT}
s_addc_u32 s81, s85, 0
s_mov_b32 s82, 40960
s_mov_b32 s83, 0x20000
v_lshlrev_b32 v3, 7, v0
s_lshl_b32 s{sT}, s{sW}, 13
buffer_load_dword v1, v3, s[80:83], s{sT} offen
s_mov_b32 s{sT}, 32768
buffer_load_dword v2, v3, s[80:83], s{sT} offen
""")
            b.label(lw)
        if OPT['ast']:
            b("s_memrealtime s[90:91]")
            b("s_waitcnt lgkmcnt(0)")
            b(f"s_lshl_b32 s92, s{sIT}, 2")
            b(f"s_add_u32 s92, s92, {p}")
            b("s_mov_b32 m0, s92")
            b("s_nop 1")
            b("v_writelane_b32 v237, s90, m0")
        wa=0 if p%2==0 else 2
        if not OPT['not9']:
            b(f"s_cmp_eq_u32 s{sW}, {wa}")
            b(f"s_cbranch_scc1 K1_T9A_{p}")
            b(f"s_cmp_eq_u32 s{sW}, {wa+1}")
            b(f"s_cbranch_scc1 K1_T9B_{p}")
        b.add(bodies[(p,'plain')])
        b.label(f"K1_NEXT_{p}")
    b(f"s_add_u32 s{sIT}, s{sIT}, 1")
    b("s_branch K1_LOOP")
    for p in range(4):
        b.label(f"K1_T9A_{p}")
        b.add(bodies[(p,'t9a')])
        b(f"s_branch K1_NEXT_{p}")
        b.label(f"K1_T9B_{p}")
        b.add(bodies[(p,'t9b')])
        b(f"s_branch K1_NEXT_{p}")
    for p in (1,2,3):
        b.label(f"K1_LW_{p}")
        b(f"s_waitcnt vmcnt({[6,4,2,0][p]}) lgkmcnt(0)")
        b("s_barrier")
        if p==3: b("s_branch K1_FINAL")
        else: b(f"s_branch K1_LWB_{p}")
    b.label("K1_FINAL")
    b.add(bodies[(3,'final')])
    b("s_waitcnt lgkmcnt(0)")
    stamp(b,3)
    if OPT['ast']:
        b(f"s_lshl_b32 s{sT}, s2, 2")
        b(f"s_add_u32 s{sT}, s{sT}, s{sW}")
        b(f"s_lshl_b32 s{sT}, s{sT}, 8")
        b(f"s_add_u32 s{sT}, s{sT}, {60<<20}")
        b(f"s_mov_b32 s{sO+2}, 0x10000000")
        b("v_lshlrev_b32 v3, 2, v0")
        b(f"buffer_store_dword v237, v3, {sr(sO)}, s{sT} offen")
        b(f"s_mov_b32 s{sO+2}, {O_BYTES}")
    LL=(L0,L1,L9)
    for L in LL:
        b(f"v_add_f32 v{L[0]}, v{L[0]}, v{L[1]}")
        b(f"ds_bpermute_b32 v{L[1]}, v{BP16}, v{L[0]}")
    b("s_waitcnt lgkmcnt(0)")
    for L in LL:
        b(f"v_add_f32 v{L[0]}, v{L[0]}, v{L[1]}")
        b(f"ds_bpermute_b32 v{L[1]}, v{BP32}, v{L[0]}")
    b("s_waitcnt lgkmcnt(0)")
    for L in LL: b(f"v_add_f32 v{L[0]}, v{L[0]}, v{L[1]}")
    b(f"""
s_lshl_b32 s{sT}, s{sW}, 8
v_lshlrev_b32 v3, 2, v0
v_add_u32 v3, {L9B}, v3
v_add_u32 v1, s{sT}, v3
ds_write_b32 v1, v{L9[0]}
v_rcp_f32 v{L0[0]}, v{L0[0]}
v_rcp_f32 v{L1[0]}, v{L1[0]}
s_waitcnt lgkmcnt(0)
s_barrier
ds_read_b32 v{S9}, v3
ds_read_b32 v{S9+1}, v3 offset:256
ds_read_b32 v{S9+2}, v3 offset:512
ds_read_b32 v{S9+3}, v3 offset:768
""")
    b(f"""
s_lshl_b32 s{sT}, s{sBR}, 3
s_add_u32 s{sT}, s{sT}, s{sB}
s_mul_i32 s{sT}, s{sT}, 9
s_lshl_b32 s{sT2}, s{sW}, 1
s_add_u32 s{sSEL}, s{sT}, s{sT2}
s_lshl_b32 s{sSEL}, s{sSEL}, 5
s_add_u32 s{sSEL}, s{sSEL}, s{sH}
s_lshl_b32 s{sSEL}, s{sSEL}, 12
s_add_u32 s{sT}, s{sT}, 8
s_lshl_b32 s{sT}, s{sT}, 5
s_add_u32 s{sT}, s{sT}, s{sH}
s_lshl_b32 s{sIT}, s{sT}, 12
v_lshlrev_b32 v3, 4, v0
""")
    def ostore(r):
        if OPT['dupst']==2:
            b(f"buffer_store_dwordx4 {vr(r)}, v3, {sr(sO)}, s{sLAST} offen")
        elif OPT['dupst']==3:
            b(f"buffer_store_dwordx4 {vr(r)}, v3, {sr(sO)}, s{sLAST} offen")
            b(f"buffer_store_dwordx4 {vr(r)}, v3, {sr(sO)}, s{sLAST} offen sc1")
        elif OPT['dupst']==4:
            b(f"buffer_store_dwordx4 {vr(r)}, v3, {sr(sO)}, s{sLAST} offen sc0 sc1")
        else:
            b(f"buffer_store_dwordx4 {vr(r)}, v3, {sr(sO)}, s{sLAST} offen sc1")
            if OPT['dupst']: b(f"buffer_store_dwordx4 {vr(r)}, v3, {sr(sO)}, s{sLAST} offen")
    def pack(acc,i,L):
        for r in range(8): b(f"v_mul_f32 v{acc+4*i+r}, v{acc+4*i+r}, v{L}")
        b(f"v_cvt_pk_bf16_f32 v{acc+4*i}, v{acc+4*i}, v{acc+4*i+1}")
        b(f"v_cvt_pk_bf16_f32 v{acc+4*i+1}, v{acc+4*i+2}, v{acc+4*i+3}")
        b(f"v_cvt_pk_bf16_f32 v{acc+4*i+2}, v{acc+4*i+4}, v{acc+4*i+5}")
        b(f"v_cvt_pk_bf16_f32 v{acc+4*i+3}, v{acc+4*i+6}, v{acc+4*i+7}")
    for i in (0,2,4,6):
        b(f"""
s_add_u32 s{sT2}, s{sW}, {i//2}
s_and_b32 s{sT2}, s{sT2}, 3
s_lshl_b32 s{sT2}, s{sT2}, 10
s_add_u32 s{sLAST}, s{sT2}, s{sSEL}
""")
        pack(O0,i,L0[0])
        ostore(O0+4*i)
        b(f"s_add_u32 s{sLAST}, s{sLAST}, {32*4096}")
        pack(O1,i,L1[0])
        ostore(O1+4*i)
    b(f"""
s_waitcnt lgkmcnt(0)
v_add_f32 v{S9}, v{S9}, v{S9+1}
v_add_f32 v{S9+2}, v{S9+2}, v{S9+3}
v_add_f32 v{L9[0]}, v{S9}, v{S9+2}
v_rcp_f32 v{L9[0]}, v{L9[0]}
s_lshl_b32 s{sT2}, s{sW}, 10
s_add_u32 s{sLAST}, s{sT2}, s{sIT}
""")
    pack(O9,0,L9[0])
    ostore(O9)
    sDBG=28
    b(f"""
s_mov_b32 s{sDBG}, s98
s_mov_b32 s{sDBG+1}, s99
s_mov_b32 s{sDBG+2}, 256
s_mov_b32 s{sDBG+3}, 0x20000
s_waitcnt vmcnt(0)
s_barrier
s_cmp_lg_u32 s{sW}, 0
s_cbranch_scc1 K1_SIG
s_lshl_b32 s{sT}, s{sBR}, 3
s_add_u32 s{sT}, s{sT}, s{sB}
s_lshl_b32 s{sT}, s{sT}, 2
s_add_u32 s{sT}, s{sT}, 128
s_lshl_b32 s{sT2}, 1, s{sH}
v_mov_b32 v4, s{sT2}
v_mov_b32 v5, 0
s_mov_b64 exec, 1
buffer_atomic_or v4, v5, {sr(sDBG)}, s{sT} offen sc1
s_mov_b64 exec, -1
""")
    b.label("K1_SIG")
    b.label("K1_OPONLY")
    stamp(b,4)
    if not OPT['opown']:
        b("s_cmp_lt_u32 s2, 256")
        b("s_cbranch_scc0 K1_FIN")
    if OPT['opmode']: op_phase(b)
    b.label("K1_FIN")
    if OPT['ost']:
        b(f"s_lshl_b32 s{sT}, s2, 2")
        b(f"s_add_u32 s{sT}, s{sT}, s{sW}")
        b(f"s_lshl_b32 s{sT}, s{sT}, 8")
        b(f"s_add_u32 s{sT}, s{sT}, {60<<20}")
        b(f"s_mov_b32 s{sO+2}, 0x10000000")
        b("v_lshlrev_b32 v3, 2, v0")
        b(f"buffer_store_dword v240, v3, {sr(sO)}, s{sT} offen")
    if OPT['stamps']:
        b("s_waitcnt vmcnt(0)")
        stamp(b,9)
        dump_stamps(b,10,sO,50<<20)
    b.label("K1_END")
    b("s_endpgm")
    ins,added=fix_hazards(b.ins)
    print(f"; k1: {len(ins)} instrs, {added} nop states added",file=sys.stderr)
    return ins

def op_phase(b):
    sWO=8; sOF=12; sPT=16; sOUT=20; sDBG=28
    sNT=45; sHQ=46; sBI=51; sB0=52; sB9=53; sWK2=54; sWM2=55; sBK=56; sITEM=57; sPOLL=58
    ACC0,ACC1,ACC9=4,24,44
    BF=64; AF=[160,180]
    WAd=[216,217,218,219,220]; DWO=[221,222,223,224,225]; VL=210; WAd2=[211,212,213,214,215]
    UNIT=20480
    bsc=' sc1' if OPT['bsc1'] else ''
    b(f"s_setprio 0")
    b(f"""
s_and_b32 s{sNT}, s{sH}, 7
s_lshr_b32 s{sHQ}, s{sH}, 3
v_and_b32 v1, 15, v0
v_lshrrev_b32 v2, 4, v0
v_lshlrev_b32 v{VL}, 4, v0
s_mov_b32 s{sT2}, {(1<<16)//10+1}
""")
    for e in range(5):
        b(f"""
v_add_u32 v3, {64*e}, v0
v_mul_u32_u24 v4, s{sT2}, v3
v_lshrrev_b32 v4, 16, v4
v_mul_u32_u24 v5, 10, v4
v_sub_u32 v5, v3, v5
v_mul_u32_u24 v4, 1280, v4
v_lshl_add_u32 v{DWO[e]}, v5, 4, v4
""")
        if 0<e<4: b(f"v_subrev_u32 v{DWO[e]}, {e*1024}, v{DWO[e]}")
    b(f"""
v_bfe_u32 v3, v0, 2, 2
v_lshl_add_u32 v3, v2, 2, v3
v_mul_u32_u24 v3, 160, v3
v_and_b32 v4, 3, v0
v_lshl_add_u32 v3, v4, 3, v3
""")
    for i in range(5):
        b(f"""
s_add_u32 s{sT}, s{sW}, {i}
s_cmp_ge_u32 s{sT}, 5
s_cselect_b32 s{sT2}, 5, 0
s_sub_u32 s{sT}, s{sT}, s{sT2}
s_mov_b32 s{33+i}, s{sT}
s_lshl_b32 s{sT}, s{sT}, 5
v_add_u32 v{WAd[i]}, s{sT}, v3
v_add_u32 v{WAd2[i]}, {2*24576}, v{WAd[i]}
""")
    b(f"""
s_mul_i32 s{sT}, s{sHQ}, {1024*1280}
s_mul_i32 s{sT2}, s{sNT}, 160
s_add_u32 s{sT}, s{sT}, s{sT2}
s_add_u32 s{sWO}, s84, s{sT}
s_addc_u32 s{sWO+1}, s85, 0
s_sub_u32 s{sWO+2}, 5242880, s{sT}
s_mov_b32 s{sWO+3}, 0x20000
s_mov_b32 s{sOF}, s40
s_mov_b32 s{sOF+1}, s41
s_mov_b32 s{sOF+2}, {O_BYTES}
s_mov_b32 s{sOF+3}, 0x20000
s_add_u32 s{sPT}, s40, {WS_PART}
s_addc_u32 s{sPT+1}, s41, 0
s_mov_b32 s{sPT+2}, {PART_BYTES}
s_mov_b32 s{sPT+3}, 0x20000
s_mov_b32 s{sOUT}, s96
s_mov_b32 s{sOUT+1}, s97
s_mov_b32 s{sOUT+2}, {8*144*1280*2}
s_mov_b32 s{sOUT+3}, 0x20000
s_mov_b32 s{sITEM}, 0
""")
    b.label("OP_ITEM")
    UN=24576
    b(f"""
s_lshl_b32 s{sBI}, s{sITEM}, {2 if not OPT['opown'] else 0}
{"s_add_u32 s%d, s%d, s%d"%(sBI,sBI,sB) if not OPT['opown'] else "s_mov_b32 s%d, s%d"%(sBI,sB)}
s_mul_i32 s{sWK2}, s{sW}, {32*1280}
s_mul_i32 s{sT}, s{sNT}, {128*1280}
s_add_u32 s{sWK2}, s{sWK2}, s{sT}
s_mul_i32 s{sWM2}, s{sW}, 5120
s_mul_i32 s{sBK}, s{sW}, {32*1280}
s_add_u32 s{sBK}, s{sBK}, {8*128*1280}
""")
    def wunit(slot):
        b(f"s_add_u32 m0, s{sWM2}, {slot*UN}")
        b("s_nop 0")
        for e in range(4):
            b(f"buffer_load_dwordx4 v{DWO[e]}, {sr(sWO)}, s{sWK2} offen offset:{e*1024} lds")
        b(f"s_add_u32 m0, m0, 4096")
        b(f"s_add_u32 s{sT}, s{sWK2}, {128*1280}")
        b(f"buffer_load_dwordx4 v{DWO[4]}, {sr(sWO)}, s{sWK2} offen lds")
        b(f"s_cmp_ge_u32 s{sT}, s{sBK}")
        b(f"s_cselect_b32 s{sT2}, {1024*1280}, 0")
        b(f"s_sub_u32 s{sWK2}, s{sT}, s{sT2}")
    s9K=59
    def t9unit(slot):
        b(f"s_lshl_b32 s{sT}, s{sW}, 10")
        b(f"s_add_u32 m0, s{sT}, {slot*UN+20480}")
        b(f"s_add_u32 s{sT2}, s{sB9}, s{s9K}")
        b(f"buffer_load_dwordx4 v{VL}, {sr(sOF)}, s{sT2} offen{bsc} lds")
        b(f"s_add_u32 s{s9K}, s{s9K}, 4096")
        b(f"s_and_b32 s{s9K}, s{s9K}, 32767")
    b("s_barrier")
    LB=OPT['oplb']; LW=OPT['oplw']
    for u_ in range(LW): wunit(u_)
    for r in range(4,56): b(f"v_mov_b32 v{r}, 0")
    if OPT['oponly']: b("s_branch OP_WAITED")
    b(f"s_cmp_lg_u32 s{sW}, 0")
    b("s_cbranch_scc1 OP_WAITED")
    b(f"""
s_lshl_b32 s{sT}, s{sBR}, 3
s_add_u32 s{sT}, s{sT}, s{sBI}
s_lshl_b32 s{sT}, s{sT}, 2
s_add_u32 s{sT}, s{sT}, 128
s_lshl_b32 s{sLAST}, s{sHQ}, 3
s_mov_b32 s{sPOLL}, 0
v_mov_b32 v61, 0
s_mov_b64 exec, 1
""")
    b.label("OP_POLL")
    b(f"""
{"buffer_load_dword v60, v61, "+sr(sDBG)+f", s{sT} offen sc1" if OPT['pollld'] else "v_mov_b32 v60, 0"+chr(10)+"buffer_atomic_or v60, v61, "+sr(sDBG)+f", s{sT} offen sc0 sc1"}
s_waitcnt vmcnt(0)
v_readfirstlane_b32 s{sT2}, v60
s_lshr_b32 s{sT2}, s{sT2}, s{sLAST}
s_and_b32 s{sT2}, s{sT2}, 255
s_cmp_eq_u32 s{sT2}, 255
s_cbranch_scc1 OP_POLLED
s_add_u32 s{sPOLL}, s{sPOLL}, 1
s_cmp_lt_u32 s{sPOLL}, 200000
s_cbranch_scc0 OP_POLLED
s_sleep {OPT['psleep']}
s_branch OP_POLL
""")
    b.label("OP_POLLED")
    b("s_mov_b64 exec, -1")
    b.label("OP_WAITED")
    b("s_barrier")
    if OPT['stamps']:
        l=b.new('ST'); b(f"s_cmp_eq_u32 s{sITEM}, 0"); b(f"s_cbranch_scc0 {l}a"); stamp(b,5); b(f"s_branch {l}b"); b.label(l+'a'); stamp(b,7); b.label(l+'b')
    b(f"""
s_lshl_b32 s{sT}, s{sBR}, 3
s_add_u32 s{sT}, s{sT}, s{sBI}
s_mul_i32 s{sT}, s{sT}, 9
s_lshl_b32 s{sT2}, s{sW}, 1
s_add_u32 s{sB0}, s{sT}, s{sT2}
s_lshl_b32 s{sB0}, s{sB0}, 17
s_add_u32 s{sB9}, s{sT}, 8
s_lshl_b32 s{sB9}, s{sB9}, 17
s_lshl_b32 s{sT}, s{sHQ}, 15
s_add_u32 s{sB0}, s{sB0}, s{sT}
s_add_u32 s{sB9}, s{sB9}, s{sT}
s_lshl_b32 s{sSEL}, s{sNT}, 12
s_lshl_b32 s{sT}, s{sW}, 10
s_add_u32 s{s9K}, s{sSEL}, s{sT}
s_add_u32 s{sPOLL}, s{sB0}, {32*4096}
""")
    def bload(kk):
        r=BF+8*(kk%8)
        return [f"s_add_u32 s{sT}, s{sB0}, s{sSEL}",
                f"s_add_u32 s{sT2}, s{sPOLL}, s{sSEL}",
                f"buffer_load_dwordx4 {vr(r)}, v{VL}, {sr(sOF)}, s{sT} offen{bsc}",
                f"buffer_load_dwordx4 {vr(r+4)}, v{VL}, {sr(sOF)}, s{sT2} offen{bsc}",
                f"s_add_u32 s{sSEL}, s{sSEL}, 1024",
                f"s_and_b32 s{sSEL}, s{sSEL}, 32767"]
    for u_ in range(LW): t9unit(u_)
    for kk in range(LB):
        for l in bload(kk): b(l)
    V9=226
    b(f"v_add_u32 v{V9}, 20480, v{VL}")
    b(f"v_add_u32 v{V9+1}, {2*UN}, v{V9}")
    B9F=[228,232]
    def areads(slot,ks,fs,b9):
        off=(slot*UN if slot<2 else 0)
        WW=WAd if slot<2 else WAd2
        o=[f"ds_read_b128 {vr(b9)}, v{V9 if slot<2 else V9+1} offset:{off+ks*1024}"]
        for i in range(5):
            o.append(f"ds_read_b64_tr_b16 {vr(fs+4*i,2)}, v{WW[i]} offset:{off+ks*5120}")
            o.append(f"ds_read_b64_tr_b16 {vr(fs+4*i+2,2)}, v{WW[i]} offset:{off+ks*5120+2560}")
        return o
    q=[]
    for u_ in range(LW): q+=[('W',u_)]*5
    for u_ in range(LW): q+=[('T',u_)]
    for k in range(LB): q+=[('B',k)]*2
    def after(tag):
        idx=max(i for i,t in enumerate(q) if t==tag)
        return len(q)-1-idx
    for UU in range(8):
        u=UU%3
        wb=min(after(('W',UU)),after(('T',UU)),after(('B',4*UU)))
        b(f"s_waitcnt vmcnt({wb})")
        b("s_barrier")
        if OPT['ost']:
            b("s_memtime s[90:91]")
            b("s_waitcnt lgkmcnt(0)")
            b(f"s_lshl_b32 s92, s{sITEM}, 4")
            b(f"s_add_u32 s92, s92, {UU}")
            b("s_mov_b32 m0, s92")
            b("s_nop 1")
            b("v_writelane_b32 v240, s90, m0")
        rd=areads(u,0,AF[0],B9F[0])
        for l in rd: b(l)
        if UU+LW<8 and not OPT['opnow']:
            wunit((UU+LW)%3); t9unit((UU+LW)%3)
            q+=[('W',UU+LW)]*5+[('T',UU+LW)]
        pend=[I(l) for l in rd]
        for ks in range(4):
            kk=4*UU+ks
            fs=AF[ks&1]; b9=B9F[ks&1]
            b(f"s_waitcnt vmcnt({after(('B',kk))})")
            r=BF+8*(kk%8)
            mm=[]
            for i in range(5):
                mm.append(mfma(ACC0+4*i,fs+4*i,r,ACC0+4*i))
                mm.append(mfma(ACC1+4*i,fs+4*i,r+4,ACC1+4*i))
                if i==0: mm.append(mfma(ACC9,fs,b9,ACC9))
                if i==4: mm.append(mfma(ACC9+4,fs+16,b9,ACC9+4))
            nxt=areads(u,ks+1,AF[(ks+1)&1],B9F[(ks+1)&1]) if ks<3 else []
            seq=[]
            for idx,m in enumerate(mm):
                seq.append(I(m))
                if idx<len(nxt): seq.append(I(nxt[idx]))
            if kk+LB<32 and not OPT['opnob']:
                bl=bload(kk+LB); q+=[('B',kk+LB)]*2
                if LB<8:
                    pos=len(seq)//2
                    seq=seq[:pos]+[I(x) for x in bl]+seq[pos:]
                else: seq+= [I(x) for x in bl]
            o,pend=insert_lgkm(seq,pending=pend)
            b.add(o)
    if OPT['stamps']:
        l=b.new('ST'); b(f"s_cmp_eq_u32 s{sITEM}, {0 if OPT['opown'] else 1}"); b(f"s_cbranch_scc0 {l}b"); stamp(b,8); b.label(l+'b')
    if OPT['ost']:
        b("s_memtime s[90:91]")
        b("s_waitcnt lgkmcnt(0)")
        b(f"s_lshl_b32 s92, s{sITEM}, 4")
        b(f"s_add_u32 s92, s92, 8")
        b("s_mov_b32 m0, s92")
        b("s_nop 1")
        b("v_writelane_b32 v240, s90, m0")
    b(f"""
s_lshl_b32 s{sT}, s{sBR}, 3
s_add_u32 s{sT}, s{sT}, s{sBI}
s_lshl_b32 s{sT}, s{sT}, 3
s_add_u32 s{sSEL}, s{sT}, s{sNT}
s_mul_i32 s{sB0}, s{sSEL}, {4*45*1024}
s_mul_i32 s{sT}, s{sHQ}, {45*1024}
s_add_u32 s{sB9}, s{sB0}, s{sT}
s_mul_i32 s{sBK}, s{sW}, {2*5*1024}
s_nop 7
""")
    tiles=[]
    for i in range(5):
        tiles.append((ACC0+4*i,0,i)); tiles.append((ACC1+4*i,5*1024,i))
    def toff(extra,i,dst):
        b(f"s_lshl_b32 s{dst}, s{33+i}, 10")
        b(f"s_add_u32 s{dst}, s{dst}, s{sBK}")
        if extra: b(f"s_add_u32 s{dst}, s{dst}, {extra}")
    for (acc,extra,i) in tiles:
        toff(extra,i,sT)
        b(f"s_add_u32 s{sT}, s{sT}, s{sB9}")
        if not OPT['opnop']: b(f"buffer_store_dwordx4 {vr(acc)}, v{VL}, {sr(sPT)}, s{sT} offen sc1")
    b(f"s_lshl_b32 s{sT}, s33, 10")
    b(f"s_add_u32 s{sT}, s{sT}, {40*1024}")
    b(f"s_add_u32 s{sT}, s{sT}, s{sB9}")
    b(f"buffer_store_dwordx4 {vr(ACC9)}, v{VL}, {sr(sPT)}, s{sT} offen sc1")
    b(f"s_cmp_lg_u32 s{sW}, 0")
    b("s_cbranch_scc1 OP_P1")
    b(f"s_add_u32 s{sT}, s{sB9}, {44*1024}")
    b(f"buffer_store_dwordx4 {vr(ACC9+4)}, v{VL}, {sr(sPT)}, s{sT} offen sc1")
    b.label("OP_P1")
    b("s_waitcnt vmcnt(0)")
    b("s_barrier")
    if OPT['dred']:
        b(f"s_cmp_lg_u32 s{sW}, 0")
        b("s_cbranch_scc1 OP_P2")
        b(f"""
s_and_b32 s{sLAST}, s{sSEL}, 3
s_lshl_b32 s{sLAST}, s{sLAST}, 3
s_lshl_b32 s{sT2}, 1, s{sLAST}
v_mov_b32 v60, s{sT2}
s_lshr_b32 s{sT2}, s{sSEL}, 2
s_lshl_b32 s{sT2}, s{sT2}, 2
v_mov_b32 v61, 0
s_mov_b64 exec, 1
buffer_atomic_add v60, v61, {sr(sDBG)}, s{sT2} offen sc0 sc1
s_mov_b32 s{sPOLL}, 0
s_waitcnt vmcnt(0)
v_readfirstlane_b32 s{sT}, v60
s_lshr_b32 s{sT}, s{sT}, s{sLAST}
s_and_b32 s{sT}, s{sT}, 255
s_cmp_eq_u32 s{sT}, 3
s_cbranch_scc1 OP_RPOLLED
""")
        b.label("OP_RPOLL")
        b(f"""
s_sleep {OPT['rsleep']}
v_mov_b32 v60, 0
buffer_atomic_or v60, v61, {sr(sDBG)}, s{sT2} offen sc0 sc1
s_waitcnt vmcnt(0)
v_readfirstlane_b32 s{sT}, v60
s_lshr_b32 s{sT}, s{sT}, s{sLAST}
s_and_b32 s{sT}, s{sT}, 255
s_cmp_eq_u32 s{sT}, 4
s_cbranch_scc1 OP_RPOLLED
s_add_u32 s{sPOLL}, s{sPOLL}, 1
s_cmp_lt_u32 s{sPOLL}, 200000
s_cbranch_scc1 OP_RPOLL
""")
        b.label("OP_RPOLLED")
        b("s_mov_b64 exec, -1")
        b.label("OP_P2")
        b("s_barrier")
        LD=64
        b(f"s_lshl_b32 s{sWK2}, s{sHQ}, 2")
        b(f"s_add_u32 s{sWK2}, s{sWK2}, s{sW}")
        for j in range(3):
            b(f"s_add_u32 s{sT}, s{sWK2}, {16*j}")
            b(f"s_min_u32 s{sT}, s{sT}, 44")
            b(f"s_lshl_b32 s{sT}, s{sT}, 10")
            b(f"s_add_u32 s{sT}, s{sT}, s{sB0}")
            for d in range(4):
                b(f"buffer_load_dwordx4 {vr(LD+16*j+4*d)}, v{VL}, {sr(sPT)}, s{sT} offen sc1")
                if d<3: b(f"s_add_u32 s{sT}, s{sT}, {45*1024}")
        b(f"""
s_mul_i32 s{sLAST}, s{sBI}, 144
v_add_u32 v3, s{sLAST}, v1
v_mul_u32_u24 v3, 2560, v3
v_lshl_add_u32 v3, v2, 3, v3
s_mul_i32 s{sLAST}, s{sBR}, 1280
s_mul_i32 s{sT2}, s{sNT}, 160
s_add_u32 s{sLAST}, s{sLAST}, s{sT2}
""")
        for j in range(3):
            r=LD+16*j
            b(f"s_waitcnt vmcnt({4*(2-j)+j})")
            for rr in range(4):
                b(f"v_add_f32 v{r+rr}, v{r+rr}, v{r+4+rr}")
                b(f"v_add_f32 v{r+8+rr}, v{r+8+rr}, v{r+12+rr}")
            for rr in range(4): b(f"v_add_f32 v{r+rr}, v{r+rr}, v{r+8+rr}")
            b(f"v_cvt_pk_bf16_f32 v{r}, v{r}, v{r+1}")
            b(f"v_cvt_pk_bf16_f32 v{r+1}, v{r+2}, v{r+3}")
            b(f"s_add_u32 s{sT}, s{sWK2}, {16*j}")
            if j==2:
                b(f"s_cmp_ge_u32 s{sT}, 45")
                b("s_cbranch_scc1 OP_DONE")
            b(f"s_mul_i32 s{sT2}, s{sT}, 52429")
            b(f"s_lshr_b32 s{sT2}, s{sT2}, 18")
            b(f"s_mul_i32 s{sIT}, s{sT2}, 5")
            b(f"s_sub_u32 s{sT}, s{sT}, s{sIT}")
            b(f"s_lshl_b32 s{sT}, s{sT}, 5")
            b(f"s_mul_i32 s{sT2}, s{sT2}, {16*2560}")
            b(f"s_add_u32 s{sT}, s{sT}, s{sT2}")
            b(f"s_add_u32 s{sT}, s{sT}, s{sLAST}")
            b(f"buffer_store_dwordx2 {vr(r,2)}, v3, {sr(sOUT)}, s{sT} offen")
        b.label("OP_DONE")
        if OPT['stamps']: stamp(b,6)
        return
    b(f"s_cmp_lg_u32 s{sW}, 0")
    b("s_cbranch_scc1 OP_P2")
    b(f"""
s_and_b32 s{sT}, s{sSEL}, 3
s_lshl_b32 s{sT}, s{sT}, 3
s_lshl_b32 s{sT2}, 1, s{sT}
v_mov_b32 v60, s{sT2}
s_lshr_b32 s{sT2}, s{sSEL}, 2
s_lshl_b32 s{sT2}, s{sT2}, 2
v_mov_b32 v61, 0
s_mov_b64 exec, 1
buffer_atomic_add v60, v61, {sr(sDBG)}, s{sT2} offen sc0 sc1
s_waitcnt vmcnt(0)
v_lshrrev_b32 v60, s{sT}, v60
v_and_b32 v60, 255, v60
ds_write_b32 v61, v60
s_waitcnt lgkmcnt(0)
s_mov_b64 exec, -1
""")
    b.label("OP_P2")
    b("s_barrier")
    b("""
v_mov_b32 v61, 0
ds_read_b32 v60, v61
s_waitcnt lgkmcnt(0)
""")
    b(f"v_readfirstlane_b32 s{sT}, v60")
    b(f"s_cmp_eq_u32 s{sT}, 3")
    b("s_cbranch_scc0 OP_DONE")
    LD=64
    def addparts(acc,offs_dst):
        for d in range(1,4):
            b(f"s_add_u32 s{sIT}, s{sHQ}, {d}")
            b(f"s_and_b32 s{sIT}, s{sIT}, 3")
            b(f"s_mul_i32 s{sIT}, s{sIT}, {45*1024}")
            b(f"s_add_u32 s{sIT}, s{sIT}, s{sB0}")
            b(f"s_add_u32 s{sIT}, s{sIT}, s{offs_dst}")
            b(f"buffer_load_dwordx4 {vr(acc+4*(d-1))}, v{VL}, {sr(sPT)}, s{sIT} offen sc1")
    k=0; ldmap=[]
    for (acc,extra,i) in tiles:
        toff(extra,i,sT)
        addparts(LD+12*k,sT); ldmap.append((acc,LD+12*k)); k+=1
    b(f"s_lshl_b32 s{sT}, s33, 10")
    b(f"s_add_u32 s{sT}, s{sT}, {40*1024}")
    addparts(LD+12*k,sT); ldmap.append((ACC9,LD+12*k)); k+=1
    b(f"s_mov_b32 s{sT}, {44*1024}")
    addparts(LD+12*k,sT); ldmap.append((ACC9+4,LD+12*k)); k+=1
    b(f"""
s_mul_i32 s{sLAST}, s{sBI}, 144
v_add_u32 v3, s{sLAST}, v1
v_mul_u32_u24 v3, 2560, v3
v_lshl_add_u32 v3, v2, 3, v3
s_mul_i32 s{sLAST}, s{sBR}, 1280
s_mul_i32 s{sT2}, s{sNT}, 160
s_add_u32 s{sLAST}, s{sLAST}, s{sT2}
s_waitcnt vmcnt(0)
""")
    for idx,(acc,ld) in enumerate(ldmap):
        for d in range(3):
            for r in range(4): b(f"v_add_f32 v{acc+r}, v{acc+r}, v{ld+4*d+r}")
        b(f"v_cvt_pk_bf16_f32 v{acc}, v{acc}, v{acc+1}")
        b(f"v_cvt_pk_bf16_f32 v{acc+1}, v{acc+2}, v{acc+3}")
        if idx<10:
            (a2,extra,i)=tiles[idx]
            b(f"s_lshl_b32 s{sT}, s{sW}, 1")
            if extra: b(f"s_add_u32 s{sT}, s{sT}, 1")
            b(f"s_mul_i32 s{sT}, s{sT}, {16*2560}")
            b(f"s_lshl_b32 s{sT2}, s{33+i}, 5")
        elif idx==10:
            b(f"s_mov_b32 s{sT}, {128*2560}")
            b(f"s_lshl_b32 s{sT2}, s33, 5")
        else:
            b(f"s_cmp_lg_u32 s{sW}, 0")
            b("s_cbranch_scc1 OP_DONE")
            b(f"s_mov_b32 s{sT}, {128*2560}")
            b(f"s_mov_b32 s{sT2}, {4*32}")
        b(f"s_add_u32 s{sT}, s{sT}, s{sT2}")
        b(f"s_add_u32 s{sT}, s{sT}, s{sLAST}")
        b(f"buffer_store_dwordx2 {vr(acc,2)}, v3, {sr(sOUT)}, s{sT} offen")
    b.label("OP_DONE")
    if OPT['stamps']:
        l=b.new('ST'); b(f"s_cmp_eq_u32 s{sITEM}, 0"); b(f"s_cbranch_scc0 {l}b"); stamp(b,6); b.label(l+'b')
    b(f"s_add_u32 s{sITEM}, s{sITEM}, 1")
    if not OPT['opown'] or OPT['oponly']:
        b(f"s_cmp_lt_u32 s{sITEM}, {OPT['opmode']}")
        b("s_cbranch_scc1 OP_ITEM")

def emit(name,ins):
    s=f".globl {name}\n.p2align 8\n.type {name},@function\n{name}:\n"
    for i in ins:
        s+= (i.text+'\n') if i.kind=='label' else ('    '+i.text+'\n')
    return s
def desc(name,vgpr=256,sgpr=102):
    return f""".amdhsa_kernel {name}
  .amdhsa_next_free_vgpr {vgpr}
  .amdhsa_next_free_sgpr {sgpr}
  .amdhsa_accum_offset {(vgpr+3)//4*4}
  .amdhsa_group_segment_fixed_size 0
  .amdhsa_kernarg_size 104
  .amdhsa_user_sgpr_count 2
  .amdhsa_user_sgpr_kernarg_segment_ptr 1
  .amdhsa_system_sgpr_workgroup_id_x 1
.end_amdhsa_kernel
"""
if __name__=='__main__':
    outp=sys.argv[1]
    for a in sys.argv[2:]:
        k,v=a.split('='); OPT[k]=int(v)
    k1=gen_k1()
    txt="; @launch grid=(512,1,1) block=(256,1,1) lds=81920\n"
    txt+='.amdgcn_target "amdgcn-amd-amdhsa--gfx950"\n.text\n'
    txt+=emit(NAME,k1)
    txt+='.section .rodata,"a"\n.p2align 6\n'+desc(NAME)
    open(outp,'w').write(txt)
```

```python
import sys, math, struct
from isa import *
NAME='concat_heads__mha_block_cached__gqa_block_cached__near_ridge_kernel'
OPT=dict(force_slow=0, dbg_q=0, stamps=0, qponly=0, qst=0, wxpf=1, kvpf=1, prio=2, k1only=0, k2only=0, fst=0, tw=2, tnt=1, kvpfl=1, rot=1,  dred=1, rsleep=32, lah=99, lpg=9, dmmode=0, dmo1=3, dmo2=5, ast=0, ost=0, opnobr=0, opnolds=0, oponly=0, opown=1, thr=0, ldelay=0, dsleep=16, dmax=24, nodma=0, nobar=0, noexp=0, novalu=0, nolds=0, not9=0, ldslat=140, dmk=3, dmv=9, lateexit=0, samekv=0, prioL=0, opmode=2, opnob=0, opnow=0, opnop=0, oplb=4, oplw=2, attla=3, wopf=1, wotit=5, pollld=0, psleep=64, dupst=1, bsc1=1, qtwice=0, prioatt=0, k0it=1, kvit=2, nok0=0)
class P:
    def __init__(s): s.ins=[]; s.n=0
    def __call__(s,text,**kw):
        for l in text.strip('\n').split('\n'):
            l=l.strip()
            if l and not l.startswith(';'): s.ins.append(I(l,**kw))
    def add(s,lst): s.ins+=lst
    def label(s,name): s.ins.append(I(name+':'))
    CNT=[0]
    def new(s,p='L'):
        P.CNT[0]+=1; return f'{p}_{P.CNT[0]}'
def vr(a,n=4): return f"v[{a}:{a+n-1}]"
def sr(a,n=4): return f"s[{a}:{a+n-1}]"
def mfma(d,a,b,c):
    cs=c if isinstance(c,str) else vr(c)
    return f"v_mfma_f32_16x16x32_bf16 {vr(d)}, {vr(a)}, {vr(b)}, {cs}"
def f2u(f): return struct.unpack('<I',struct.pack('<f',f))[0]
CSC=math.log2(math.e)/math.sqrt(128.0)

O0,O1,O9=4,36,68
Q0,Q1,Q9=76,92,108
NM0,NM1,NM9=124,128,132
S0=[136,144]; S1=[152,160]; S9=168
KF=[176,180,184,188,240,244]; VF=[192,196,200,204,248,252]; P9F=208
L0=[212,213]; L1=[214,215]; L9=[216,217]
KA=[218,219,220,221]; VA=list(range(222,230))
DK=[230,231]; DV=[232,233]; P9A=234; BP16=235; BP32=236
sW=4; sH=5; sB=6; sBR=7
sK=8; sV=12; sWQ=16; sX=20; sO=24
sIT=42; sSOFF=43; sM0=44; sT=47; sT2=48; sSEL=49; sLAST=50
sXK=51; sWK=52; sQH=55; sDH=56; sXM=57; sXS=58; sWM=53
SLOT=16384
XS=[0,18432]; WB=36864; K0B=69632; P9B=77824; L9B=79872; QB=16384
WS_O=0; WS_PART=20<<20; O_BYTES=18874368; PART_BYTES=512*45*1024

def finish(body,**kw):
    o,ms=schedule(body,**kw)
    o,q=insert_lgkm(o)
    return o,ms,q
def stamp(b,idx):
    if OPT['stamps']:
        b(f"s_memrealtime s[92:93]")
        b(f"s_memtime s[94:95]")
        b("s_waitcnt lgkmcnt(0)")
        b(f"s_mov_b32 s{60+2*idx}, s92")
        b(f"s_mov_b32 s{61+2*idx}, s94")
def dump_stamps(b,n,srd,base):
    if OPT['stamps']:
        b(f"s_lshl_b32 s{sT}, s2, 2")
        b(f"s_add_u32 s{sT}, s{sT}, s{sW}")
        b(f"s_lshl_b32 s{sT}, s{sT}, 7")
        b(f"s_add_u32 s{sT}, s{sT}, {base}")
        b(f"s_mov_b32 s{srd+2}, 0x10000000")
        for i in range(n):
            b(f"v_mov_b32 v{2*i+4}, s{60+2*i}")
            b(f"v_mov_b32 v{2*i+5}, s{61+2*i}")
        b("v_mov_b32 v3, 0")
        b("s_mov_b64 exec, 1")
        for i in range(n):
            b(f"buffer_store_dwordx2 v[{2*i+4}:{2*i+5}], v3, s[{srd}:{srd+3}], s{sT} offen offset:{8*i}")
        b("s_waitcnt vmcnt(0)")

def att_step(p,ver):
    cur=p&1; nxt=cur^1; slot=p*SLOT; nslot=((p+1)%4)*SLOT
    b=P()
    b(f"ds_read_b128 {vr(P9F)}, v{P9A} offset:{cur*1024}")
    t9kt={'t9a':0,'t9b':1}.get(ver,None)
    if ver!='final':
        bufs={(0,0):KF[0],(0,1):KF[1],(0,2):KF[2],(0,3):KF[3],(1,0):KF[4],(1,1):KF[5],(1,2):KF[0],(1,3):KF[1]}
        b(f"ds_read_b128 {vr(KF[4])}, v{KA[0]} offset:{slot+4096}")
        b(f"ds_read_b128 {vr(KF[5])}, v{KA[1]} offset:{slot+4096}")
        for kt in range(2):
            for s in range(4):
                kf=bufs[(kt,s)]
                if kt==1 and s>=2:
                    b(f"ds_read_b128 {vr(kf)}, v{KA[s]} offset:{slot+4096}")
                lst=[(S0[nxt]+4*kt,Q0,NM0),(S1[nxt]+4*kt,Q1,NM1)]
                if t9kt==kt: lst.append((S9,Q9,NM9))
                for (d,Qx,NM) in lst:
                    b(mfma(d,kf,Qx+4*s, NM if s==0 else d))
    def softmax(S,L,n=8):
        for r in range(n): b(f"v_exp_f32 v{S+r}, v{S+r}")
        for r in range(n): b(f"v_add_f32 v{L[r&1]}, v{L[r&1]}, v{S+r}")
        for r in range(n//2): b(f"v_cvt_pk_bf16_f32 v{S+r}, v{S+2*r}, v{S+2*r+1}")
    softmax(S1[cur],L1)
    if t9kt is not None:
        softmax(S9,L9,4)
        b(f"ds_write_b64 v{P9A}, {vr(S9,2)} offset:{nxt*1024+8*t9kt}")
    for i in range(8):
        vf=VF[i%len(VF)]
        b(f"ds_read_b64_tr_b16 {vr(vf,2)}, v{VA[i]} offset:{slot}")
        b(f"ds_read_b64_tr_b16 {vr(vf+2,2)}, v{VA[i]} offset:{slot+4096}")
        b(mfma(O0+4*i,vf,S0[cur],O0+4*i))
        b(mfma(O1+4*i,vf,S1[cur],O1+4*i))
        if i<2: b(mfma(O9+4*i,vf,P9F,O9+4*i))
    if ver!='final':
        softmax(S0[nxt],L0)
        for s in range(4):
            b(f"ds_read_b128 {vr(KF[s])}, v{KA[s]} offset:{nslot}")
    return b.ins

def dma_macros(p,LA):
    P_=P()
    slotpos=(p+LA)%4
    jl=28+p; tgt=jl+LA
    out=[]
    for part,e_ in (('K',0),('K',1),('V',0),('V',1)):
        skip_last = (tgt>=31) if part=='K' else (tgt>=32)
        m=[]
        lab=P_.new('DM')
        if skip_last:
            m.append(I(f"s_cmp_eq_u32 s{sLAST}, 1"))
            m.append(I(f"s_cbranch_scc1 {lab}"))
        off=" offset:1024" if e_ else ""
        if part=='K':
            body=[f"s_add_u32 m0, s{sM0}, {slotpos*SLOT}", f"s_add_u32 s{sT}, s{sSOFF}, 8192",
                   f"buffer_load_dwordx4 v{DK[e_]}, {sr(sK)}, s{sT} offen{off} nt lds"]
        else:
            body=[f"s_add_u32 m0, s{sM0}, {slotpos*SLOT+8192}", "s_nop 0",
                   f"buffer_load_dwordx4 v{DV[e_]}, {sr(sV)}, s{sSOFF} offen{off} nt lds"]
            if e_==1: body.append(f"s_add_u32 s{sSOFF}, s{sSOFF}, 8192")
        for l in body:
            i=I(l); i.skip=skip_last; m.append(i)
        if skip_last: m.append(I(lab+':'))
        out.append(m)
    return out

def dmpos(ver):
    m=OPT['dmmode']
    if m==0: return [3,4,9,10] if False else [3,3.5,9,9.5]
    off={'plain':0,'t9a':OPT['dmo1'],'t9b':OPT['dmo2']}[ver]
    return [x+off for x in {1:[2,10,18,26],2:[1,5,9,13],3:[16,20,24,28]}[m]]
def place_macros(o,macros,positions):
    res=[]; n=0; todo=sorted(zip(positions,range(len(macros))))
    for i in o:
        res.append(i)
        if i.kind=='mfma':
            n+=1
            while todo and int(todo[0][0])<=n: res+=macros[todo.pop(0)[1]]
    for _,k in todo: res+=macros[k]
    return res

def dma_slot(b,slotpos,kpart=True,vpart=True):
    if kpart:
        b(f"s_add_u32 m0, s{sM0}, {slotpos*SLOT}")
        b(f"s_add_u32 s{sT}, s{sSOFF}, 8192")
        b(f"buffer_load_dwordx4 v{DK[0]}, {sr(sK)}, s{sT} offen nt lds")
        b(f"buffer_load_dwordx4 v{DK[1]}, {sr(sK)}, s{sT} offen offset:1024 nt lds")
    if vpart:
        b(f"s_add_u32 m0, s{sM0}, {slotpos*SLOT+8192}")
        b(f"s_nop 0")
        b(f"buffer_load_dwordx4 v{DV[0]}, {sr(sV)}, s{sSOFF} offen nt lds")
        b(f"buffer_load_dwordx4 v{DV[1]}, {sr(sV)}, s{sSOFF} offen offset:1024 nt lds")

def decode_ids(b):
    b(f"""
s_bfe_u32 s{sBR}, s2, 0x10002
s_and_b32 s{sH}, s2, 3
s_lshl_b32 s{sH}, s{sH}, 3
s_bfe_u32 s{sT}, s2, 0x30003
s_add_u32 s{sH}, s{sH}, s{sT}
s_bfe_u32 s{sB}, s2, 0x20006
s_lshr_b32 s{sT}, s2, 8
s_lshl_b32 s{sT}, s{sT}, 2
s_add_u32 s{sB}, s{sB}, s{sT}
""")

def gen_k1():
    b=P()
    b("s_cmp_ge_u32 s2, 512")
    b("s_cbranch_scc1 K1_END")
    if OPT['lateexit']:
        b("s_cmp_ge_u32 s2, 256")
        b("s_cbranch_scc1 K1_END")
    decode_ids(b)
    b(f"""
s_mul_i32 s3, s{sBR}, 40
s_add_u32 s28, s0, s3
s_addc_u32 s29, s1, 0
s_load_dwordx8 s[32:39], s[28:29], 0
s_load_dwordx2 s[40:41], s[0:1], 96
s_load_dwordx2 s[84:85], s[28:29], 32
s_load_dwordx4 s[96:99], s[0:1], 80
v_lshrrev_b32 v1, 6, v0
v_and_b32 v0, 63, v0
s_nop 0
v_readfirstlane_b32 s{sW}, v1
v_and_b32 v1, 15, v0
v_lshrrev_b32 v2, 4, v0
""")
    stamp(b,0)
    if OPT['stamps']:
        for i in (5,6,7,8,9):
            b(f"s_mov_b32 s{60+2*i}, s60"); b(f"s_mov_b32 s{61+2*i}, s61")
    if OPT['prio']:
        b("s_cmp_lt_u32 s2, 256")
        b("s_cbranch_scc0 K1_NOPRIO")
        b(f"s_setprio {OPT['prio']}")
        b.label("K1_NOPRIO")
    qWA=[148,149,150,151]; qXB=[152,153]; qX9=[154,155]; qDX=[156,157]; qDW=[158,159,160]
    FA=[76,112]
    b(f"""
v_lshrrev_b32 v3, 3, v0
v_mul_u32_u24 v3, 1280, v3
v_and_b32 v4, 7, v0
v_xor_b32 v5, v4, v2
v_lshl_add_u32 v{qDX[0]}, v5, 4, v3
v_xor_b32 v5, 4, v5
v_lshl_add_u32 v{qDX[1]}, v5, 4, v3
""")
    for e in range(3):
        b(f"""
s_mul_i32 s{sT}, s{sW}, 3
s_add_u32 s{sT}, s{sT}, {e}
s_min_u32 s{sT}, s{sT}, 7
s_bfe_u32 s{sT2}, s{sT}, 0x10001
s_lshl_b32 s{sT2}, s{sT2}, 3
v_lshlrev_b32 v3, 1, v2
v_add_u32 v3, s{sT2}, v3
v_xor_b32 v3, v1, v3
v_lshlrev_b32 v3, 4, v3
v_lshl_add_u32 v3, v2, 13, v3
s_lshl_b32 s{sT2}, s{sT}, 15
v_add_u32 v{qDW[e]}, s{sT2}, v3
s_lshl_b32 s{86+e}, s{sT}, 10
s_add_u32 s{86+e}, s{86+e}, {WB}
""")
    b(f"""
s_mul_i32 s{sXM}, s{sW}, {6*1024}
s_mul_i32 s{sXS}, s{sW}, {6*10240}
s_mov_b32 s{sXK}, 0
s_mov_b32 s{sWK}, 0
s_and_b32 s{sQH}, s{sW}, 1
s_lshr_b32 s{sDH}, s{sW}, 1
s_lshl_b32 s{sM0}, s{sW}, 11
s_waitcnt lgkmcnt(0)
""")
    if OPT['fst']: stamp(b,1)
    b(f"""
s_mul_i32 s{sT}, s{sB}, 184320
s_add_u32 s{sX}, s32, s{sT}
s_addc_u32 s{sX+1}, s33, 0
s_mov_b32 s{sX+2}, 184320
s_mov_b32 s{sX+3}, 0x20000
s_lshl_b32 s{sT}, s{sH}, 8
s_add_u32 s{sWQ}, s38, s{sT}
s_addc_u32 s{sWQ+1}, s39, 0
s_sub_u32 s{sWQ+2}, 5242880, s{sT}
s_mov_b32 s{sWQ+3}, 0x20000
s_lshl_b32 s{sT}, s{sB}, 5
s_add_u32 s{sT}, s{sT}, s{sH}
s_lshr_b32 s{sT2}, s{sT}, 14
s_lshl_b32 s{sT}, s{sT}, 18
{"s_and_b32 s47, s47, 0x1c0000" + chr(10) + "s_mov_b32 s48, 0" if OPT['samekv'] else ""}
s_add_u32 s{sK}, s34, s{sT}
s_addc_u32 s{sK+1}, s35, s{sT2}
s_mov_b32 s{sK+2}, 262144
s_mov_b32 s{sK+3}, 0x20000
s_add_u32 s{sV}, s36, s{sT}
s_addc_u32 s{sV+1}, s37, s{sT2}
s_mov_b32 s{sV+2}, 262144
s_mov_b32 s{sV+3}, 0x20000
s_mov_b32 s{sO}, s40
s_mov_b32 s{sO+1}, s41
s_mov_b32 s{sO+2}, {O_BYTES}
s_mov_b32 s{sO+3}, 0x20000
""")
    if OPT['oponly']:
        b(f"""
s_mov_b32 s28, s98
s_mov_b32 s29, s99
s_mov_b32 s30, 256
s_mov_b32 s31, 0x20000
""")
        b("s_branch K1_OPONLY")
    def xops(slot):
        ops=[]
        for e in range(6):
            o=[]
            if e==0:
                o.append(f"s_add_u32 s{sT}, s{sXS}, s{sXK}")
                o.append(f"s_add_u32 m0, s{sXM}, {XS[slot]}")
                o.append(f"s_add_u32 s{sXK}, s{sXK}, 128")
                o.append(f"s_cmp_eq_u32 s{sXK}, 1280")
                o.append(f"s_cselect_b32 s{sXK}, 0, s{sXK}")
            else:
                o.append(f"s_add_u32 m0, m0, 1024")
                o.append(f"s_add_u32 s{sT}, s{sT}, 10240")
            o.append(f"buffer_load_dwordx4 v{qDX[e&1]}, {sr(sX)}, s{sT} offen lds")
            ops.append(o)
        return ops
    def wops(slot):
        ops=[]
        for e in range(3):
            o=[f"s_add_u32 m0, s{86+e}, {slot*8192}"]
            o.append("s_nop 0")
            o.append(f"buffer_load_dwordx4 v{qDW[e]}, {sr(sWQ)}, s{sWK} offen lds")
            if e==2:
                o.append(f"s_add_u32 s{sWK}, s{sWK}, {32*8192}")
                o.append(f"s_cmp_eq_u32 s{sWK}, {640*8192}")
                o.append(f"s_cselect_b32 s{sWK}, 0, s{sWK}")
            ops.append(o)
        return ops
    def emit_ops(ops):
        for o in ops:
            for l in o: b(l)
    if OPT['rot']:
        b(f"""
s_mul_i32 s{sT}, s{sB}, 3
s_and_b32 s{sT2}, s{sH}, 7
s_add_u32 s{sT}, s{sT}, s{sT2}
s_cmp_ge_u32 s{sT}, 20
s_cselect_b32 s{sT2}, 20, 0
s_sub_u32 s{sT}, s{sT}, s{sT2}
s_cmp_ge_u32 s{sT}, 10
s_cselect_b32 s{sT2}, 10, 0
s_sub_u32 s{sT}, s{sT}, s{sT2}
s_lshl_b32 s{sXK}, s{sT}, 7
s_lshl_b32 s{sWK}, s{sT}, 19
""")
    def wtouch(t,dst):
        b(f"v_add_u32 v5, {32*t}, v3")
        b(f"v_lshlrev_b32 v5, 2, v5")
        b(f"v_add_u32 v5, s{sB}, v5")
        b(f"v_lshl_add_u32 v5, v5, 13, v4")
        b(f"buffer_load_dword v{dst}, v5, {sr(sWQ)}, 0 offen{' nt' if OPT['tnt'] else ''}")
    def xtouch(t,dst):
        b(f"v_add_u32 v5, {64*t}, v0")
        b(f"v_min_u32 v5, 179, v5")
        b(f"v_mul_u32_u24 v6, s{sT2}, v5")
        b(f"v_lshrrev_b32 v6, 16, v6")
        b(f"v_mul_u32_u24 v7, 18, v6")
        b(f"v_sub_u32 v7, v5, v7")
        b(f"v_lshlrev_b32 v7, 3, v7")
        b(f"v_add_u32 v7, s{sT}, v7")
        b(f"v_mul_u32_u24 v7, 1280, v7")
        b(f"v_lshl_add_u32 v7, v6, 7, v7")
        b(f"buffer_load_dword v{dst}, v7, {sr(sX)}, 0 offen{' nt' if OPT['tnt'] else ''}")
    def k0load():
        for vw in range(4):
            b(f"""
v_add_u32 v190, {8*vw}, v2
v_lshlrev_b32 v191, 8, v190
v_and_b32 v192, 15, v190
v_xor_b32 v192, v1, v192
v_lshl_add_u32 v193, v192, 4, v191
v_add_u32 v192, 4, v190
v_and_b32 v192, 15, v192
v_xor_b32 v192, v1, v192
v_lshl_add_u32 v194, v192, 4, v191
s_mov_b32 m0, {K0B+vw*2048}
s_nop 0
buffer_load_dwordx4 v193, {sr(sK)}, 0 offen nt lds
buffer_load_dwordx4 v194, {sr(sK)}, 0 offen offset:1024 nt lds
""")
    def kvtouch(n):
        if n==0: return
        b(f"v_lshlrev_b32 v195, 7, v0")
        for t in range(n):
            b(f"s_mov_b32 s{sLAST}, {(t+1)*8192}")
            b(f"buffer_load_dword v{172+2*t}, v195, {sr(sK)}, s{sLAST} offen nt")
            b(f"s_mov_b32 s{sLAST}, {t*8192}")
            b(f"buffer_load_dword v{173+2*t}, v195, {sr(sV)}, s{sLAST} offen nt")
    if OPT['ldelay']:
        FL=48<<20
        b(f"""
s_add_u32 s28, s40, {FL}
s_addc_u32 s29, s41, 0
s_mov_b32 s30, 32768
s_mov_b32 s31, 0x20000
s_and_b32 s{sT}, s2, 255
s_lshl_b32 s89, s{sT}, 7
v_mov_b32 v61, 0
""")
        b("s_cmp_lt_u32 s2, 256")
        b("s_cbranch_scc0 K1_DLATE")
        b(f"s_cmp_lg_u32 s{sW}, 3")
        b("s_cbranch_scc1 K1_NODELAY")
        b(f"buffer_load_dword v199, v61, s[28:31], s89 offen sc1")
        b("s_branch K1_NODELAY")
        b.label("K1_DLATE")
        b(f"s_cmp_lg_u32 s{sW}, 0")
        b("s_cbranch_scc1 K1_DELAYB")
        b(f"buffer_load_dword v62, v61, s[28:31], s89 offen sc1")
        b(f"s_mov_b32 s{sIT}, 0")
        b("s_waitcnt vmcnt(0)")
        b(f"v_readfirstlane_b32 s{sLAST}, v62")
        b.label("K1_DPOLL")
        b(f"""
s_sleep {OPT['dsleep']}
buffer_load_dword v60, v61, s[28:31], s89 offen sc1
s_waitcnt vmcnt(0)
v_readfirstlane_b32 s{sT}, v60
s_cmp_lg_u32 s{sT}, s{sLAST}
s_cbranch_scc1 K1_DELAYB
s_add_u32 s{sIT}, s{sIT}, 1
s_cmp_lt_u32 s{sIT}, {OPT['dmax']}
s_cbranch_scc1 K1_DPOLL
""")
        b.label("K1_DELAYB")
        b("s_barrier")
        b.label("K1_NODELAY")
    if OPT['rot']:
        b(f"s_cmp_eq_u32 s{sW}, 3")
        b("s_cbranch_scc1 K1_SETUP")
        emit_ops(xops(0)); emit_ops(wops(0)); emit_ops(wops(1))
        b("s_branch K1_SETUP")
    b(f"s_cmp_eq_u32 s{sW}, 3")
    b("s_cbranch_scc0 K1_SETUP")
    b(f"v_lshrrev_b32 v3, 1, v0")
    b(f"v_and_b32 v4, 1, v0")
    b(f"v_lshlrev_b32 v4, 7, v4")
    b(f"s_and_b32 s{sT}, s{sH}, 7")
    b(f"s_mov_b32 s{sT2}, {(1<<16)//18+1}")
    b("s_cmp_lt_u32 s2, 256")
    b("s_cbranch_scc0 K1_TLATE")
    wtouch(0,164); xtouch(0,165); wtouch(1,166); wtouch(2,167); xtouch(1,168); wtouch(3,169); xtouch(2,170); wtouch(4,171)
    b("s_branch K1_SETUP")
    b.label("K1_TLATE")
    k0load()
    kvtouch(OPT['kvpfl'])
    xtouch(0,165); xtouch(1,168); xtouch(2,170)
    b.label("K1_SETUP")
    b(f"""
s_lshl_b32 s{sT}, s{sW}, 3
v_add_u32 v3, s{sT}, v2
v_lshlrev_b32 v4, 8, v3
v_and_b32 v5, 15, v3
v_xor_b32 v5, v1, v5
v_lshl_add_u32 v{DK[0]}, v5, 4, v4
v_add_u32 v5, 4, v3
v_and_b32 v5, 15, v5
v_xor_b32 v5, v1, v5
v_lshl_add_u32 v{DK[1]}, v5, 4, v4
v_lshlrev_b32 v5, 1, v2
v_xor_b32 v5, v1, v5
v_lshl_add_u32 v{DV[0]}, v5, 4, v4
v_lshlrev_b32 v5, 1, v2
v_add_u32 v5, 8, v5
v_xor_b32 v5, v1, v5
v_lshl_add_u32 v{DV[1]}, v5, 4, v4
""")
    b(f"""
v_bfe_u32 v3, v0, 2, 2
v_and_b32 v4, 1, v2
v_lshl_add_u32 v4, v4, 2, v3
v_lshl_add_u32 v5, v2, 3, v3
v_lshlrev_b32 v5, 8, v5
v_and_b32 v6, 3, v0
v_lshl_add_u32 v5, v6, 3, v5
v_add_u32 v5, {WB}, v5
""")
    for i in range(4):
        b(f"""
s_lshl_b32 s{sT}, s{sQH}, 1
s_add_u32 s{sT}, s{sT}, {i}
s_and_b32 s{sT}, s{sT}, 3
s_lshl_b32 s{sT2}, s{sDH}, 2
s_add_u32 s{sT}, s{sT}, s{sT2}
v_xor_b32 v6, s{sT}, v4
v_lshl_add_u32 v{qWA[i]}, v6, 5, v5
""")
    b(f"""
v_lshrrev_b32 v3, 1, v1
v_xor_b32 v3, v3, v2
v_lshlrev_b32 v3, 4, v3
v_lshl_add_u32 v3, v1, 7, v3
s_lshl_b32 s{sT}, s{sQH}, 13
v_add_u32 v{qXB[0]}, s{sT}, v3
v_xor_b32 v{qXB[1]}, 64, v{qXB[0]}
v_add_u32 v{qX9[0]}, 16384, v3
v_xor_b32 v{qX9[1]}, 64, v{qX9[0]}
""")
    for r in range(O0,O0+72): b(f"v_mov_b32 v{r}, 0")
    def qreads(k,fs):
        wb=(k%4)*8192; xb=XS[(k>>1)&1]; e=k&1
        o=[]
        for t in range(4):
            o.append(f"ds_read_b128 {vr(fs+16+4*t)}, v{qXB[e]} offset:{xb+t*2048}")
            o.append(f"ds_read_b64_tr_b16 {vr(fs+4*t,2)}, v{qWA[t]} offset:{wb}")
            o.append(f"ds_read_b64_tr_b16 {vr(fs+4*t+2,2)}, v{qWA[t]} offset:{wb+1024}")
        o.append(f"ds_read_b128 {vr(fs+32)}, v{qX9[e]} offset:{xb}")
        return o
    def qstep(p,dma):
        cur=FA[p&1]; nxt=FA[(p&1)^1]
        if OPT['qst']:
            b("s_memtime s[90:91]")
            b("s_waitcnt lgkmcnt(0)")
            b(f"s_lshl_b32 s92, s{sIT}, 2")
            b(f"s_add_u32 s92, s92, {p}")
            b("s_mov_b32 m0, s92")
            b("s_sub_u32 s90, s90, s61")
            b("v_writelane_b32 v200, s90, m0")
        rd=qreads(p+1,nxt)
        mf=[]
        for i in range(4):
            for t in range(4): mf.append(mfma(O0+16*t+4*i,cur+4*i,cur+16+4*t,O0+16*t+4*i))
            if i<2: mf.append(mfma(O9+4*i,cur+4*i,cur+32,O9+4*i))
        ops=[]
        if dma:
            if p%2==1: ops+=xops((p>>1)&1)
            ops+=wops(p)
        pos={}
        n=len(ops)
        for idx in range(n): pos[7+idx*10//max(n,1)]=ops[idx]
        for idx,m in enumerate(mf):
            b(m)
            for r_ in rd[2*idx:2*idx+2]: b(r_)
            if idx in pos:
                for l in pos[idx]: b(l)
    if OPT['qtwice']:
        b("s_mov_b32 s95, 0")
        b.label("K1_QAGAIN")
        b("s_cmp_eq_u32 s95, 0")
        b("s_cbranch_scc1 K1_QFIRST")
        b("s_barrier")
        b("s_memtime s[62:63]")
        b("s_memrealtime s[60:61]")
        b("s_waitcnt lgkmcnt(0)")
        b(f"s_cmp_eq_u32 s{sW}, 3")
        b("s_cbranch_scc1 K1_QFIRST")
        emit_ops(xops(0)); emit_ops(wops(0)); emit_ops(wops(1))
        b.label("K1_QFIRST")
    b(f"s_cmp_eq_u32 s{sW}, 3")
    b("s_cbranch_scc1 K1_Q3")
    if not OPT['rot']:
        b("s_barrier")
        if OPT['fst']: stamp(b,2)
        emit_ops(xops(0)); emit_ops(wops(0)); emit_ops(wops(1)); emit_ops(xops(1)); emit_ops(wops(2)); emit_ops(wops(3))
    elif OPT['fst']: stamp(b,2)
    b("s_waitcnt vmcnt(3)")
    b("s_barrier")
    if OPT['fst']: stamp(b,3)
    for l in qreads(0,FA[0]): b(l)
    emit_ops(xops(1)); emit_ops(wops(2)); emit_ops(wops(3))
    b(f"s_mov_b32 s{sIT}, 0")
    if OPT['thr']:
        b(f"s_lshr_b32 s{sSEL}, s2, 8")
        b(f"s_mul_i32 s{sSEL}, s{sSEL}, {OPT['thr']}")
    b.label("K1_QLOOP")
    for p in range(4):
        b(f"s_waitcnt vmcnt({12 if p%2==0 else 6}) lgkmcnt(0)")
        if OPT['thr']:
            lt=b.new('TH')
            b(f"s_cmp_lt_u32 s{sIT}, s{sSEL}")
            b(f"s_cbranch_scc0 {lt}")
            b("s_waitcnt vmcnt(0)")
            b.label(lt)
        b("s_barrier")
        qstep(p,True)
    b(f"s_add_u32 s{sIT}, s{sIT}, 1")
    b(f"s_cmp_lt_u32 s{sIT}, 4")
    b("s_cbranch_scc1 K1_QLOOP")
    for p in range(4):
        b(f"s_waitcnt vmcnt({[12,3,0,0][p]}) lgkmcnt(0)")
        b("s_barrier")
        qstep(p,False)
    b("s_branch K1_QDONE")
    b.label("K1_Q3")
    if OPT['rot']:
        if OPT['fst']: stamp(b,2)
        b("s_barrier")
        if OPT['fst']: stamp(b,3)
        for l in qreads(0,FA[0]): b(l)
        b(f"s_mov_b32 s{sIT}, 0")
        b("s_branch K1_QLOOP3")
    b("s_cmp_lt_u32 s2, 256")
    b("s_cbranch_scc0 K1_Q3L")
    b(f"s_waitcnt vmcnt({8-OPT['tw']})")
    b("s_barrier")
    if OPT['fst']: stamp(b,2)
    k0load()
    kvtouch(OPT['kvpf'])
    b("s_branch K1_Q3J")
    b.label("K1_Q3L")
    b("s_waitcnt vmcnt(0)")
    b("s_barrier")
    if OPT['fst']: stamp(b,2)
    b.label("K1_Q3J")
    b("s_barrier")
    if OPT['fst']: stamp(b,3)
    for l in qreads(0,FA[0]): b(l)
    b(f"s_mov_b32 s{sIT}, 0")
    b.label("K1_QLOOP3")
    if OPT['rot']:
        l1=b.new('W3'); l2=b.new('W3')
        b(f"s_cmp_eq_u32 s{sIT}, {OPT['k0it']}")
        b(f"s_cbranch_scc0 {l1}")
        k0load()
        b.label(l1)
        b(f"s_cmp_eq_u32 s{sIT}, {OPT['kvit']}")
        b(f"s_cbranch_scc0 {l2}")
        b("s_cmp_lt_u32 s2, 256")
        b(f"s_cbranch_scc0 {l2}L")
        kvtouch(OPT['kvpf'])
        b(f"s_branch {l2}")
        b.label(l2+"L")
        kvtouch(OPT['kvpfl'])
        b.label(l2)
    for p in range(4):
        b(f"s_waitcnt lgkmcnt(0)")
        b("s_barrier")
        qstep(p,False)
    b(f"s_add_u32 s{sIT}, s{sIT}, 1")
    b(f"s_cmp_lt_u32 s{sIT}, 5")
    b("s_cbranch_scc1 K1_QLOOP3")
    b.label("K1_QDONE")
    if OPT['ldelay']:
        ls=b.new('LS')
        b("s_cmp_lt_u32 s2, 256")
        b(f"s_cbranch_scc0 {ls}")
        b(f"s_cmp_lg_u32 s{sW}, 3")
        b(f"s_cbranch_scc1 {ls}")
        b("s_waitcnt vmcnt(0)")
        b("v_add_u32 v199, 1, v199")
        b("v_mov_b32 v198, 0")
        b(f"buffer_store_dword v199, v198, s[28:31], s89 offen sc1")
        b.label(ls)
    if OPT['qtwice']:
        b("s_waitcnt vmcnt(0) lgkmcnt(0)")
        b("s_add_u32 s95, s95, 1")
        b("s_cmp_lt_u32 s95, 2")
        b("s_cbranch_scc1 K1_QAGAIN")
    if not OPT['fst']: stamp(b,1)
    if OPT['qponly']:
        b("s_waitcnt vmcnt(0)")
        if OPT['qst']:
            b(f"s_lshl_b32 s{sT}, s2, 2")
            b(f"s_add_u32 s{sT}, s{sT}, s{sW}")
            b(f"s_lshl_b32 s{sT}, s{sT}, 8")
            b(f"s_add_u32 s{sT}, s{sT}, {60<<20}")
            b(f"s_mov_b32 s{sO+2}, 0x10000000")
            b("v_lshlrev_b32 v3, 2, v0")
            b(f"buffer_store_dword v200, v3, {sr(sO)}, s{sT} offen")
        for i in ((4,) if OPT['fst'] else (2,3,4)): stamp(b,i)
        dump_stamps(b,10,sO,50<<20)
        b("s_endpgm")
    b("s_waitcnt vmcnt(0) lgkmcnt(0)")
    b("s_barrier")
    b(f"s_mov_b32 s{sSOFF}, 0")
    dma_slot(b,0)
    b(f"s_mov_b32 s{sSEL}, {f2u(CSC)}")
    b(f"""
v_lshlrev_b32 v3, 8, v1
v_and_b32 v76, 1, v2
v_lshl_add_u32 v3, v76, 3, v3
v_add_u32 v3, {QB}, v3
v_lshrrev_b32 v77, 1, v2
s_lshl_b32 s{sT2}, s{sQH}, 14
v_add_u32 v78, s{sT2}, v3
""")
    for i in range(4):
        b(f"""
s_lshl_b32 s{sIT}, s{sQH}, 1
s_add_u32 s{sIT}, s{sIT}, {i}
s_and_b32 s{sIT}, s{sIT}, 3
s_lshl_b32 s{sT2}, s{sDH}, 2
s_add_u32 s{sIT}, s{sIT}, s{sT2}
s_lshl_b32 s{sIT}, s{sIT}, 1
v_add_u32 v79, s{sIT}, v77
v_xor_b32 v79, v79, v1
v_lshlrev_b32 v79, 4, v79
v_add_u32 v80, v79, v78
""")
        for t in range(4):
            acc=O0+16*t+4*i
            for r in range(4): b(f"v_mul_f32 v{acc+r}, s{sSEL}, v{acc+r}")
            b(f"v_cvt_pk_bf16_f32 v{acc}, v{acc}, v{acc+1}")
            b(f"v_cvt_pk_bf16_f32 v{acc+1}, v{acc+2}, v{acc+3}")
            b(f"ds_write_b64 v80, {vr(acc,2)} offset:{t*4096}")
        if i<2:
            acc=O9+4*i
            b(f"v_add_u32 v82, v79, v3")
            for r in range(4): b(f"v_mul_f32 v{acc+r}, s{sSEL}, v{acc+r}")
            b(f"v_cvt_pk_bf16_f32 v{acc}, v{acc}, v{acc+1}")
            b(f"v_cvt_pk_bf16_f32 v{acc+1}, v{acc+2}, v{acc+3}")
            b(f"ds_write_b64 v82, {vr(acc,2)} offset:32768")
    for s in range(4):
        b(f"""
v_add_u32 v79, {4*s}, v2
v_xor_b32 v79, v79, v1
v_lshlrev_b32 v79, 4, v79
v_lshl_add_u32 v{KA[s]}, v1, 8, v79
""")
    b(f"s_lshl_b32 s{sT2}, s{sW}, 13")
    b(f"s_add_u32 s{sT2}, s{sT2}, {QB}")
    for s in range(4):
        b(f"v_add_u32 v{236+s}, s{sT2}, v{KA[s]}")
        b(f"v_add_u32 v{S1[1]+s}, {K0B}, v{KA[s]}")
    b("s_waitcnt lgkmcnt(0)")
    b("s_barrier")
    for s in range(4): b(f"ds_read_b128 {vr(Q0+4*s)}, v{236+s} offset:0")
    for s in range(4): b(f"ds_read_b128 {vr(Q1+4*s)}, v{236+s} offset:4096")
    for s in range(4): b(f"ds_read_b128 {vr(Q9+4*s)}, v{KA[s]} offset:{QB+32768}")
    b(f"""
v_bfe_u32 v3, v0, 2, 2
v_and_b32 v4, 1, v2
v_lshl_add_u32 v4, v4, 2, v3
v_lshl_add_u32 v5, v2, 2, v3
v_lshlrev_b32 v5, 8, v5
v_and_b32 v6, 3, v0
v_lshl_add_u32 v5, v6, 3, v5
v_add_u32 v5, 8192, v5
s_lshl_b32 s{sT}, s{sW}, 1
""")
    for i in range(8):
        b(f"""
s_add_u32 s{sT2}, s{sT}, {i}
s_and_b32 s{sT2}, s{sT2}, 7
v_xor_b32 v6, s{sT2}, v4
v_lshl_add_u32 v{VA[i]}, v6, 5, v5
""")
    b(f"""
v_lshlrev_b32 v{P9A}, 4, v0
v_add_u32 v{P9A}, {P9B}, v{P9A}
v_xor_b32 v{BP16}, 16, v0
v_lshlrev_b32 v{BP16}, 2, v{BP16}
""")
    for r in range(O0,O0+72): b(f"v_mov_b32 v{r}, 0")
    for r in L0+L1+L9: b(f"v_mov_b32 v{r}, 0")
    b("s_waitcnt lgkmcnt(0)")
    b(f"v_xor_b32 v{BP32}, 32, v0")
    b(f"v_lshlrev_b32 v{BP32}, 2, v{BP32}")
    b("s_barrier")
    if OPT['dbg_q']:
        b(f"""
s_mul_i32 s{sT}, s2, {4*12*1024}
s_mul_i32 s{sT2}, s{sW}, {12*1024}
s_add_u32 s{sT}, s{sT}, s{sT2}
v_lshlrev_b32 v3, 4, v0
s_mov_b32 s{sO+2}, 0x10000000
""")
        for f in range(12):
            b(f"buffer_store_dwordx4 {vr(Q0+4*f)}, v3, {sr(sO)}, s{sT} offen")
            b(f"s_add_u32 s{sT}, s{sT}, 1024")
        b("s_waitcnt vmcnt(0)")
        b("s_branch K1_END")
    LA=OPT['attla']
    for sl in range(1,LA):
        b(f"s_mov_b32 s{sSOFF}, {sl*8192}")
        dma_slot(b,sl)
    b(f"s_mov_b32 s{sSOFF}, {LA*8192}")
    pb=P()
    for kt in range(2):
        for s in range(4):
            kf=KF[(kt*4+s)%len(KF)]
            pb(f"ds_read_b128 {vr(kf)}, v{S1[1]+s} offset:{kt*4096}")
            for (Sx,Qx) in ((S0[0],Q0),(S1[0],Q1),(S9,Q9)):
                d=Sx+4*kt
                pb(mfma(d,kf,Qx+4*s,'0' if s==0 else d))
    o,ms,q=finish(pb.ins); b.add(o)
    TT=((S0[0],NM0),(S1[0],NM1),(S9,NM9))
    for (Sx,NM) in TT:
        b(f"""
v_max3_f32 v{NM}, v{Sx}, v{Sx+1}, v{Sx+2}
v_max3_f32 v{NM+2}, v{Sx+3}, v{Sx+4}, v{Sx+5}
v_max3_f32 v{NM}, v{NM}, v{Sx+6}, v{Sx+7}
v_max_f32 v{NM}, v{NM}, v{NM+2}
ds_bpermute_b32 v{NM+1}, v{BP16}, v{NM}
""")
    b("s_waitcnt lgkmcnt(0)")
    for (Sx,NM) in TT:
        b(f"v_max_f32 v{NM}, v{NM}, v{NM+1}")
        b(f"ds_bpermute_b32 v{NM+1}, v{BP32}, v{NM}")
    b("s_waitcnt lgkmcnt(0)")
    for (Sx,NM) in TT:
        b(f"""
v_max_f32 v{NM}, v{NM}, v{NM+1}
v_sub_f32 v{NM}, 0, v{NM}
v_mov_b32 v{NM+1}, v{NM}
v_mov_b32 v{NM+2}, v{NM}
v_mov_b32 v{NM+3}, v{NM}
""")
        for r in range(8): b(f"v_add_f32 v{Sx+r}, v{Sx+r}, v{NM}")
    def softmax_seq(S,L):
        for r in range(8): b(f"v_exp_f32 v{S+r}, v{S+r}")
        for r in range(8): b(f"v_add_f32 v{L[r&1]}, v{L[r&1]}, v{S+r}")
        for r in range(4): b(f"v_cvt_pk_bf16_f32 v{S+r}, v{S+2*r}, v{S+2*r+1}")
    softmax_seq(S0[0],L0)
    b(f"s_cmp_lg_u32 s{sW}, 0")
    b("s_cbranch_scc1 K1_NOP9")
    softmax_seq(S9,L9)
    b(f"ds_write_b128 v{P9A}, {vr(S9)} offset:0")
    b.label("K1_NOP9")
    b(f"s_mov_b32 s{sIT}, 0")
    if not OPT['prioatt']: b("s_setprio 0")
    if OPT['prioL']:
        b("s_cmp_lt_u32 s2, 256")
        b("s_cbranch_scc1 K1_PL")
        b(f"s_setprio {OPT['prioL']}")
        b.label("K1_PL")
    stamp(b,2)
    LA=OPT['attla']
    assert LA==3
    b("s_waitcnt vmcnt(10) lgkmcnt(0)")
    b("s_barrier")
    for s_ in range(4): b(f"ds_read_b128 {vr(KF[s_])}, v{KA[s_]} offset:0")
    bodies={}
    for p in range(4):
        for ver in ('plain','t9a','t9b')+(('final',) if p==3 else ()):
            if ver=='t9a' or ver=='t9b':
                pass
            o,ms=schedule(att_step(p,ver),lds_lat=OPT['ldslat'],lds_ahead=(OPT['lah'] if ver!='final' else 99),lds_per_gap=(OPT['lpg'] if ver!='final' else 9))
            if ver!='final' and not OPT['nodma']:
                o=place_macros(o,dma_macros(p,LA),dmpos(ver))
            if OPT['noexp']: o=[x for x in o if x.kind!='trans']
            if OPT['novalu']: o=[x for x in o if x.kind not in('trans','valu')]
            if OPT['nolds']: o=[x for x in o if x.kind not in('dsr','dsw')]
            o,q=insert_lgkm(o)
            bodies[(p,ver)]=o
            if p==0 or ver=='final': print(f"; step p={p} {ver}: est {ms} cycles, {len(o)} instrs",file=sys.stderr)
    b.label("K1_LOOP")
    b(f"s_cmp_eq_u32 s{sIT}, 7")
    b(f"s_cselect_b32 s{sLAST}, 1, 0")
    for p in range(4):
        d1=b.new('D'); d2=b.new('D')
        lastcnt=[6,4,2,0][p]
        if lastcnt==6:
            b(f"s_waitcnt vmcnt(6) lgkmcnt(0)")
            if not OPT['nobar']: b("s_barrier")
        else:
            if p!=0: b(f"s_cmp_eq_u32 s{sLAST}, 1")
            b(f"s_cbranch_scc1 K1_LW_{p}")
            b(f"s_waitcnt vmcnt(6) lgkmcnt(0)")
            if not OPT['nobar']: b("s_barrier")
            b.label(f"K1_LWB_{p}")
        if p==0 and OPT['wopf']:
            lw=b.new('WO')
            b(f"s_cmp_eq_u32 s{sIT}, {OPT['wotit']}")
            b(f"s_cbranch_scc0 {lw}")
            b(f"""
s_lshr_b32 s{sT}, s{sH}, 3
s_lshl_b32 s{sT}, s{sT}, 5
s_bfe_u32 s{sT2}, s2, 0x50003
s_add_u32 s{sT}, s{sT}, s{sT2}
s_mul_i32 s{sT}, s{sT}, 40960
s_add_u32 s80, s84, s{sT}
s_addc_u32 s81, s85, 0
s_mov_b32 s82, 40960
s_mov_b32 s83, 0x20000
v_lshlrev_b32 v3, 7, v0
s_lshl_b32 s{sT}, s{sW}, 13
buffer_load_dword v1, v3, s[80:83], s{sT} offen
s_mov_b32 s{sT}, 32768
buffer_load_dword v2, v3, s[80:83], s{sT} offen
""")
            b.label(lw)
        if OPT['ast']:
            b("s_memrealtime s[90:91]")
            b("s_waitcnt lgkmcnt(0)")
            b(f"s_lshl_b32 s92, s{sIT}, 2")
            b(f"s_add_u32 s92, s92, {p}")
            b("s_mov_b32 m0, s92")
            b("s_nop 1")
            b("v_writelane_b32 v237, s90, m0")
        wa=0 if p%2==0 else 2
        if not OPT['not9']:
            b(f"s_cmp_eq_u32 s{sW}, {wa}")
            b(f"s_cbranch_scc1 K1_T9A_{p}")
            b(f"s_cmp_eq_u32 s{sW}, {wa+1}")
            b(f"s_cbranch_scc1 K1_T9B_{p}")
        b.add(bodies[(p,'plain')])
        b.label(f"K1_NEXT_{p}")
    b(f"s_add_u32 s{sIT}, s{sIT}, 1")
    b("s_branch K1_LOOP")
    for p in range(4):
        b.label(f"K1_T9A_{p}")
        b.add(bodies[(p,'t9a')])
        b(f"s_branch K1_NEXT_{p}")
        b.label(f"K1_T9B_{p}")
        b.add(bodies[(p,'t9b')])
        b(f"s_branch K1_NEXT_{p}")
    for p in (1,2,3):
        b.label(f"K1_LW_{p}")
        b(f"s_waitcnt vmcnt({[6,4,2,0][p]}) lgkmcnt(0)")
        b("s_barrier")
        if p==3: b("s_branch K1_FINAL")
        else: b(f"s_branch K1_LWB_{p}")
    b.label("K1_FINAL")
    b.add(bodies[(3,'final')])
    b("s_waitcnt lgkmcnt(0)")
    stamp(b,3)
    if OPT['ast']:
        b(f"s_lshl_b32 s{sT}, s2, 2")
        b(f"s_add_u32 s{sT}, s{sT}, s{sW}")
        b(f"s_lshl_b32 s{sT}, s{sT}, 8")
        b(f"s_add_u32 s{sT}, s{sT}, {60<<20}")
        b(f"s_mov_b32 s{sO+2}, 0x10000000")
        b("v_lshlrev_b32 v3, 2, v0")
        b(f"buffer_store_dword v237, v3, {sr(sO)}, s{sT} offen")
        b(f"s_mov_b32 s{sO+2}, {O_BYTES}")
    LL=(L0,L1,L9)
    for L in LL:
        b(f"v_add_f32 v{L[0]}, v{L[0]}, v{L[1]}")
        b(f"ds_bpermute_b32 v{L[1]}, v{BP16}, v{L[0]}")
    b("s_waitcnt lgkmcnt(0)")
    for L in LL:
        b(f"v_add_f32 v{L[0]}, v{L[0]}, v{L[1]}")
        b(f"ds_bpermute_b32 v{L[1]}, v{BP32}, v{L[0]}")
    b("s_waitcnt lgkmcnt(0)")
    for L in LL: b(f"v_add_f32 v{L[0]}, v{L[0]}, v{L[1]}")
    THR=f2u(2.0**60) if not OPT['force_slow'] else f2u(0.5)
    b(f"""
s_mov_b32 s{sSEL}, {THR}
v_cmp_ngt_f32 vcc, s{sSEL}, v{L0[0]}
s_mov_b64 s[76:77], vcc
v_cmp_ngt_f32 vcc, s{sSEL}, v{L1[0]}
s_or_b64 s[76:77], s[76:77], vcc
s_cmp_lg_u64 s[76:77], 0
s_cselect_b32 s{sT}, 0x7f800000, 0
v_mov_b32 v1, s{sT}
v_max_f32 v{L9[0]}, v{L9[0]}, v1
""")
    b(f"""
s_lshl_b32 s{sT}, s{sW}, 8
v_lshlrev_b32 v3, 2, v0
v_add_u32 v3, {L9B}, v3
v_add_u32 v1, s{sT}, v3
ds_write_b32 v1, v{L9[0]}
v_rcp_f32 v{L0[0]}, v{L0[0]}
v_rcp_f32 v{L1[0]}, v{L1[0]}
s_waitcnt lgkmcnt(0)
s_barrier
ds_read_b32 v{S9}, v3
ds_read_b32 v{S9+1}, v3 offset:256
ds_read_b32 v{S9+2}, v3 offset:512
ds_read_b32 v{S9+3}, v3 offset:768
""")
    b(f"""
s_lshl_b32 s{sT}, s{sBR}, 3
s_add_u32 s{sT}, s{sT}, s{sB}
s_mul_i32 s{sT}, s{sT}, 9
s_lshl_b32 s{sT2}, s{sW}, 1
s_add_u32 s{sSEL}, s{sT}, s{sT2}
s_lshl_b32 s{sSEL}, s{sSEL}, 5
s_add_u32 s{sSEL}, s{sSEL}, s{sH}
s_lshl_b32 s{sSEL}, s{sSEL}, 12
s_add_u32 s{sT}, s{sT}, 8
s_lshl_b32 s{sT}, s{sT}, 5
s_add_u32 s{sT}, s{sT}, s{sH}
s_lshl_b32 s{sIT}, s{sT}, 12
v_lshlrev_b32 v3, 4, v0
s_waitcnt lgkmcnt(0)
v_add_f32 v{S9}, v{S9}, v{S9+1}
v_add_f32 v{S9+2}, v{S9+2}, v{S9+3}
v_add_f32 v{L9[0]}, v{S9}, v{S9+2}
s_mov_b32 s{sT}, {THR}
v_cmp_ngt_f32 vcc, s{sT}, v{L9[0]}
v_rcp_f32 v{L9[0]}, v{L9[0]}
s_cmp_lg_u64 vcc, 0
s_cbranch_scc1 K1_SLOW
""")
    def ostore(r):
        if OPT['dupst']==2:
            b(f"buffer_store_dwordx4 {vr(r)}, v3, {sr(sO)}, s{sLAST} offen")
        elif OPT['dupst']==3:
            b(f"buffer_store_dwordx4 {vr(r)}, v3, {sr(sO)}, s{sLAST} offen")
            b(f"buffer_store_dwordx4 {vr(r)}, v3, {sr(sO)}, s{sLAST} offen sc1")
        elif OPT['dupst']==4:
            b(f"buffer_store_dwordx4 {vr(r)}, v3, {sr(sO)}, s{sLAST} offen sc0 sc1")
        else:
            b(f"buffer_store_dwordx4 {vr(r)}, v3, {sr(sO)}, s{sLAST} offen sc1")
            if OPT['dupst']: b(f"buffer_store_dwordx4 {vr(r)}, v3, {sr(sO)}, s{sLAST} offen")
    def pack(acc,i,L):
        for r in range(8): b(f"v_mul_f32 v{acc+4*i+r}, v{acc+4*i+r}, v{L}")
        b(f"v_cvt_pk_bf16_f32 v{acc+4*i}, v{acc+4*i}, v{acc+4*i+1}")
        b(f"v_cvt_pk_bf16_f32 v{acc+4*i+1}, v{acc+4*i+2}, v{acc+4*i+3}")
        b(f"v_cvt_pk_bf16_f32 v{acc+4*i+2}, v{acc+4*i+4}, v{acc+4*i+5}")
        b(f"v_cvt_pk_bf16_f32 v{acc+4*i+3}, v{acc+4*i+6}, v{acc+4*i+7}")
    for i in (0,2,4,6):
        b(f"""
s_add_u32 s{sT2}, s{sW}, {i//2}
s_and_b32 s{sT2}, s{sT2}, 3
s_lshl_b32 s{sT2}, s{sT2}, 10
s_add_u32 s{sLAST}, s{sT2}, s{sSEL}
""")
        pack(O0,i,L0[0])
        ostore(O0+4*i)
        b(f"s_add_u32 s{sLAST}, s{sLAST}, {32*4096}")
        pack(O1,i,L1[0])
        ostore(O1+4*i)
    b(f"""
s_lshl_b32 s{sT2}, s{sW}, 10
s_add_u32 s{sLAST}, s{sT2}, s{sIT}
""")
    pack(O9,0,L9[0])
    ostore(O9)
    b.label("K1_STORED")
    sDBG=28
    b(f"""
s_mov_b32 s{sDBG}, s98
s_mov_b32 s{sDBG+1}, s99
s_mov_b32 s{sDBG+2}, 256
s_mov_b32 s{sDBG+3}, 0x20000
s_waitcnt vmcnt(0)
s_barrier
s_cmp_lg_u32 s{sW}, 0
s_cbranch_scc1 K1_SIG
s_lshl_b32 s{sT}, s{sBR}, 3
s_add_u32 s{sT}, s{sT}, s{sB}
s_lshl_b32 s{sT}, s{sT}, 2
s_add_u32 s{sT}, s{sT}, 128
s_lshl_b32 s{sT2}, 1, s{sH}
v_mov_b32 v4, s{sT2}
v_mov_b32 v5, 0
s_mov_b64 exec, 1
buffer_atomic_or v4, v5, {sr(sDBG)}, s{sT} offen sc1
s_mov_b64 exec, -1
""")
    b.label("K1_SIG")
    b.label("K1_OPONLY")
    stamp(b,4)
    if not OPT['opown']:
        b("s_cmp_lt_u32 s2, 256")
        b("s_cbranch_scc0 K1_FIN")
    if OPT['opmode']: op_phase(b)
    b.label("K1_FIN")
    b("s_branch K1_FIN2")
    b("s_branch K1_SLOWEND")
    b.label("K1_SLOW")
    QC=S0[0]
    SS_=S1[0]
    M_,LL_,MT,AL=L0[0],L0[1],L1[0],L1[1]
    s77=77
    b(f"s_mov_b32 s76, s{sSEL}")
    b(f"s_mov_b32 s77, s{sIT}")
    b("s_mov_b32 s78, 0")
    b.label("K1_SPASS")
    for pi,Qx in enumerate((Q0,Q1,Q9)):
        l_=b.new('SP')
        b(f"s_cmp_eq_u32 s78, {pi}")
        b(f"s_cbranch_scc0 {l_}")
        for r in range(16): b(f"v_mov_b32 v{QC+r}, v{Qx+r}")
        b.label(l_)
    for r in range(32): b(f"v_mov_b32 v{O0+r}, 0")
    b(f"v_mov_b32 v{M_}, 0xff800000")
    b(f"v_mov_b32 v{LL_}, 0")
    b(f"s_mov_b32 s{sSOFF}, 0")
    b.label("K1_STILE")
    b("s_barrier")
    b(f"""
s_mov_b32 m0, s{sM0}
s_nop 0
buffer_load_dwordx4 v{DK[0]}, {sr(sK)}, s{sSOFF} offen lds
buffer_load_dwordx4 v{DK[1]}, {sr(sK)}, s{sSOFF} offen offset:1024 lds
s_add_u32 m0, s{sM0}, 8192
s_nop 0
buffer_load_dwordx4 v{DV[0]}, {sr(sV)}, s{sSOFF} offen lds
buffer_load_dwordx4 v{DV[1]}, {sr(sV)}, s{sSOFF} offen offset:1024 lds
s_waitcnt vmcnt(0)
s_barrier
""")
    for kt in range(2):
        for s_ in range(4):
            b(f"ds_read_b128 {vr(KF[s_])}, v{KA[s_]} offset:{kt*4096}")
        b("s_waitcnt lgkmcnt(0)")
        for s_ in range(4):
            b(mfma(SS_+4*kt,KF[s_],QC+4*s_,'0' if s_==0 else SS_+4*kt))
    b("s_nop 7")
    b(f"""
v_max3_f32 v{MT}, v{SS_}, v{SS_+1}, v{SS_+2}
v_max3_f32 v{MT}, v{MT}, v{SS_+3}, v{SS_+4}
v_max3_f32 v{MT}, v{MT}, v{SS_+5}, v{SS_+6}
v_max_f32 v{MT}, v{MT}, v{SS_+7}
ds_bpermute_b32 v{AL}, v{BP16}, v{MT}
s_waitcnt lgkmcnt(0)
v_max_f32 v{MT}, v{MT}, v{AL}
ds_bpermute_b32 v{AL}, v{BP32}, v{MT}
s_waitcnt lgkmcnt(0)
v_max_f32 v{MT}, v{MT}, v{AL}
v_max_f32 v{MT}, v{MT}, v{M_}
v_sub_f32 v{AL}, v{M_}, v{MT}
v_exp_f32 v{AL}, v{AL}
v_mov_b32 v{M_}, v{MT}
""")
    for r in range(8): b(f"v_sub_f32 v{SS_+r}, v{SS_+r}, v{MT}")
    for r in range(8): b(f"v_exp_f32 v{SS_+r}, v{SS_+r}")
    b(f"v_mul_f32 v{LL_}, v{LL_}, v{AL}")
    for r in range(8): b(f"v_add_f32 v{LL_}, v{LL_}, v{SS_+r}")
    for r in range(4): b(f"v_cvt_pk_bf16_f32 v{SS_+r}, v{SS_+2*r}, v{SS_+2*r+1}")
    for r in range(32): b(f"v_mul_f32 v{O0+r}, v{O0+r}, v{AL}")
    for i in range(8):
        b(f"ds_read_b64_tr_b16 {vr(VF[0],2)}, v{VA[i]} offset:0")
        b(f"ds_read_b64_tr_b16 {vr(VF[0]+2,2)}, v{VA[i]} offset:4096")
        b("s_waitcnt lgkmcnt(0)")
        b(mfma(O0+4*i,VF[0],SS_,O0+4*i))
    b(f"s_add_u32 s{sSOFF}, s{sSOFF}, 8192")
    b(f"s_cmp_lt_u32 s{sSOFF}, 262144")
    b("s_cbranch_scc1 K1_STILE")
    b(f"""
ds_bpermute_b32 v{AL}, v{BP16}, v{LL_}
s_waitcnt lgkmcnt(0)
v_add_f32 v{LL_}, v{LL_}, v{AL}
ds_bpermute_b32 v{AL}, v{BP32}, v{LL_}
s_waitcnt lgkmcnt(0)
v_add_f32 v{LL_}, v{LL_}, v{AL}
v_rcp_f32 v{LL_}, v{LL_}
s_nop 7
""")
    b("s_cmp_eq_u32 s78, 2")
    b("s_cbranch_scc1 K1_SP2")
    b(f"s_mul_i32 s{sIT}, s78, {32*4096}")
    b(f"s_add_u32 s{sIT}, s{sIT}, s76")
    for i in (0,2,4,6):
        b(f"""
s_add_u32 s{sT2}, s{sW}, {i//2}
s_and_b32 s{sT2}, s{sT2}, 3
s_lshl_b32 s{sT2}, s{sT2}, 10
s_add_u32 s{sLAST}, s{sT2}, s{sIT}
""")
        pack(O0,i,LL_)
        ostore(O0+4*i)
    b("s_add_u32 s78, s78, 1")
    b("s_waitcnt vmcnt(0)")
    b("s_branch K1_SPASS")
    b.label("K1_SP2")
    b(f"s_lshl_b32 s{sT2}, s{sW}, 10")
    b(f"s_add_u32 s{sLAST}, s{sT2}, s77")
    pack(O0,0,LL_)
    ostore(O0)
    b("s_branch K1_STORED")
    b.label("K1_SLOWEND")
    b.label("K1_FIN2")
    if OPT['ost']:
        b(f"s_lshl_b32 s{sT}, s2, 2")
        b(f"s_add_u32 s{sT}, s{sT}, s{sW}")
        b(f"s_lshl_b32 s{sT}, s{sT}, 8")
        b(f"s_add_u32 s{sT}, s{sT}, {60<<20}")
        b(f"s_mov_b32 s{sO+2}, 0x10000000")
        b("v_lshlrev_b32 v3, 2, v0")
        b(f"buffer_store_dword v240, v3, {sr(sO)}, s{sT} offen")
    if OPT['stamps']:
        b("s_waitcnt vmcnt(0)")
        stamp(b,9)
        dump_stamps(b,10,sO,50<<20)
    b.label("K1_END")
    b("s_endpgm")
    ins,added=fix_hazards(b.ins)
    print(f"; k1: {len(ins)} instrs, {added} nop states added",file=sys.stderr)
    return ins

def op_phase(b):
    sWO=8; sOF=12; sPT=16; sOUT=20; sDBG=28
    sNT=45; sHQ=46; sBI=51; sB0=52; sB9=53; sWK2=54; sWM2=55; sBK=56; sITEM=57; sPOLL=58
    ACC0,ACC1,ACC9=4,24,44
    BF=64; AF=[160,180]
    WAd=[216,217,218,219,220]; DWO=[221,222,223,224,225]; VL=210; WAd2=[211,212,213,214,215]
    UNIT=20480
    bsc=' sc1' if OPT['bsc1'] else ''
    b(f"s_setprio 0")
    b(f"""
s_and_b32 s{sNT}, s{sH}, 7
s_lshr_b32 s{sHQ}, s{sH}, 3
v_and_b32 v1, 15, v0
v_lshrrev_b32 v2, 4, v0
v_lshlrev_b32 v{VL}, 4, v0
s_mov_b32 s{sT2}, {(1<<16)//10+1}
""")
    for e in range(5):
        b(f"""
v_add_u32 v3, {64*e}, v0
v_mul_u32_u24 v4, s{sT2}, v3
v_lshrrev_b32 v4, 16, v4
v_mul_u32_u24 v5, 10, v4
v_sub_u32 v5, v3, v5
v_mul_u32_u24 v4, 1280, v4
v_lshl_add_u32 v{DWO[e]}, v5, 4, v4
""")
        if 0<e<4: b(f"v_subrev_u32 v{DWO[e]}, {e*1024}, v{DWO[e]}")
    b(f"""
v_bfe_u32 v3, v0, 2, 2
v_lshl_add_u32 v3, v2, 2, v3
v_mul_u32_u24 v3, 160, v3
v_and_b32 v4, 3, v0
v_lshl_add_u32 v3, v4, 3, v3
""")
    for i in range(5):
        b(f"""
s_add_u32 s{sT}, s{sW}, {i}
s_cmp_ge_u32 s{sT}, 5
s_cselect_b32 s{sT2}, 5, 0
s_sub_u32 s{sT}, s{sT}, s{sT2}
s_mov_b32 s{33+i}, s{sT}
s_lshl_b32 s{sT}, s{sT}, 5
v_add_u32 v{WAd[i]}, s{sT}, v3
v_add_u32 v{WAd2[i]}, {2*24576}, v{WAd[i]}
""")
    b(f"""
s_mul_i32 s{sT}, s{sHQ}, {1024*1280}
s_mul_i32 s{sT2}, s{sNT}, 160
s_add_u32 s{sT}, s{sT}, s{sT2}
s_add_u32 s{sWO}, s84, s{sT}
s_addc_u32 s{sWO+1}, s85, 0
s_sub_u32 s{sWO+2}, 5242880, s{sT}
s_mov_b32 s{sWO+3}, 0x20000
s_mov_b32 s{sOF}, s40
s_mov_b32 s{sOF+1}, s41
s_mov_b32 s{sOF+2}, {O_BYTES}
s_mov_b32 s{sOF+3}, 0x20000
s_add_u32 s{sPT}, s40, {WS_PART}
s_addc_u32 s{sPT+1}, s41, 0
s_mov_b32 s{sPT+2}, {PART_BYTES}
s_mov_b32 s{sPT+3}, 0x20000
s_mov_b32 s{sOUT}, s96
s_mov_b32 s{sOUT+1}, s97
s_mov_b32 s{sOUT+2}, {8*144*1280*2}
s_mov_b32 s{sOUT+3}, 0x20000
s_mov_b32 s{sITEM}, 0
""")
    b.label("OP_ITEM")
    UN=24576
    b(f"""
s_lshl_b32 s{sBI}, s{sITEM}, {2 if not OPT['opown'] else 0}
{"s_add_u32 s%d, s%d, s%d"%(sBI,sBI,sB) if not OPT['opown'] else "s_mov_b32 s%d, s%d"%(sBI,sB)}
s_mul_i32 s{sWK2}, s{sW}, {32*1280}
s_mul_i32 s{sT}, s{sNT}, {128*1280}
s_add_u32 s{sWK2}, s{sWK2}, s{sT}
s_mul_i32 s{sWM2}, s{sW}, 5120
s_mul_i32 s{sBK}, s{sW}, {32*1280}
s_add_u32 s{sBK}, s{sBK}, {8*128*1280}
""")
    def wunit(slot):
        b(f"s_add_u32 m0, s{sWM2}, {slot*UN}")
        b("s_nop 0")
        for e in range(4):
            b(f"buffer_load_dwordx4 v{DWO[e]}, {sr(sWO)}, s{sWK2} offen offset:{e*1024} lds")
        b(f"s_add_u32 m0, m0, 4096")
        b(f"s_add_u32 s{sT}, s{sWK2}, {128*1280}")
        b(f"buffer_load_dwordx4 v{DWO[4]}, {sr(sWO)}, s{sWK2} offen lds")
        b(f"s_cmp_ge_u32 s{sT}, s{sBK}")
        b(f"s_cselect_b32 s{sT2}, {1024*1280}, 0")
        b(f"s_sub_u32 s{sWK2}, s{sT}, s{sT2}")
    s9K=59
    def t9unit(slot):
        b(f"s_lshl_b32 s{sT}, s{sW}, 10")
        b(f"s_add_u32 m0, s{sT}, {slot*UN+20480}")
        b(f"s_add_u32 s{sT2}, s{sB9}, s{s9K}")
        b(f"buffer_load_dwordx4 v{VL}, {sr(sOF)}, s{sT2} offen{bsc} lds")
        b(f"s_add_u32 s{s9K}, s{s9K}, 4096")
        b(f"s_and_b32 s{s9K}, s{s9K}, 32767")
    b("s_barrier")
    LB=OPT['oplb']; LW=OPT['oplw']
    for u_ in range(LW): wunit(u_)
    for r in range(4,56): b(f"v_mov_b32 v{r}, 0")
    if OPT['oponly']: b("s_branch OP_WAITED")
    b(f"s_cmp_lg_u32 s{sW}, 0")
    b("s_cbranch_scc1 OP_WAITED")
    b(f"""
s_lshl_b32 s{sT}, s{sBR}, 3
s_add_u32 s{sT}, s{sT}, s{sBI}
s_lshl_b32 s{sT}, s{sT}, 2
s_add_u32 s{sT}, s{sT}, 128
s_lshl_b32 s{sLAST}, s{sHQ}, 3
s_mov_b32 s{sPOLL}, 0
v_mov_b32 v61, 0
s_mov_b64 exec, 1
""")
    b.label("OP_POLL")
    b(f"""
{"buffer_load_dword v60, v61, "+sr(sDBG)+f", s{sT} offen sc1" if OPT['pollld'] else "v_mov_b32 v60, 0"+chr(10)+"buffer_atomic_or v60, v61, "+sr(sDBG)+f", s{sT} offen sc0 sc1"}
s_waitcnt vmcnt(0)
v_readfirstlane_b32 s{sT2}, v60
s_lshr_b32 s{sT2}, s{sT2}, s{sLAST}
s_and_b32 s{sT2}, s{sT2}, 255
s_cmp_eq_u32 s{sT2}, 255
s_cbranch_scc1 OP_POLLED
s_add_u32 s{sPOLL}, s{sPOLL}, 1
s_cmp_lt_u32 s{sPOLL}, 20000
s_cbranch_scc0 OP_POLLED
s_sleep {OPT['psleep']}
s_branch OP_POLL
""")
    b.label("OP_POLLED")
    b("s_mov_b64 exec, -1")
    b.label("OP_WAITED")
    b("s_barrier")
    if OPT['stamps']:
        l=b.new('ST'); b(f"s_cmp_eq_u32 s{sITEM}, 0"); b(f"s_cbranch_scc0 {l}a"); stamp(b,5); b(f"s_branch {l}b"); b.label(l+'a'); stamp(b,7); b.label(l+'b')
    b(f"""
s_lshl_b32 s{sT}, s{sBR}, 3
s_add_u32 s{sT}, s{sT}, s{sBI}
s_mul_i32 s{sT}, s{sT}, 9
s_lshl_b32 s{sT2}, s{sW}, 1
s_add_u32 s{sB0}, s{sT}, s{sT2}
s_lshl_b32 s{sB0}, s{sB0}, 17
s_add_u32 s{sB9}, s{sT}, 8
s_lshl_b32 s{sB9}, s{sB9}, 17
s_lshl_b32 s{sT}, s{sHQ}, 15
s_add_u32 s{sB0}, s{sB0}, s{sT}
s_add_u32 s{sB9}, s{sB9}, s{sT}
s_lshl_b32 s{sSEL}, s{sNT}, 12
s_lshl_b32 s{sT}, s{sW}, 10
s_add_u32 s{s9K}, s{sSEL}, s{sT}
s_add_u32 s{sPOLL}, s{sB0}, {32*4096}
""")
    def bload(kk):
        r=BF+8*(kk%8)
        return [f"s_add_u32 s{sT}, s{sB0}, s{sSEL}",
                f"s_add_u32 s{sT2}, s{sPOLL}, s{sSEL}",
                f"buffer_load_dwordx4 {vr(r)}, v{VL}, {sr(sOF)}, s{sT} offen{bsc}",
                f"buffer_load_dwordx4 {vr(r+4)}, v{VL}, {sr(sOF)}, s{sT2} offen{bsc}",
                f"s_add_u32 s{sSEL}, s{sSEL}, 1024",
                f"s_and_b32 s{sSEL}, s{sSEL}, 32767"]
    for u_ in range(LW): t9unit(u_)
    for kk in range(LB):
        for l in bload(kk): b(l)
    V9=226
    b(f"v_add_u32 v{V9}, 20480, v{VL}")
    b(f"v_add_u32 v{V9+1}, {2*UN}, v{V9}")
    B9F=[228,232]
    def areads(slot,ks,fs,b9):
        off=(slot*UN if slot<2 else 0)
        WW=WAd if slot<2 else WAd2
        o=[f"ds_read_b128 {vr(b9)}, v{V9 if slot<2 else V9+1} offset:{off+ks*1024}"]
        for i in range(5):
            o.append(f"ds_read_b64_tr_b16 {vr(fs+4*i,2)}, v{WW[i]} offset:{off+ks*5120}")
            o.append(f"ds_read_b64_tr_b16 {vr(fs+4*i+2,2)}, v{WW[i]} offset:{off+ks*5120+2560}")
        return o
    q=[]
    for u_ in range(LW): q+=[('W',u_)]*5
    for u_ in range(LW): q+=[('T',u_)]
    for k in range(LB): q+=[('B',k)]*2
    def after(tag):
        idx=max(i for i,t in enumerate(q) if t==tag)
        return len(q)-1-idx
    for UU in range(8):
        u=UU%3
        wb=min(after(('W',UU)),after(('T',UU)),after(('B',4*UU)))
        b(f"s_waitcnt vmcnt({wb})")
        b("s_barrier")
        if OPT['ost']:
            b("s_memtime s[90:91]")
            b("s_waitcnt lgkmcnt(0)")
            b(f"s_lshl_b32 s92, s{sITEM}, 4")
            b(f"s_add_u32 s92, s92, {UU}")
            b("s_mov_b32 m0, s92")
            b("s_nop 1")
            b("v_writelane_b32 v240, s90, m0")
        rd=areads(u,0,AF[0],B9F[0])
        for l in rd: b(l)
        if UU+LW<8 and not OPT['opnow']:
            wunit((UU+LW)%3); t9unit((UU+LW)%3)
            q+=[('W',UU+LW)]*5+[('T',UU+LW)]
        pend=[I(l) for l in rd]
        for ks in range(4):
            kk=4*UU+ks
            fs=AF[ks&1]; b9=B9F[ks&1]
            b(f"s_waitcnt vmcnt({after(('B',kk))})")
            r=BF+8*(kk%8)
            mm=[]
            for i in range(5):
                mm.append(mfma(ACC0+4*i,fs+4*i,r,ACC0+4*i))
                mm.append(mfma(ACC1+4*i,fs+4*i,r+4,ACC1+4*i))
                if i==0: mm.append(mfma(ACC9,fs,b9,ACC9))
                if i==4: mm.append(mfma(ACC9+4,fs+16,b9,ACC9+4))
            nxt=areads(u,ks+1,AF[(ks+1)&1],B9F[(ks+1)&1]) if ks<3 else []
            seq=[]
            for idx,m in enumerate(mm):
                seq.append(I(m))
                if idx<len(nxt): seq.append(I(nxt[idx]))
            if kk+LB<32 and not OPT['opnob']:
                bl=bload(kk+LB); q+=[('B',kk+LB)]*2
                if LB<8:
                    pos=len(seq)//2
                    seq=seq[:pos]+[I(x) for x in bl]+seq[pos:]
                else: seq+= [I(x) for x in bl]
            o,pend=insert_lgkm(seq,pending=pend)
            b.add(o)
    if OPT['stamps']:
        l=b.new('ST'); b(f"s_cmp_eq_u32 s{sITEM}, {0 if OPT['opown'] else 1}"); b(f"s_cbranch_scc0 {l}b"); stamp(b,8); b.label(l+'b')
    if OPT['ost']:
        b("s_memtime s[90:91]")
        b("s_waitcnt lgkmcnt(0)")
        b(f"s_lshl_b32 s92, s{sITEM}, 4")
        b(f"s_add_u32 s92, s92, 8")
        b("s_mov_b32 m0, s92")
        b("s_nop 1")
        b("v_writelane_b32 v240, s90, m0")
    b(f"""
s_lshl_b32 s{sT}, s{sBR}, 3
s_add_u32 s{sT}, s{sT}, s{sBI}
s_lshl_b32 s{sT}, s{sT}, 3
s_add_u32 s{sSEL}, s{sT}, s{sNT}
s_mul_i32 s{sB0}, s{sSEL}, {4*45*1024}
s_mul_i32 s{sT}, s{sHQ}, {45*1024}
s_add_u32 s{sB9}, s{sB0}, s{sT}
s_mul_i32 s{sBK}, s{sW}, {2*5*1024}
s_nop 7
""")
    tiles=[]
    for i in range(5):
        tiles.append((ACC0+4*i,0,i)); tiles.append((ACC1+4*i,5*1024,i))
    def toff(extra,i,dst):
        b(f"s_lshl_b32 s{dst}, s{33+i}, 10")
        b(f"s_add_u32 s{dst}, s{dst}, s{sBK}")
        if extra: b(f"s_add_u32 s{dst}, s{dst}, {extra}")
    for (acc,extra,i) in tiles:
        toff(extra,i,sT)
        b(f"s_add_u32 s{sT}, s{sT}, s{sB9}")
        if not OPT['opnop']: b(f"buffer_store_dwordx4 {vr(acc)}, v{VL}, {sr(sPT)}, s{sT} offen sc1")
    b(f"s_lshl_b32 s{sT}, s33, 10")
    b(f"s_add_u32 s{sT}, s{sT}, {40*1024}")
    b(f"s_add_u32 s{sT}, s{sT}, s{sB9}")
    b(f"buffer_store_dwordx4 {vr(ACC9)}, v{VL}, {sr(sPT)}, s{sT} offen sc1")
    b(f"s_cmp_lg_u32 s{sW}, 0")
    b("s_cbranch_scc1 OP_P1")
    b(f"s_add_u32 s{sT}, s{sB9}, {44*1024}")
    b(f"buffer_store_dwordx4 {vr(ACC9+4)}, v{VL}, {sr(sPT)}, s{sT} offen sc1")
    b.label("OP_P1")
    b("s_waitcnt vmcnt(0)")
    b("s_barrier")
    if OPT['dred']:
        b(f"s_cmp_lg_u32 s{sW}, 0")
        b("s_cbranch_scc1 OP_P2")
        b(f"""
s_and_b32 s{sLAST}, s{sSEL}, 3
s_lshl_b32 s{sLAST}, s{sLAST}, 3
s_lshl_b32 s{sT2}, 1, s{sLAST}
v_mov_b32 v60, s{sT2}
s_lshr_b32 s{sT2}, s{sSEL}, 2
s_lshl_b32 s{sT2}, s{sT2}, 2
v_mov_b32 v61, 0
s_mov_b64 exec, 1
buffer_atomic_add v60, v61, {sr(sDBG)}, s{sT2} offen sc0 sc1
s_mov_b32 s{sPOLL}, 0
s_waitcnt vmcnt(0)
v_readfirstlane_b32 s{sT}, v60
s_lshr_b32 s{sT}, s{sT}, s{sLAST}
s_and_b32 s{sT}, s{sT}, 255
s_cmp_ge_u32 s{sT}, 3
s_cbranch_scc1 OP_RPOLLED
""")
        b.label("OP_RPOLL")
        b(f"""
s_sleep {OPT['rsleep']}
v_mov_b32 v60, 0
buffer_atomic_or v60, v61, {sr(sDBG)}, s{sT2} offen sc0 sc1
s_waitcnt vmcnt(0)
v_readfirstlane_b32 s{sT}, v60
s_lshr_b32 s{sT}, s{sT}, s{sLAST}
s_and_b32 s{sT}, s{sT}, 255
s_cmp_ge_u32 s{sT}, 4
s_cbranch_scc1 OP_RPOLLED
s_add_u32 s{sPOLL}, s{sPOLL}, 1
s_cmp_lt_u32 s{sPOLL}, 20000
s_cbranch_scc1 OP_RPOLL
""")
        b.label("OP_RPOLLED")
        b("s_mov_b64 exec, -1")
        b.label("OP_P2")
        b("s_barrier")
        LD=64
        b(f"s_lshl_b32 s{sWK2}, s{sHQ}, 2")
        b(f"s_add_u32 s{sWK2}, s{sWK2}, s{sW}")
        for j in range(3):
            b(f"s_add_u32 s{sT}, s{sWK2}, {16*j}")
            b(f"s_min_u32 s{sT}, s{sT}, 44")
            b(f"s_lshl_b32 s{sT}, s{sT}, 10")
            b(f"s_add_u32 s{sT}, s{sT}, s{sB0}")
            for d in range(4):
                b(f"buffer_load_dwordx4 {vr(LD+16*j+4*d)}, v{VL}, {sr(sPT)}, s{sT} offen sc1")
                if d<3: b(f"s_add_u32 s{sT}, s{sT}, {45*1024}")
        b(f"""
s_mul_i32 s{sLAST}, s{sBI}, 144
v_add_u32 v3, s{sLAST}, v1
v_mul_u32_u24 v3, 2560, v3
v_lshl_add_u32 v3, v2, 3, v3
s_mul_i32 s{sLAST}, s{sBR}, 1280
s_mul_i32 s{sT2}, s{sNT}, 160
s_add_u32 s{sLAST}, s{sLAST}, s{sT2}
""")
        for j in range(3):
            r=LD+16*j
            b(f"s_waitcnt vmcnt({4*(2-j)+j})")
            for rr in range(4):
                b(f"v_add_f32 v{r+rr}, v{r+rr}, v{r+4+rr}")
                b(f"v_add_f32 v{r+8+rr}, v{r+8+rr}, v{r+12+rr}")
            for rr in range(4): b(f"v_add_f32 v{r+rr}, v{r+rr}, v{r+8+rr}")
            b(f"v_cvt_pk_bf16_f32 v{r}, v{r}, v{r+1}")
            b(f"v_cvt_pk_bf16_f32 v{r+1}, v{r+2}, v{r+3}")
            b(f"s_add_u32 s{sT}, s{sWK2}, {16*j}")
            if j==2:
                b(f"s_cmp_ge_u32 s{sT}, 45")
                b("s_cbranch_scc1 OP_DONE")
            b(f"s_mul_i32 s{sT2}, s{sT}, 52429")
            b(f"s_lshr_b32 s{sT2}, s{sT2}, 18")
            b(f"s_mul_i32 s{sIT}, s{sT2}, 5")
            b(f"s_sub_u32 s{sT}, s{sT}, s{sIT}")
            b(f"s_lshl_b32 s{sT}, s{sT}, 5")
            b(f"s_mul_i32 s{sT2}, s{sT2}, {16*2560}")
            b(f"s_add_u32 s{sT}, s{sT}, s{sT2}")
            b(f"s_add_u32 s{sT}, s{sT}, s{sLAST}")
            b(f"buffer_store_dwordx2 {vr(r,2)}, v3, {sr(sOUT)}, s{sT} offen")
        b.label("OP_DONE")
        if OPT['stamps']: stamp(b,6)
        return
    b(f"s_cmp_lg_u32 s{sW}, 0")
    b("s_cbranch_scc1 OP_P2")
    b(f"""
s_and_b32 s{sT}, s{sSEL}, 3
s_lshl_b32 s{sT}, s{sT}, 3
s_lshl_b32 s{sT2}, 1, s{sT}
v_mov_b32 v60, s{sT2}
s_lshr_b32 s{sT2}, s{sSEL}, 2
s_lshl_b32 s{sT2}, s{sT2}, 2
v_mov_b32 v61, 0
s_mov_b64 exec, 1
buffer_atomic_add v60, v61, {sr(sDBG)}, s{sT2} offen sc0 sc1
s_waitcnt vmcnt(0)
v_lshrrev_b32 v60, s{sT}, v60
v_and_b32 v60, 255, v60
ds_write_b32 v61, v60
s_waitcnt lgkmcnt(0)
s_mov_b64 exec, -1
""")
    b.label("OP_P2")
    b("s_barrier")
    b("""
v_mov_b32 v61, 0
ds_read_b32 v60, v61
s_waitcnt lgkmcnt(0)
""")
    b(f"v_readfirstlane_b32 s{sT}, v60")
    b(f"s_cmp_eq_u32 s{sT}, 3")
    b("s_cbranch_scc0 OP_DONE")
    LD=64
    def addparts(acc,offs_dst):
        for d in range(1,4):
            b(f"s_add_u32 s{sIT}, s{sHQ}, {d}")
            b(f"s_and_b32 s{sIT}, s{sIT}, 3")
            b(f"s_mul_i32 s{sIT}, s{sIT}, {45*1024}")
            b(f"s_add_u32 s{sIT}, s{sIT}, s{sB0}")
            b(f"s_add_u32 s{sIT}, s{sIT}, s{offs_dst}")
            b(f"buffer_load_dwordx4 {vr(acc+4*(d-1))}, v{VL}, {sr(sPT)}, s{sIT} offen sc1")
    k=0; ldmap=[]
    for (acc,extra,i) in tiles:
        toff(extra,i,sT)
        addparts(LD+12*k,sT); ldmap.append((acc,LD+12*k)); k+=1
    b(f"s_lshl_b32 s{sT}, s33, 10")
    b(f"s_add_u32 s{sT}, s{sT}, {40*1024}")
    addparts(LD+12*k,sT); ldmap.append((ACC9,LD+12*k)); k+=1
    b(f"s_mov_b32 s{sT}, {44*1024}")
    addparts(LD+12*k,sT); ldmap.append((ACC9+4,LD+12*k)); k+=1
    b(f"""
s_mul_i32 s{sLAST}, s{sBI}, 144
v_add_u32 v3, s{sLAST}, v1
v_mul_u32_u24 v3, 2560, v3
v_lshl_add_u32 v3, v2, 3, v3
s_mul_i32 s{sLAST}, s{sBR}, 1280
s_mul_i32 s{sT2}, s{sNT}, 160
s_add_u32 s{sLAST}, s{sLAST}, s{sT2}
s_waitcnt vmcnt(0)
""")
    for idx,(acc,ld) in enumerate(ldmap):
        for d in range(3):
            for r in range(4): b(f"v_add_f32 v{acc+r}, v{acc+r}, v{ld+4*d+r}")
        b(f"v_cvt_pk_bf16_f32 v{acc}, v{acc}, v{acc+1}")
        b(f"v_cvt_pk_bf16_f32 v{acc+1}, v{acc+2}, v{acc+3}")
        if idx<10:
            (a2,extra,i)=tiles[idx]
            b(f"s_lshl_b32 s{sT}, s{sW}, 1")
            if extra: b(f"s_add_u32 s{sT}, s{sT}, 1")
            b(f"s_mul_i32 s{sT}, s{sT}, {16*2560}")
            b(f"s_lshl_b32 s{sT2}, s{33+i}, 5")
        elif idx==10:
            b(f"s_mov_b32 s{sT}, {128*2560}")
            b(f"s_lshl_b32 s{sT2}, s33, 5")
        else:
            b(f"s_cmp_lg_u32 s{sW}, 0")
            b("s_cbranch_scc1 OP_DONE")
            b(f"s_mov_b32 s{sT}, {128*2560}")
            b(f"s_mov_b32 s{sT2}, {4*32}")
        b(f"s_add_u32 s{sT}, s{sT}, s{sT2}")
        b(f"s_add_u32 s{sT}, s{sT}, s{sLAST}")
        b(f"buffer_store_dwordx2 {vr(acc,2)}, v3, {sr(sOUT)}, s{sT} offen")
    b.label("OP_DONE")
    if OPT['stamps']:
        l=b.new('ST'); b(f"s_cmp_eq_u32 s{sITEM}, 0"); b(f"s_cbranch_scc0 {l}b"); stamp(b,6); b.label(l+'b')
    b(f"s_add_u32 s{sITEM}, s{sITEM}, 1")
    if not OPT['opown'] or OPT['oponly']:
        b(f"s_cmp_lt_u32 s{sITEM}, {OPT['opmode']}")
        b("s_cbranch_scc1 OP_ITEM")

def emit(name,ins):
    s=f".globl {name}\n.p2align 8\n.type {name},@function\n{name}:\n"
    for i in ins:
        s+= (i.text+'\n') if i.kind=='label' else ('    '+i.text+'\n')
    return s
def desc(name,vgpr=256,sgpr=102):
    return f""".amdhsa_kernel {name}
  .amdhsa_next_free_vgpr {vgpr}
  .amdhsa_next_free_sgpr {sgpr}
  .amdhsa_accum_offset {(vgpr+3)//4*4}
  .amdhsa_group_segment_fixed_size 0
  .amdhsa_kernarg_size 104
  .amdhsa_user_sgpr_count 2
  .amdhsa_user_sgpr_kernarg_segment_ptr 1
  .amdhsa_system_sgpr_workgroup_id_x 1
.end_amdhsa_kernel
"""
if __name__=='__main__':
    outp=sys.argv[1]
    for a in sys.argv[2:]:
        k,v=a.split('='); OPT[k]=int(v)
    k1=gen_k1()
    txt="; @launch grid=(512,1,1) block=(256,1,1) lds=81920\n"
    txt+='.amdgcn_target "amdgcn-amd-amdhsa--gfx950"\n.text\n'
    txt+=emit(NAME,k1)
    txt+='.section .rodata,"a"\n.p2align 6\n'+desc(NAME)
    open(outp,'w').write(txt)
```

```python
import sys, math, struct
from isa import *
NAME='concat_heads__mha_block_cached__gqa_block_cached__near_ridge_kernel'
OPT=dict(wsf=0, op2=0, pl2=0, psleep2=24, force_slow=0, dbg_q=0, stamps=0, qponly=0, qst=0, wxpf=1, kvpf=1, prio=2, k1only=0, k2only=0, fst=0, tw=2, tnt=1, kvpfl=1, rot=1,  dred=1, rsleep=32, lah=99, lpg=9, dmmode=0, dmo1=3, dmo2=5, ast=0, ost=0, opnobr=0, opnolds=0, oponly=0, opown=1, thr=0, ldelay=0, dsleep=16, dmax=24, nodma=0, nobar=0, noexp=0, novalu=0, nolds=0, not9=0, ldslat=140, dmk=3, dmv=9, lateexit=0, samekv=0, prioL=0, opmode=2, opnob=0, opnow=0, opnop=0, oplb=4, oplw=2, attla=3, wopf=1, wotit=5, pollld=0, psleep=64, dupst=1, bsc1=1, qtwice=0, prioatt=0, k0it=1, kvit=2, nok0=0)
class P:
    def __init__(s): s.ins=[]; s.n=0
    def __call__(s,text,**kw):
        for l in text.strip('\n').split('\n'):
            l=l.strip()
            if l and not l.startswith(';'): s.ins.append(I(l,**kw))
    def add(s,lst): s.ins+=lst
    def label(s,name): s.ins.append(I(name+':'))
    CNT=[0]
    def new(s,p='L'):
        P.CNT[0]+=1; return f'{p}_{P.CNT[0]}'
def vr(a,n=4): return f"v[{a}:{a+n-1}]"
def sr(a,n=4): return f"s[{a}:{a+n-1}]"
def mfma(d,a,b,c):
    cs=c if isinstance(c,str) else vr(c)
    return f"v_mfma_f32_16x16x32_bf16 {vr(d)}, {vr(a)}, {vr(b)}, {cs}"
def f2u(f): return struct.unpack('<I',struct.pack('<f',f))[0]
CSC=math.log2(math.e)/math.sqrt(128.0)

O0,O1,O9=4,36,68
Q0,Q1,Q9=76,92,108
NM0,NM1,NM9=124,128,132
S0=[136,144]; S1=[152,160]; S9=168
KF=[176,180,184,188,240,244]; VF=[192,196,200,204,248,252]; P9F=208
L0=[212,213]; L1=[214,215]; L9=[216,217]
KA=[218,219,220,221]; VA=list(range(222,230))
DK=[230,231]; DV=[232,233]; P9A=234; BP16=235; BP32=236
sW=4; sH=5; sB=6; sBR=7
sK=8; sV=12; sWQ=16; sX=20; sO=24
sIT=42; sSOFF=43; sM0=44; sT=47; sT2=48; sSEL=49; sLAST=50
sXK=51; sWK=52; sQH=55; sDH=56; sXM=57; sXS=58; sWM=53
SLOT=16384
XS=[0,18432]; WB=36864; K0B=69632; P9B=77824; L9B=79872; QB=16384
WS_O=0; WS_PART=20<<20; O_BYTES=18874368; PART_BYTES=512*45*1024

def finish(body,**kw):
    o,ms=schedule(body,**kw)
    o,q=insert_lgkm(o)
    return o,ms,q
def stamp(b,idx):
    if OPT['stamps']:
        b(f"s_memrealtime s[92:93]")
        b(f"s_memtime s[94:95]")
        b("s_waitcnt lgkmcnt(0)")
        b(f"v_writelane_b32 v237, s92, {2*idx}")
        b(f"v_writelane_b32 v237, s94, {2*idx+1}")
def dump_stamps(b,n,srd,base):
    if OPT['stamps']:
        b(f"s_lshl_b32 s{sT}, s2, 2")
        b(f"s_add_u32 s{sT}, s{sT}, s{sW}")
        b(f"s_lshl_b32 s{sT}, s{sT}, 7")
        b(f"s_add_u32 s{sT}, s{sT}, {base}")
        b(f"s_mov_b32 s{srd+2}, 0x10000000")
        b("v_lshlrev_b32 v3, 2, v0")
        b("v_cmp_gt_u32 vcc, 32, v0")
        b("s_and_saveexec_b64 s[78:79], vcc")
        b(f"buffer_store_dword v237, v3, s[{srd}:{srd+3}], s{sT} offen")
        b("s_waitcnt vmcnt(0)")

def att_step(p,ver):
    cur=p&1; nxt=cur^1; slot=p*SLOT; nslot=((p+1)%4)*SLOT
    b=P()
    b(f"ds_read_b128 {vr(P9F)}, v{P9A} offset:{cur*1024}")
    t9kt={'t9a':0,'t9b':1}.get(ver,None)
    if ver!='final':
        bufs={(0,0):KF[0],(0,1):KF[1],(0,2):KF[2],(0,3):KF[3],(1,0):KF[4],(1,1):KF[5],(1,2):KF[0],(1,3):KF[1]}
        b(f"ds_read_b128 {vr(KF[4])}, v{KA[0]} offset:{slot+4096}")
        b(f"ds_read_b128 {vr(KF[5])}, v{KA[1]} offset:{slot+4096}")
        for kt in range(2):
            for s in range(4):
                kf=bufs[(kt,s)]
                if kt==1 and s>=2:
                    b(f"ds_read_b128 {vr(kf)}, v{KA[s]} offset:{slot+4096}")
                lst=[(S0[nxt]+4*kt,Q0,NM0),(S1[nxt]+4*kt,Q1,NM1)]
                if t9kt==kt: lst.append((S9,Q9,NM9))
                for (d,Qx,NM) in lst:
                    b(mfma(d,kf,Qx+4*s, NM if s==0 else d))
    def softmax(S,L,n=8):
        for r in range(n): b(f"v_exp_f32 v{S+r}, v{S+r}")
        for r in range(n): b(f"v_add_f32 v{L[r&1]}, v{L[r&1]}, v{S+r}")
        for r in range(n//2): b(f"v_cvt_pk_bf16_f32 v{S+r}, v{S+2*r}, v{S+2*r+1}")
    softmax(S1[cur],L1)
    if t9kt is not None:
        softmax(S9,L9,4)
        b(f"ds_write_b64 v{P9A}, {vr(S9,2)} offset:{nxt*1024+8*t9kt}")
    for i in range(8):
        vf=VF[i%len(VF)]
        b(f"ds_read_b64_tr_b16 {vr(vf,2)}, v{VA[i]} offset:{slot}")
        b(f"ds_read_b64_tr_b16 {vr(vf+2,2)}, v{VA[i]} offset:{slot+4096}")
        b(mfma(O0+4*i,vf,S0[cur],O0+4*i))
        b(mfma(O1+4*i,vf,S1[cur],O1+4*i))
        if i<2: b(mfma(O9+4*i,vf,P9F,O9+4*i))
    if ver!='final':
        softmax(S0[nxt],L0)
        for s in range(4):
            b(f"ds_read_b128 {vr(KF[s])}, v{KA[s]} offset:{nslot}")
    return b.ins

def dma_macros(p,LA):
    P_=P()
    slotpos=(p+LA)%4
    jl=28+p; tgt=jl+LA
    out=[]
    for part,e_ in (('K',0),('K',1),('V',0),('V',1)):
        skip_last = (tgt>=31) if part=='K' else (tgt>=32)
        m=[]
        lab=P_.new('DM')
        if skip_last:
            m.append(I(f"s_cmp_eq_u32 s{sLAST}, 1"))
            m.append(I(f"s_cbranch_scc1 {lab}"))
        off=" offset:1024" if e_ else ""
        if part=='K':
            body=[f"s_add_u32 m0, s{sM0}, {slotpos*SLOT}", f"s_add_u32 s{sT}, s{sSOFF}, 8192",
                   f"buffer_load_dwordx4 v{DK[e_]}, {sr(sK)}, s{sT} offen{off} nt lds"]
        else:
            body=[f"s_add_u32 m0, s{sM0}, {slotpos*SLOT+8192}", "s_nop 0",
                   f"buffer_load_dwordx4 v{DV[e_]}, {sr(sV)}, s{sSOFF} offen{off} nt lds"]
            if e_==1: body.append(f"s_add_u32 s{sSOFF}, s{sSOFF}, 8192")
        for l in body:
            i=I(l); i.skip=skip_last; m.append(i)
        if skip_last: m.append(I(lab+':'))
        out.append(m)
    return out

def dmpos(ver):
    m=OPT['dmmode']
    if m==0: return [3,4,9,10] if False else [3,3.5,9,9.5]
    off={'plain':0,'t9a':OPT['dmo1'],'t9b':OPT['dmo2']}[ver]
    return [x+off for x in {1:[2,10,18,26],2:[1,5,9,13],3:[16,20,24,28]}[m]]
def place_macros(o,macros,positions):
    res=[]; n=0; todo=sorted(zip(positions,range(len(macros))))
    for i in o:
        res.append(i)
        if i.kind=='mfma':
            n+=1
            while todo and int(todo[0][0])<=n: res+=macros[todo.pop(0)[1]]
    for _,k in todo: res+=macros[k]
    return res

def dma_slot(b,slotpos,kpart=True,vpart=True):
    if kpart:
        b(f"s_add_u32 m0, s{sM0}, {slotpos*SLOT}")
        b(f"s_add_u32 s{sT}, s{sSOFF}, 8192")
        b(f"buffer_load_dwordx4 v{DK[0]}, {sr(sK)}, s{sT} offen nt lds")
        b(f"buffer_load_dwordx4 v{DK[1]}, {sr(sK)}, s{sT} offen offset:1024 nt lds")
    if vpart:
        b(f"s_add_u32 m0, s{sM0}, {slotpos*SLOT+8192}")
        b(f"s_nop 0")
        b(f"buffer_load_dwordx4 v{DV[0]}, {sr(sV)}, s{sSOFF} offen nt lds")
        b(f"buffer_load_dwordx4 v{DV[1]}, {sr(sV)}, s{sSOFF} offen offset:1024 nt lds")


FLG=46<<20
def flag_srd(b):
    b(f"""
s_add_u32 s72, s40, {FLG}
s_addc_u32 s73, s41, 0
s_mov_b32 s74, 32768
s_mov_b32 s75, 0x20000
""")
def flag_addr(b,vd,vt):
    b(f"""
s_lshl_b32 s{sT}, s{sBR}, 3
s_add_u32 s{sT}, s{sT}, s{sB}
s_lshr_b32 s{sT2}, s{sH}, 3
s_lshl_b32 s{sLAST}, s{sT}, 2
s_add_u32 s{sLAST}, s{sLAST}, s{sT2}
s_lshl_b32 s{sLAST}, s{sLAST}, 7
s_and_b32 s{sT2}, s{sH}, 7
s_lshl_b32 s{sT}, s{sT}, 3
s_add_u32 s{sT}, s{sT}, s{sT2}
s_lshl_b32 s{sT}, s{sT}, 7
s_add_u32 s{sT}, s{sT}, 8192
v_and_b32 v{vt}, 7, v0
v_lshlrev_b32 v{vd}, 2, v{vt}
v_add_u32 v{vd}, s{sLAST}, v{vd}
v_bfe_u32 v{vt}, v0, 3, 1
v_lshl_add_u32 v{vd}, v{vt}, 11, v{vd}
v_and_b32 v{vt}, 3, v0
v_lshlrev_b32 v{vt}, 2, v{vt}
v_add_u32 v{vt}, s{sT}, v{vt}
v_bfe_u32 v{vd+1}, v0, 2, 1
v_lshl_add_u32 v{vt}, v{vd+1}, 12, v{vt}
v_cmp_lt_u32 vcc, 15, v0
v_cndmask_b32 v{vd}, v{vd}, v{vt}, vcc
v_cmp_lt_u32 vcc, 23, v0
v_mov_b32 v{vt}, s{sLAST}
v_cndmask_b32 v{vd}, v{vd}, v{vt}, vcc
""")
def decode_ids(b):
    b(f"""
s_bfe_u32 s{sBR}, s2, 0x10002
s_and_b32 s{sH}, s2, 3
s_lshl_b32 s{sH}, s{sH}, 3
s_bfe_u32 s{sT}, s2, 0x30003
s_add_u32 s{sH}, s{sH}, s{sT}
s_bfe_u32 s{sB}, s2, 0x20006
s_lshr_b32 s{sT}, s2, 8
s_lshl_b32 s{sT}, s{sT}, 2
s_add_u32 s{sB}, s{sB}, s{sT}
""")

def gen_k1():
    b=P()
    b("s_cmp_ge_u32 s2, 512")
    b("s_cbranch_scc1 K1_END")
    if OPT['lateexit']:
        b("s_cmp_ge_u32 s2, 256")
        b("s_cbranch_scc1 K1_END")
    decode_ids(b)
    b(f"""
s_mul_i32 s3, s{sBR}, 40
s_add_u32 s28, s0, s3
s_addc_u32 s29, s1, 0
s_load_dwordx8 s[32:39], s[28:29], 0
s_load_dwordx2 s[40:41], s[0:1], 96
s_load_dwordx2 s[84:85], s[28:29], 32
s_load_dwordx4 s[96:99], s[0:1], 80
v_lshrrev_b32 v1, 6, v0
v_and_b32 v0, 63, v0
s_nop 0
v_readfirstlane_b32 s{sW}, v1
v_and_b32 v1, 15, v0
v_lshrrev_b32 v2, 4, v0
""")
    stamp(b,0)
    if OPT['stamps']:
        for i in range(1,10):
            b(f"v_writelane_b32 v237, s92, {2*i}"); b(f"v_writelane_b32 v237, s94, {2*i+1}")
    if OPT['prio']:
        b("s_cmp_lt_u32 s2, 256")
        b("s_cbranch_scc0 K1_NOPRIO")
        b(f"s_setprio {OPT['prio']}")
        b.label("K1_NOPRIO")
    qWA=[148,149,150,151]; qXB=[152,153]; qX9=[154,155]; qDX=[156,157]; qDW=[158,159,160]
    FA=[76,112]
    b(f"""
v_lshrrev_b32 v3, 3, v0
v_mul_u32_u24 v3, 1280, v3
v_and_b32 v4, 7, v0
v_xor_b32 v5, v4, v2
v_lshl_add_u32 v{qDX[0]}, v5, 4, v3
v_xor_b32 v5, 4, v5
v_lshl_add_u32 v{qDX[1]}, v5, 4, v3
""")
    for e in range(3):
        b(f"""
s_mul_i32 s{sT}, s{sW}, 3
s_add_u32 s{sT}, s{sT}, {e}
s_min_u32 s{sT}, s{sT}, 7
s_bfe_u32 s{sT2}, s{sT}, 0x10001
s_lshl_b32 s{sT2}, s{sT2}, 3
v_lshlrev_b32 v3, 1, v2
v_add_u32 v3, s{sT2}, v3
v_xor_b32 v3, v1, v3
v_lshlrev_b32 v3, 4, v3
v_lshl_add_u32 v3, v2, 13, v3
s_lshl_b32 s{sT2}, s{sT}, 15
v_add_u32 v{qDW[e]}, s{sT2}, v3
s_lshl_b32 s{86+e}, s{sT}, 10
s_add_u32 s{86+e}, s{86+e}, {WB}
""")
    b(f"""
s_mul_i32 s{sXM}, s{sW}, {6*1024}
s_mul_i32 s{sXS}, s{sW}, {6*10240}
s_mov_b32 s{sXK}, 0
s_mov_b32 s{sWK}, 0
s_and_b32 s{sQH}, s{sW}, 1
s_lshr_b32 s{sDH}, s{sW}, 1
s_lshl_b32 s{sM0}, s{sW}, 11
s_waitcnt lgkmcnt(0)
""")
    if OPT['fst']: stamp(b,1)
    b(f"""
s_mul_i32 s{sT}, s{sB}, 184320
s_add_u32 s{sX}, s32, s{sT}
s_addc_u32 s{sX+1}, s33, 0
s_mov_b32 s{sX+2}, 184320
s_mov_b32 s{sX+3}, 0x20000
s_lshl_b32 s{sT}, s{sH}, 8
s_add_u32 s{sWQ}, s38, s{sT}
s_addc_u32 s{sWQ+1}, s39, 0
s_sub_u32 s{sWQ+2}, 5242880, s{sT}
s_mov_b32 s{sWQ+3}, 0x20000
s_lshl_b32 s{sT}, s{sB}, 5
s_add_u32 s{sT}, s{sT}, s{sH}
s_lshr_b32 s{sT2}, s{sT}, 14
s_lshl_b32 s{sT}, s{sT}, 18
{"s_and_b32 s47, s47, 0x1c0000" + chr(10) + "s_mov_b32 s48, 0" if OPT['samekv'] else ""}
s_add_u32 s{sK}, s34, s{sT}
s_addc_u32 s{sK+1}, s35, s{sT2}
s_mov_b32 s{sK+2}, 262144
s_mov_b32 s{sK+3}, 0x20000
s_add_u32 s{sV}, s36, s{sT}
s_addc_u32 s{sV+1}, s37, s{sT2}
s_mov_b32 s{sV+2}, 262144
s_mov_b32 s{sV+3}, 0x20000
s_mov_b32 s{sO}, s40
s_mov_b32 s{sO+1}, s41
s_mov_b32 s{sO+2}, {O_BYTES}
s_mov_b32 s{sO+3}, 0x20000
""")
    if OPT['oponly']:
        b(f"""
s_mov_b32 s28, s98
s_mov_b32 s29, s99
s_mov_b32 s30, 256
s_mov_b32 s31, 0x20000
""")
        b("s_branch K1_OPONLY")
    if OPT['wsf']:
        flag_srd(b)
        flag_addr(b,234,236)
        b("buffer_load_dword v238, v234, s[72:75], 0 offen sc0 sc1")
    def xops(slot):
        ops=[]
        for e in range(6):
            o=[]
            if e==0:
                o.append(f"s_add_u32 s{sT}, s{sXS}, s{sXK}")
                o.append(f"s_add_u32 m0, s{sXM}, {XS[slot]}")
                o.append(f"s_add_u32 s{sXK}, s{sXK}, 128")
                o.append(f"s_cmp_eq_u32 s{sXK}, 1280")
                o.append(f"s_cselect_b32 s{sXK}, 0, s{sXK}")
            else:
                o.append(f"s_add_u32 m0, m0, 1024")
                o.append(f"s_add_u32 s{sT}, s{sT}, 10240")
            o.append(f"buffer_load_dwordx4 v{qDX[e&1]}, {sr(sX)}, s{sT} offen lds")
            ops.append(o)
        return ops
    def wops(slot):
        ops=[]
        for e in range(3):
            o=[f"s_add_u32 m0, s{86+e}, {slot*8192}"]
            o.append("s_nop 0")
            o.append(f"buffer_load_dwordx4 v{qDW[e]}, {sr(sWQ)}, s{sWK} offen lds")
            if e==2:
                o.append(f"s_add_u32 s{sWK}, s{sWK}, {32*8192}")
                o.append(f"s_cmp_eq_u32 s{sWK}, {640*8192}")
                o.append(f"s_cselect_b32 s{sWK}, 0, s{sWK}")
            ops.append(o)
        return ops
    def emit_ops(ops):
        for o in ops:
            for l in o: b(l)
    if OPT['rot']:
        b(f"""
s_mul_i32 s{sT}, s{sB}, 3
s_and_b32 s{sT2}, s{sH}, 7
s_add_u32 s{sT}, s{sT}, s{sT2}
s_cmp_ge_u32 s{sT}, 20
s_cselect_b32 s{sT2}, 20, 0
s_sub_u32 s{sT}, s{sT}, s{sT2}
s_cmp_ge_u32 s{sT}, 10
s_cselect_b32 s{sT2}, 10, 0
s_sub_u32 s{sT}, s{sT}, s{sT2}
s_lshl_b32 s{sXK}, s{sT}, 7
s_lshl_b32 s{sWK}, s{sT}, 19
""")
    def wtouch(t,dst):
        b(f"v_add_u32 v5, {32*t}, v3")
        b(f"v_lshlrev_b32 v5, 2, v5")
        b(f"v_add_u32 v5, s{sB}, v5")
        b(f"v_lshl_add_u32 v5, v5, 13, v4")
        b(f"buffer_load_dword v{dst}, v5, {sr(sWQ)}, 0 offen{' nt' if OPT['tnt'] else ''}")
    def xtouch(t,dst):
        b(f"v_add_u32 v5, {64*t}, v0")
        b(f"v_min_u32 v5, 179, v5")
        b(f"v_mul_u32_u24 v6, s{sT2}, v5")
        b(f"v_lshrrev_b32 v6, 16, v6")
        b(f"v_mul_u32_u24 v7, 18, v6")
        b(f"v_sub_u32 v7, v5, v7")
        b(f"v_lshlrev_b32 v7, 3, v7")
        b(f"v_add_u32 v7, s{sT}, v7")
        b(f"v_mul_u32_u24 v7, 1280, v7")
        b(f"v_lshl_add_u32 v7, v6, 7, v7")
        b(f"buffer_load_dword v{dst}, v7, {sr(sX)}, 0 offen{' nt' if OPT['tnt'] else ''}")
    def k0load():
        for vw in range(4):
            b(f"""
v_add_u32 v190, {8*vw}, v2
v_lshlrev_b32 v191, 8, v190
v_and_b32 v192, 15, v190
v_xor_b32 v192, v1, v192
v_lshl_add_u32 v193, v192, 4, v191
v_add_u32 v192, 4, v190
v_and_b32 v192, 15, v192
v_xor_b32 v192, v1, v192
v_lshl_add_u32 v194, v192, 4, v191
s_mov_b32 m0, {K0B+vw*2048}
s_nop 0
buffer_load_dwordx4 v193, {sr(sK)}, 0 offen nt lds
buffer_load_dwordx4 v194, {sr(sK)}, 0 offen offset:1024 nt lds
""")
    def kvtouch(n):
        if n==0: return
        b(f"v_lshlrev_b32 v195, 7, v0")
        for t in range(n):
            b(f"s_mov_b32 s{sLAST}, {(t+1)*8192}")
            b(f"buffer_load_dword v{172+2*t}, v195, {sr(sK)}, s{sLAST} offen nt")
            b(f"s_mov_b32 s{sLAST}, {t*8192}")
            b(f"buffer_load_dword v{173+2*t}, v195, {sr(sV)}, s{sLAST} offen nt")
    if OPT['ldelay']:
        FL=48<<20
        b(f"""
s_add_u32 s28, s40, {FL}
s_addc_u32 s29, s41, 0
s_mov_b32 s30, 32768
s_mov_b32 s31, 0x20000
s_and_b32 s{sT}, s2, 255
s_lshl_b32 s89, s{sT}, 7
v_mov_b32 v61, 0
""")
        b("s_cmp_lt_u32 s2, 256")
        b("s_cbranch_scc0 K1_DLATE")
        b(f"s_cmp_lg_u32 s{sW}, 3")
        b("s_cbranch_scc1 K1_NODELAY")
        b(f"buffer_load_dword v199, v61, s[28:31], s89 offen sc1")
        b("s_branch K1_NODELAY")
        b.label("K1_DLATE")
        b(f"s_cmp_lg_u32 s{sW}, 0")
        b("s_cbranch_scc1 K1_DELAYB")
        b(f"buffer_load_dword v62, v61, s[28:31], s89 offen sc1")
        b(f"s_mov_b32 s{sIT}, 0")
        b("s_waitcnt vmcnt(0)")
        b(f"v_readfirstlane_b32 s{sLAST}, v62")
        b.label("K1_DPOLL")
        b(f"""
s_sleep {OPT['dsleep']}
buffer_load_dword v60, v61, s[28:31], s89 offen sc1
s_waitcnt vmcnt(0)
v_readfirstlane_b32 s{sT}, v60
s_cmp_lg_u32 s{sT}, s{sLAST}
s_cbranch_scc1 K1_DELAYB
s_add_u32 s{sIT}, s{sIT}, 1
s_cmp_lt_u32 s{sIT}, {OPT['dmax']}
s_cbranch_scc1 K1_DPOLL
""")
        b.label("K1_DELAYB")
        b("s_barrier")
        b.label("K1_NODELAY")
    if OPT['rot']:
        b(f"s_cmp_eq_u32 s{sW}, 3")
        b("s_cbranch_scc1 K1_SETUP")
        emit_ops(xops(0)); emit_ops(wops(0)); emit_ops(wops(1))
        b("s_branch K1_SETUP")
    b(f"s_cmp_eq_u32 s{sW}, 3")
    b("s_cbranch_scc0 K1_SETUP")
    b(f"v_lshrrev_b32 v3, 1, v0")
    b(f"v_and_b32 v4, 1, v0")
    b(f"v_lshlrev_b32 v4, 7, v4")
    b(f"s_and_b32 s{sT}, s{sH}, 7")
    b(f"s_mov_b32 s{sT2}, {(1<<16)//18+1}")
    b("s_cmp_lt_u32 s2, 256")
    b("s_cbranch_scc0 K1_TLATE")
    wtouch(0,164); xtouch(0,165); wtouch(1,166); wtouch(2,167); xtouch(1,168); wtouch(3,169); xtouch(2,170); wtouch(4,171)
    b("s_branch K1_SETUP")
    b.label("K1_TLATE")
    k0load()
    kvtouch(OPT['kvpfl'])
    xtouch(0,165); xtouch(1,168); xtouch(2,170)
    b.label("K1_SETUP")
    b(f"""
s_lshl_b32 s{sT}, s{sW}, 3
v_add_u32 v3, s{sT}, v2
v_lshlrev_b32 v4, 8, v3
v_and_b32 v5, 15, v3
v_xor_b32 v5, v1, v5
v_lshl_add_u32 v{DK[0]}, v5, 4, v4
v_add_u32 v5, 4, v3
v_and_b32 v5, 15, v5
v_xor_b32 v5, v1, v5
v_lshl_add_u32 v{DK[1]}, v5, 4, v4
v_lshlrev_b32 v5, 1, v2
v_xor_b32 v5, v1, v5
v_lshl_add_u32 v{DV[0]}, v5, 4, v4
v_lshlrev_b32 v5, 1, v2
v_add_u32 v5, 8, v5
v_xor_b32 v5, v1, v5
v_lshl_add_u32 v{DV[1]}, v5, 4, v4
""")
    b(f"""
v_bfe_u32 v3, v0, 2, 2
v_and_b32 v4, 1, v2
v_lshl_add_u32 v4, v4, 2, v3
v_lshl_add_u32 v5, v2, 3, v3
v_lshlrev_b32 v5, 8, v5
v_and_b32 v6, 3, v0
v_lshl_add_u32 v5, v6, 3, v5
v_add_u32 v5, {WB}, v5
""")
    for i in range(4):
        b(f"""
s_lshl_b32 s{sT}, s{sQH}, 1
s_add_u32 s{sT}, s{sT}, {i}
s_and_b32 s{sT}, s{sT}, 3
s_lshl_b32 s{sT2}, s{sDH}, 2
s_add_u32 s{sT}, s{sT}, s{sT2}
v_xor_b32 v6, s{sT}, v4
v_lshl_add_u32 v{qWA[i]}, v6, 5, v5
""")
    b(f"""
v_lshrrev_b32 v3, 1, v1
v_xor_b32 v3, v3, v2
v_lshlrev_b32 v3, 4, v3
v_lshl_add_u32 v3, v1, 7, v3
s_lshl_b32 s{sT}, s{sQH}, 13
v_add_u32 v{qXB[0]}, s{sT}, v3
v_xor_b32 v{qXB[1]}, 64, v{qXB[0]}
v_add_u32 v{qX9[0]}, 16384, v3
v_xor_b32 v{qX9[1]}, 64, v{qX9[0]}
""")
    for r in range(O0,O0+72): b(f"v_mov_b32 v{r}, 0")
    def qreads(k,fs):
        wb=(k%4)*8192; xb=XS[(k>>1)&1]; e=k&1
        o=[]
        for t in range(4):
            o.append(f"ds_read_b128 {vr(fs+16+4*t)}, v{qXB[e]} offset:{xb+t*2048}")
            o.append(f"ds_read_b64_tr_b16 {vr(fs+4*t,2)}, v{qWA[t]} offset:{wb}")
            o.append(f"ds_read_b64_tr_b16 {vr(fs+4*t+2,2)}, v{qWA[t]} offset:{wb+1024}")
        o.append(f"ds_read_b128 {vr(fs+32)}, v{qX9[e]} offset:{xb}")
        return o
    def qstep(p,dma):
        cur=FA[p&1]; nxt=FA[(p&1)^1]
        if OPT['qst']:
            b("s_memtime s[90:91]")
            b("s_waitcnt lgkmcnt(0)")
            b(f"s_lshl_b32 s92, s{sIT}, 2")
            b(f"s_add_u32 s92, s92, {p}")
            b("s_mov_b32 m0, s92")
            b("s_sub_u32 s90, s90, s61")
            b("v_writelane_b32 v200, s90, m0")
        rd=qreads(p+1,nxt)
        mf=[]
        for i in range(4):
            for t in range(4): mf.append(mfma(O0+16*t+4*i,cur+4*i,cur+16+4*t,O0+16*t+4*i))
            if i<2: mf.append(mfma(O9+4*i,cur+4*i,cur+32,O9+4*i))
        ops=[]
        if dma:
            if p%2==1: ops+=xops((p>>1)&1)
            ops+=wops(p)
        pos={}
        n=len(ops)
        for idx in range(n): pos[7+idx*10//max(n,1)]=ops[idx]
        for idx,m in enumerate(mf):
            b(m)
            for r_ in rd[2*idx:2*idx+2]: b(r_)
            if idx in pos:
                for l in pos[idx]: b(l)
    if OPT['qtwice']:
        b("s_mov_b32 s95, 0")
        b.label("K1_QAGAIN")
        b("s_cmp_eq_u32 s95, 0")
        b("s_cbranch_scc1 K1_QFIRST")
        b("s_barrier")
        b("s_memtime s[62:63]")
        b("s_memrealtime s[60:61]")
        b("s_waitcnt lgkmcnt(0)")
        b(f"s_cmp_eq_u32 s{sW}, 3")
        b("s_cbranch_scc1 K1_QFIRST")
        emit_ops(xops(0)); emit_ops(wops(0)); emit_ops(wops(1))
        b.label("K1_QFIRST")
    b(f"s_cmp_eq_u32 s{sW}, 3")
    b("s_cbranch_scc1 K1_Q3")
    if not OPT['rot']:
        b("s_barrier")
        if OPT['fst']: stamp(b,2)
        emit_ops(xops(0)); emit_ops(wops(0)); emit_ops(wops(1)); emit_ops(xops(1)); emit_ops(wops(2)); emit_ops(wops(3))
    elif OPT['fst']: stamp(b,2)
    b("s_waitcnt vmcnt(3)")
    b("s_barrier")
    if OPT['fst']: stamp(b,3)
    for l in qreads(0,FA[0]): b(l)
    emit_ops(xops(1)); emit_ops(wops(2)); emit_ops(wops(3))
    b(f"s_mov_b32 s{sIT}, 0")
    if OPT['thr']:
        b(f"s_lshr_b32 s{sSEL}, s2, 8")
        b(f"s_mul_i32 s{sSEL}, s{sSEL}, {OPT['thr']}")
    b.label("K1_QLOOP")
    for p in range(4):
        b(f"s_waitcnt vmcnt({12 if p%2==0 else 6}) lgkmcnt(0)")
        if OPT['thr']:
            lt=b.new('TH')
            b(f"s_cmp_lt_u32 s{sIT}, s{sSEL}")
            b(f"s_cbranch_scc0 {lt}")
            b("s_waitcnt vmcnt(0)")
            b.label(lt)
        b("s_barrier")
        qstep(p,True)
    b(f"s_add_u32 s{sIT}, s{sIT}, 1")
    b(f"s_cmp_lt_u32 s{sIT}, 4")
    b("s_cbranch_scc1 K1_QLOOP")
    for p in range(4):
        b(f"s_waitcnt vmcnt({[12,3,0,0][p]}) lgkmcnt(0)")
        b("s_barrier")
        qstep(p,False)
    b("s_branch K1_QDONE")
    b.label("K1_Q3")
    if OPT['rot']:
        if OPT['fst']: stamp(b,2)
        b("s_barrier")
        if OPT['fst']: stamp(b,3)
        for l in qreads(0,FA[0]): b(l)
        b(f"s_mov_b32 s{sIT}, 0")
        b("s_branch K1_QLOOP3")
    b("s_cmp_lt_u32 s2, 256")
    b("s_cbranch_scc0 K1_Q3L")
    b(f"s_waitcnt vmcnt({8-OPT['tw']})")
    b("s_barrier")
    if OPT['fst']: stamp(b,2)
    k0load()
    kvtouch(OPT['kvpf'])
    b("s_branch K1_Q3J")
    b.label("K1_Q3L")
    b("s_waitcnt vmcnt(0)")
    b("s_barrier")
    if OPT['fst']: stamp(b,2)
    b.label("K1_Q3J")
    b("s_barrier")
    if OPT['fst']: stamp(b,3)
    for l in qreads(0,FA[0]): b(l)
    b(f"s_mov_b32 s{sIT}, 0")
    b.label("K1_QLOOP3")
    if OPT['rot']:
        l1=b.new('W3'); l2=b.new('W3')
        b(f"s_cmp_eq_u32 s{sIT}, {OPT['k0it']}")
        b(f"s_cbranch_scc0 {l1}")
        k0load()
        b.label(l1)
        b(f"s_cmp_eq_u32 s{sIT}, {OPT['kvit']}")
        b(f"s_cbranch_scc0 {l2}")
        b("s_cmp_lt_u32 s2, 256")
        b(f"s_cbranch_scc0 {l2}L")
        kvtouch(OPT['kvpf'])
        b(f"s_branch {l2}")
        b.label(l2+"L")
        kvtouch(OPT['kvpfl'])
        b.label(l2)
    for p in range(4):
        b(f"s_waitcnt lgkmcnt(0)")
        b("s_barrier")
        qstep(p,False)
    b(f"s_add_u32 s{sIT}, s{sIT}, 1")
    b(f"s_cmp_lt_u32 s{sIT}, 5")
    b("s_cbranch_scc1 K1_QLOOP3")
    b.label("K1_QDONE")
    if OPT['ldelay']:
        ls=b.new('LS')
        b("s_cmp_lt_u32 s2, 256")
        b(f"s_cbranch_scc0 {ls}")
        b(f"s_cmp_lg_u32 s{sW}, 3")
        b(f"s_cbranch_scc1 {ls}")
        b("s_waitcnt vmcnt(0)")
        b("v_add_u32 v199, 1, v199")
        b("v_mov_b32 v198, 0")
        b(f"buffer_store_dword v199, v198, s[28:31], s89 offen sc1")
        b.label(ls)
    if OPT['qtwice']:
        b("s_waitcnt vmcnt(0) lgkmcnt(0)")
        b("s_add_u32 s95, s95, 1")
        b("s_cmp_lt_u32 s95, 2")
        b("s_cbranch_scc1 K1_QAGAIN")
    if not OPT['fst']: stamp(b,1)
    if OPT['qponly']:
        b("s_waitcnt vmcnt(0)")
        if OPT['qst']:
            b(f"s_lshl_b32 s{sT}, s2, 2")
            b(f"s_add_u32 s{sT}, s{sT}, s{sW}")
            b(f"s_lshl_b32 s{sT}, s{sT}, 8")
            b(f"s_add_u32 s{sT}, s{sT}, {60<<20}")
            b(f"s_mov_b32 s{sO+2}, 0x10000000")
            b("v_lshlrev_b32 v3, 2, v0")
            b(f"buffer_store_dword v200, v3, {sr(sO)}, s{sT} offen")
        for i in ((4,) if OPT['fst'] else (2,3,4)): stamp(b,i)
        dump_stamps(b,10,sO,50<<20)
        b("s_endpgm")
    b("s_waitcnt vmcnt(0) lgkmcnt(0)")
    b("s_barrier")
    b(f"s_mov_b32 s{sSOFF}, 0")
    dma_slot(b,0)
    b(f"s_mov_b32 s{sSEL}, {f2u(CSC)}")
    b(f"""
v_lshlrev_b32 v3, 8, v1
v_and_b32 v76, 1, v2
v_lshl_add_u32 v3, v76, 3, v3
v_add_u32 v3, {QB}, v3
v_lshrrev_b32 v77, 1, v2
s_lshl_b32 s{sT2}, s{sQH}, 14
v_add_u32 v78, s{sT2}, v3
""")
    for i in range(4):
        b(f"""
s_lshl_b32 s{sIT}, s{sQH}, 1
s_add_u32 s{sIT}, s{sIT}, {i}
s_and_b32 s{sIT}, s{sIT}, 3
s_lshl_b32 s{sT2}, s{sDH}, 2
s_add_u32 s{sIT}, s{sIT}, s{sT2}
s_lshl_b32 s{sIT}, s{sIT}, 1
v_add_u32 v79, s{sIT}, v77
v_xor_b32 v79, v79, v1
v_lshlrev_b32 v79, 4, v79
v_add_u32 v80, v79, v78
""")
        for t in range(4):
            acc=O0+16*t+4*i
            for r in range(4): b(f"v_mul_f32 v{acc+r}, s{sSEL}, v{acc+r}")
            b(f"v_cvt_pk_bf16_f32 v{acc}, v{acc}, v{acc+1}")
            b(f"v_cvt_pk_bf16_f32 v{acc+1}, v{acc+2}, v{acc+3}")
            b(f"ds_write_b64 v80, {vr(acc,2)} offset:{t*4096}")
        if i<2:
            acc=O9+4*i
            b(f"v_add_u32 v82, v79, v3")
            for r in range(4): b(f"v_mul_f32 v{acc+r}, s{sSEL}, v{acc+r}")
            b(f"v_cvt_pk_bf16_f32 v{acc}, v{acc}, v{acc+1}")
            b(f"v_cvt_pk_bf16_f32 v{acc+1}, v{acc+2}, v{acc+3}")
            b(f"ds_write_b64 v82, {vr(acc,2)} offset:32768")
    for s in range(4):
        b(f"""
v_add_u32 v79, {4*s}, v2
v_xor_b32 v79, v79, v1
v_lshlrev_b32 v79, 4, v79
v_lshl_add_u32 v{KA[s]}, v1, 8, v79
""")
    b(f"s_lshl_b32 s{sT2}, s{sW}, 13")
    b(f"s_add_u32 s{sT2}, s{sT2}, {QB}")
    for s in range(4):
        b(f"v_add_u32 v{S0[1]+s}, s{sT2}, v{KA[s]}")
        b(f"v_add_u32 v{S1[1]+s}, {K0B}, v{KA[s]}")
    b("s_waitcnt lgkmcnt(0)")
    b("s_barrier")
    for s in range(4): b(f"ds_read_b128 {vr(Q0+4*s)}, v{S0[1]+s} offset:0")
    for s in range(4): b(f"ds_read_b128 {vr(Q1+4*s)}, v{S0[1]+s} offset:4096")
    for s in range(4): b(f"ds_read_b128 {vr(Q9+4*s)}, v{KA[s]} offset:{QB+32768}")
    b(f"""
v_bfe_u32 v3, v0, 2, 2
v_and_b32 v4, 1, v2
v_lshl_add_u32 v4, v4, 2, v3
v_lshl_add_u32 v5, v2, 2, v3
v_lshlrev_b32 v5, 8, v5
v_and_b32 v6, 3, v0
v_lshl_add_u32 v5, v6, 3, v5
v_add_u32 v5, 8192, v5
s_lshl_b32 s{sT}, s{sW}, 1
""")
    for i in range(8):
        b(f"""
s_add_u32 s{sT2}, s{sT}, {i}
s_and_b32 s{sT2}, s{sT2}, 7
v_xor_b32 v6, s{sT2}, v4
v_lshl_add_u32 v{VA[i]}, v6, 5, v5
""")
    b(f"""
v_lshlrev_b32 v{P9A}, 4, v0
v_add_u32 v{P9A}, {P9B}, v{P9A}
v_xor_b32 v{BP16}, 16, v0
v_lshlrev_b32 v{BP16}, 2, v{BP16}
""")
    for r in range(O0,O0+72): b(f"v_mov_b32 v{r}, 0")
    for r in L0+L1+L9: b(f"v_mov_b32 v{r}, 0")
    b("s_waitcnt lgkmcnt(0)")
    b(f"v_xor_b32 v{BP32}, 32, v0")
    b(f"v_lshlrev_b32 v{BP32}, 2, v{BP32}")
    b("s_barrier")
    if OPT['dbg_q']:
        b(f"""
s_mul_i32 s{sT}, s2, {4*12*1024}
s_mul_i32 s{sT2}, s{sW}, {12*1024}
s_add_u32 s{sT}, s{sT}, s{sT2}
v_lshlrev_b32 v3, 4, v0
s_mov_b32 s{sO+2}, 0x10000000
""")
        for f in range(12):
            b(f"buffer_store_dwordx4 {vr(Q0+4*f)}, v3, {sr(sO)}, s{sT} offen")
            b(f"s_add_u32 s{sT}, s{sT}, 1024")
        b("s_waitcnt vmcnt(0)")
        b("s_branch K1_END")
    LA=OPT['attla']
    for sl in range(1,LA):
        b(f"s_mov_b32 s{sSOFF}, {sl*8192}")
        dma_slot(b,sl)
    b(f"s_mov_b32 s{sSOFF}, {LA*8192}")
    pb=P()
    for kt in range(2):
        for s in range(4):
            kf=KF[(kt*4+s)%len(KF)]
            pb(f"ds_read_b128 {vr(kf)}, v{S1[1]+s} offset:{kt*4096}")
            for (Sx,Qx) in ((S0[0],Q0),(S1[0],Q1),(S9,Q9)):
                d=Sx+4*kt
                pb(mfma(d,kf,Qx+4*s,'0' if s==0 else d))
    o,ms,q=finish(pb.ins); b.add(o)
    TT=((S0[0],NM0),(S1[0],NM1),(S9,NM9))
    for (Sx,NM) in TT:
        b(f"""
v_max3_f32 v{NM}, v{Sx}, v{Sx+1}, v{Sx+2}
v_max3_f32 v{NM+2}, v{Sx+3}, v{Sx+4}, v{Sx+5}
v_max3_f32 v{NM}, v{NM}, v{Sx+6}, v{Sx+7}
v_max_f32 v{NM}, v{NM}, v{NM+2}
ds_bpermute_b32 v{NM+1}, v{BP16}, v{NM}
""")
    b("s_waitcnt lgkmcnt(0)")
    for (Sx,NM) in TT:
        b(f"v_max_f32 v{NM}, v{NM}, v{NM+1}")
        b(f"ds_bpermute_b32 v{NM+1}, v{BP32}, v{NM}")
    b("s_waitcnt lgkmcnt(0)")
    for (Sx,NM) in TT:
        b(f"""
v_max_f32 v{NM}, v{NM}, v{NM+1}
v_sub_f32 v{NM}, 0, v{NM}
v_mov_b32 v{NM+1}, v{NM}
v_mov_b32 v{NM+2}, v{NM}
v_mov_b32 v{NM+3}, v{NM}
""")
        for r in range(8): b(f"v_add_f32 v{Sx+r}, v{Sx+r}, v{NM}")
    def softmax_seq(S,L):
        for r in range(8): b(f"v_exp_f32 v{S+r}, v{S+r}")
        for r in range(8): b(f"v_add_f32 v{L[r&1]}, v{L[r&1]}, v{S+r}")
        for r in range(4): b(f"v_cvt_pk_bf16_f32 v{S+r}, v{S+2*r}, v{S+2*r+1}")
    softmax_seq(S0[0],L0)
    b(f"s_cmp_lg_u32 s{sW}, 0")
    b("s_cbranch_scc1 K1_NOP9")
    softmax_seq(S9,L9)
    b(f"ds_write_b128 v{P9A}, {vr(S9)} offset:0")
    b.label("K1_NOP9")
    b(f"s_mov_b32 s{sIT}, 0")
    if not OPT['prioatt']: b("s_setprio 0")
    if OPT['prioL']:
        b("s_cmp_lt_u32 s2, 256")
        b("s_cbranch_scc1 K1_PL")
        b(f"s_setprio {OPT['prioL']}")
        b.label("K1_PL")
    stamp(b,2)
    LA=OPT['attla']
    assert LA==3
    b("s_waitcnt vmcnt(10) lgkmcnt(0)")
    b("s_barrier")
    for s_ in range(4): b(f"ds_read_b128 {vr(KF[s_])}, v{KA[s_]} offset:0")
    bodies={}
    for p in range(4):
        for ver in ('plain','t9a','t9b')+(('final',) if p==3 else ()):
            if ver=='t9a' or ver=='t9b':
                pass
            o,ms=schedule(att_step(p,ver),lds_lat=OPT['ldslat'],lds_ahead=(OPT['lah'] if ver!='final' else 99),lds_per_gap=(OPT['lpg'] if ver!='final' else 9))
            if ver!='final' and not OPT['nodma']:
                o=place_macros(o,dma_macros(p,LA),dmpos(ver))
            if OPT['noexp']: o=[x for x in o if x.kind!='trans']
            if OPT['novalu']: o=[x for x in o if x.kind not in('trans','valu')]
            if OPT['nolds']: o=[x for x in o if x.kind not in('dsr','dsw')]
            o,q=insert_lgkm(o)
            bodies[(p,ver)]=o
            if p==0 or ver=='final': print(f"; step p={p} {ver}: est {ms} cycles, {len(o)} instrs",file=sys.stderr)
    b.label("K1_LOOP")
    b(f"s_cmp_eq_u32 s{sIT}, 7")
    b(f"s_cselect_b32 s{sLAST}, 1, 0")
    for p in range(4):
        d1=b.new('D'); d2=b.new('D')
        lastcnt=[6,4,2,0][p]
        if lastcnt==6:
            b(f"s_waitcnt vmcnt(6) lgkmcnt(0)")
            if not OPT['nobar']: b("s_barrier")
        else:
            if p!=0: b(f"s_cmp_eq_u32 s{sLAST}, 1")
            b(f"s_cbranch_scc1 K1_LW_{p}")
            b(f"s_waitcnt vmcnt(6) lgkmcnt(0)")
            if not OPT['nobar']: b("s_barrier")
            b.label(f"K1_LWB_{p}")
        if p==0 and OPT['wopf']:
            lw=b.new('WO')
            b(f"s_cmp_eq_u32 s{sIT}, {OPT['wotit']}")
            b(f"s_cbranch_scc0 {lw}")
            b(f"""
s_lshr_b32 s{sT}, s{sH}, 3
s_lshl_b32 s{sT}, s{sT}, 5
s_bfe_u32 s{sT2}, s2, 0x50003
s_add_u32 s{sT}, s{sT}, s{sT2}
s_mul_i32 s{sT}, s{sT}, 40960
s_add_u32 s80, s84, s{sT}
s_addc_u32 s81, s85, 0
s_mov_b32 s82, 40960
s_mov_b32 s83, 0x20000
v_lshlrev_b32 v3, 7, v0
s_lshl_b32 s{sT}, s{sW}, 13
buffer_load_dword v1, v3, s[80:83], s{sT} offen
s_mov_b32 s{sT}, 32768
buffer_load_dword v2, v3, s[80:83], s{sT} offen
""")
            b.label(lw)
        if OPT['ast']:
            b("s_memrealtime s[90:91]")
            b("s_waitcnt lgkmcnt(0)")
            b(f"s_lshl_b32 s92, s{sIT}, 2")
            b(f"s_add_u32 s92, s92, {p}")
            b("s_mov_b32 m0, s92")
            b("s_nop 1")
            b("v_writelane_b32 v237, s90, m0")
        wa=0 if p%2==0 else 2
        if not OPT['not9']:
            b(f"s_cmp_eq_u32 s{sW}, {wa}")
            b(f"s_cbranch_scc1 K1_T9A_{p}")
            b(f"s_cmp_eq_u32 s{sW}, {wa+1}")
            b(f"s_cbranch_scc1 K1_T9B_{p}")
        b.add(bodies[(p,'plain')])
        b.label(f"K1_NEXT_{p}")
    b(f"s_add_u32 s{sIT}, s{sIT}, 1")
    b("s_branch K1_LOOP")
    for p in range(4):
        b.label(f"K1_T9A_{p}")
        b.add(bodies[(p,'t9a')])
        b(f"s_branch K1_NEXT_{p}")
        b.label(f"K1_T9B_{p}")
        b.add(bodies[(p,'t9b')])
        b(f"s_branch K1_NEXT_{p}")
    for p in (1,2,3):
        b.label(f"K1_LW_{p}")
        b(f"s_waitcnt vmcnt({[6,4,2,0][p]}) lgkmcnt(0)")
        b("s_barrier")
        if p==3: b("s_branch K1_FINAL")
        else: b(f"s_branch K1_LWB_{p}")
    b.label("K1_FINAL")
    b.add(bodies[(3,'final')])
    b("s_waitcnt lgkmcnt(0)")
    stamp(b,3)
    if OPT['ast']:
        b(f"s_lshl_b32 s{sT}, s2, 2")
        b(f"s_add_u32 s{sT}, s{sT}, s{sW}")
        b(f"s_lshl_b32 s{sT}, s{sT}, 8")
        b(f"s_add_u32 s{sT}, s{sT}, {60<<20}")
        b(f"s_mov_b32 s{sO+2}, 0x10000000")
        b("v_lshlrev_b32 v3, 2, v0")
        b(f"buffer_store_dword v237, v3, {sr(sO)}, s{sT} offen")
        b(f"s_mov_b32 s{sO+2}, {O_BYTES}")
    LL=(L0,L1,L9)
    for L in LL:
        b(f"v_add_f32 v{L[0]}, v{L[0]}, v{L[1]}")
        b(f"ds_bpermute_b32 v{L[1]}, v{BP16}, v{L[0]}")
    b("s_waitcnt lgkmcnt(0)")
    for L in LL:
        b(f"v_add_f32 v{L[0]}, v{L[0]}, v{L[1]}")
        b(f"ds_bpermute_b32 v{L[1]}, v{BP32}, v{L[0]}")
    b("s_waitcnt lgkmcnt(0)")
    for L in LL: b(f"v_add_f32 v{L[0]}, v{L[0]}, v{L[1]}")
    THR=f2u(2.0**60) if not OPT['force_slow'] else f2u(0.5)
    b(f"""
s_mov_b32 s{sSEL}, {THR}
v_cmp_ngt_f32 vcc, s{sSEL}, v{L0[0]}
s_mov_b64 s[76:77], vcc
v_cmp_ngt_f32 vcc, s{sSEL}, v{L1[0]}
s_or_b64 s[76:77], s[76:77], vcc
s_cmp_lg_u64 s[76:77], 0
s_cselect_b32 s{sT}, 0x7f800000, 0
v_mov_b32 v1, s{sT}
v_max_f32 v{L9[0]}, v{L9[0]}, v1
""")
    b(f"""
s_lshl_b32 s{sT}, s{sW}, 8
v_lshlrev_b32 v3, 2, v0
v_add_u32 v3, {L9B}, v3
v_add_u32 v1, s{sT}, v3
ds_write_b32 v1, v{L9[0]}
v_rcp_f32 v{L0[0]}, v{L0[0]}
v_rcp_f32 v{L1[0]}, v{L1[0]}
s_waitcnt lgkmcnt(0)
s_barrier
ds_read_b32 v{S9}, v3
ds_read_b32 v{S9+1}, v3 offset:256
ds_read_b32 v{S9+2}, v3 offset:512
ds_read_b32 v{S9+3}, v3 offset:768
""")
    b(f"""
s_lshl_b32 s{sT}, s{sBR}, 3
s_add_u32 s{sT}, s{sT}, s{sB}
s_mul_i32 s{sT}, s{sT}, 9
s_lshl_b32 s{sT2}, s{sW}, 1
s_add_u32 s{sSEL}, s{sT}, s{sT2}
s_lshl_b32 s{sSEL}, s{sSEL}, 5
s_add_u32 s{sSEL}, s{sSEL}, s{sH}
s_lshl_b32 s{sSEL}, s{sSEL}, 12
s_add_u32 s{sT}, s{sT}, 8
s_lshl_b32 s{sT}, s{sT}, 5
s_add_u32 s{sT}, s{sT}, s{sH}
s_lshl_b32 s{sIT}, s{sT}, 12
v_lshlrev_b32 v3, 4, v0
s_waitcnt lgkmcnt(0)
v_add_f32 v{S9}, v{S9}, v{S9+1}
v_add_f32 v{S9+2}, v{S9+2}, v{S9+3}
v_add_f32 v{L9[0]}, v{S9}, v{S9+2}
s_mov_b32 s{sT}, {THR}
v_cmp_ngt_f32 vcc, s{sT}, v{L9[0]}
v_rcp_f32 v{L9[0]}, v{L9[0]}
s_cmp_lg_u64 vcc, 0
s_cbranch_scc1 K1_SLOW
""")
    def ostore(r):
        if OPT['dupst']==2:
            b(f"buffer_store_dwordx4 {vr(r)}, v3, {sr(sO)}, s{sLAST} offen")
        elif OPT['dupst']==3:
            b(f"buffer_store_dwordx4 {vr(r)}, v3, {sr(sO)}, s{sLAST} offen")
            b(f"buffer_store_dwordx4 {vr(r)}, v3, {sr(sO)}, s{sLAST} offen sc1")
        elif OPT['dupst']==4:
            b(f"buffer_store_dwordx4 {vr(r)}, v3, {sr(sO)}, s{sLAST} offen sc0 sc1")
        else:
            b(f"buffer_store_dwordx4 {vr(r)}, v3, {sr(sO)}, s{sLAST} offen sc1")
            if OPT['dupst']: b(f"buffer_store_dwordx4 {vr(r)}, v3, {sr(sO)}, s{sLAST} offen")
    def pack(acc,i,L):
        for r in range(8): b(f"v_mul_f32 v{acc+4*i+r}, v{acc+4*i+r}, v{L}")
        b(f"v_cvt_pk_bf16_f32 v{acc+4*i}, v{acc+4*i}, v{acc+4*i+1}")
        b(f"v_cvt_pk_bf16_f32 v{acc+4*i+1}, v{acc+4*i+2}, v{acc+4*i+3}")
        b(f"v_cvt_pk_bf16_f32 v{acc+4*i+2}, v{acc+4*i+4}, v{acc+4*i+5}")
        b(f"v_cvt_pk_bf16_f32 v{acc+4*i+3}, v{acc+4*i+6}, v{acc+4*i+7}")
    for i in (0,2,4,6):
        b(f"""
s_add_u32 s{sT2}, s{sW}, {i//2}
s_and_b32 s{sT2}, s{sT2}, 3
s_lshl_b32 s{sT2}, s{sT2}, 10
s_add_u32 s{sLAST}, s{sT2}, s{sSEL}
""")
        pack(O0,i,L0[0])
        ostore(O0+4*i)
        b(f"s_add_u32 s{sLAST}, s{sLAST}, {32*4096}")
        pack(O1,i,L1[0])
        ostore(O1+4*i)
    b(f"""
s_lshl_b32 s{sT2}, s{sW}, 10
s_add_u32 s{sLAST}, s{sT2}, s{sIT}
""")
    pack(O9,0,L9[0])
    ostore(O9)
    b.label("K1_STORED")
    sDBG=28
    b(f"""
s_mov_b32 s{sDBG}, s98
s_mov_b32 s{sDBG+1}, s99
s_mov_b32 s{sDBG+2}, 256
s_mov_b32 s{sDBG+3}, 0x20000
s_waitcnt vmcnt(0)
s_barrier
s_cmp_lg_u32 s{sW}, 0
s_cbranch_scc1 K1_SIG
""")
    if OPT['wsf']:
        flag_addr(b,4,6)
        b(f"""
s_and_b32 s{sT}, s{sH}, 7
s_mov_b32 m0, s{sT}
v_add_u32 v6, 1, v238
v_cmp_eq_u32 vcc, s{sT}, v0
s_and_saveexec_b64 s[78:79], vcc
buffer_store_dword v6, v4, s[72:75], 0 offen sc0 sc1
s_mov_b64 exec, -1
""")
    else:
        b(f"""
s_lshl_b32 s{sT}, s{sBR}, 3
s_add_u32 s{sT}, s{sT}, s{sB}
s_lshl_b32 s{sT}, s{sT}, 2
s_add_u32 s{sT}, s{sT}, 128
s_lshl_b32 s{sT2}, 1, s{sH}
v_mov_b32 v4, s{sT2}
v_mov_b32 v5, 0
s_mov_b64 exec, 1
buffer_atomic_or v4, v5, {sr(sDBG)}, s{sT} offen sc1
s_mov_b64 exec, -1
""")
    b.label("K1_SIG")
    b.label("K1_OPONLY")
    stamp(b,4)
    if OPT['op2']:
        b("s_cmp_lt_u32 s2, 256")
        b("s_cbranch_scc0 K1_FIN")
        op_phase2(b)
    else:
        if not OPT['opown']:
            b("s_cmp_lt_u32 s2, 256")
            b("s_cbranch_scc0 K1_FIN")
        if OPT['opmode']: op_phase(b)
    b.label("K1_FIN")
    b("s_branch K1_FIN2")
    b("s_branch K1_SLOWEND")
    b.label("K1_SLOW")
    QC=S0[0]
    SS_=S1[0]
    M_,LL_,MT,AL=L0[0],L0[1],L1[0],L1[1]
    s77=77
    b(f"s_mov_b32 s76, s{sSEL}")
    b(f"s_mov_b32 s77, s{sIT}")
    b("s_mov_b32 s78, 0")
    b.label("K1_SPASS")
    for pi,Qx in enumerate((Q0,Q1,Q9)):
        l_=b.new('SP')
        b(f"s_cmp_eq_u32 s78, {pi}")
        b(f"s_cbranch_scc0 {l_}")
        for r in range(16): b(f"v_mov_b32 v{QC+r}, v{Qx+r}")
        b.label(l_)
    for r in range(32): b(f"v_mov_b32 v{O0+r}, 0")
    b(f"v_mov_b32 v{M_}, 0xff800000")
    b(f"v_mov_b32 v{LL_}, 0")
    b(f"s_mov_b32 s{sSOFF}, 0")
    b.label("K1_STILE")
    b("s_barrier")
    b(f"""
s_mov_b32 m0, s{sM0}
s_nop 0
buffer_load_dwordx4 v{DK[0]}, {sr(sK)}, s{sSOFF} offen lds
buffer_load_dwordx4 v{DK[1]}, {sr(sK)}, s{sSOFF} offen offset:1024 lds
s_add_u32 m0, s{sM0}, 8192
s_nop 0
buffer_load_dwordx4 v{DV[0]}, {sr(sV)}, s{sSOFF} offen lds
buffer_load_dwordx4 v{DV[1]}, {sr(sV)}, s{sSOFF} offen offset:1024 lds
s_waitcnt vmcnt(0)
s_barrier
""")
    for kt in range(2):
        for s_ in range(4):
            b(f"ds_read_b128 {vr(KF[s_])}, v{KA[s_]} offset:{kt*4096}")
        b("s_waitcnt lgkmcnt(0)")
        for s_ in range(4):
            b(mfma(SS_+4*kt,KF[s_],QC+4*s_,'0' if s_==0 else SS_+4*kt))
    b("s_nop 7")
    b(f"""
v_max3_f32 v{MT}, v{SS_}, v{SS_+1}, v{SS_+2}
v_max3_f32 v{MT}, v{MT}, v{SS_+3}, v{SS_+4}
v_max3_f32 v{MT}, v{MT}, v{SS_+5}, v{SS_+6}
v_max_f32 v{MT}, v{MT}, v{SS_+7}
ds_bpermute_b32 v{AL}, v{BP16}, v{MT}
s_waitcnt lgkmcnt(0)
v_max_f32 v{MT}, v{MT}, v{AL}
ds_bpermute_b32 v{AL}, v{BP32}, v{MT}
s_waitcnt lgkmcnt(0)
v_max_f32 v{MT}, v{MT}, v{AL}
v_max_f32 v{MT}, v{MT}, v{M_}
v_sub_f32 v{AL}, v{M_}, v{MT}
v_exp_f32 v{AL}, v{AL}
v_mov_b32 v{M_}, v{MT}
""")
    for r in range(8): b(f"v_sub_f32 v{SS_+r}, v{SS_+r}, v{MT}")
    for r in range(8): b(f"v_exp_f32 v{SS_+r}, v{SS_+r}")
    b(f"v_mul_f32 v{LL_}, v{LL_}, v{AL}")
    for r in range(8): b(f"v_add_f32 v{LL_}, v{LL_}, v{SS_+r}")
    for r in range(4): b(f"v_cvt_pk_bf16_f32 v{SS_+r}, v{SS_+2*r}, v{SS_+2*r+1}")
    for r in range(32): b(f"v_mul_f32 v{O0+r}, v{O0+r}, v{AL}")
    for i in range(8):
        b(f"ds_read_b64_tr_b16 {vr(VF[0],2)}, v{VA[i]} offset:0")
        b(f"ds_read_b64_tr_b16 {vr(VF[0]+2,2)}, v{VA[i]} offset:4096")
        b("s_waitcnt lgkmcnt(0)")
        b(mfma(O0+4*i,VF[0],SS_,O0+4*i))
    b(f"s_add_u32 s{sSOFF}, s{sSOFF}, 8192")
    b(f"s_cmp_lt_u32 s{sSOFF}, 262144")
    b("s_cbranch_scc1 K1_STILE")
    b(f"""
ds_bpermute_b32 v{AL}, v{BP16}, v{LL_}
s_waitcnt lgkmcnt(0)
v_add_f32 v{LL_}, v{LL_}, v{AL}
ds_bpermute_b32 v{AL}, v{BP32}, v{LL_}
s_waitcnt lgkmcnt(0)
v_add_f32 v{LL_}, v{LL_}, v{AL}
v_rcp_f32 v{LL_}, v{LL_}
s_nop 7
""")
    b("s_cmp_eq_u32 s78, 2")
    b("s_cbranch_scc1 K1_SP2")
    b(f"s_mul_i32 s{sIT}, s78, {32*4096}")
    b(f"s_add_u32 s{sIT}, s{sIT}, s76")
    for i in (0,2,4,6):
        b(f"""
s_add_u32 s{sT2}, s{sW}, {i//2}
s_and_b32 s{sT2}, s{sT2}, 3
s_lshl_b32 s{sT2}, s{sT2}, 10
s_add_u32 s{sLAST}, s{sT2}, s{sIT}
""")
        pack(O0,i,LL_)
        ostore(O0+4*i)
    b("s_add_u32 s78, s78, 1")
    b("s_waitcnt vmcnt(0)")
    b("s_branch K1_SPASS")
    b.label("K1_SP2")
    b(f"s_lshl_b32 s{sT2}, s{sW}, 10")
    b(f"s_add_u32 s{sLAST}, s{sT2}, s77")
    pack(O0,0,LL_)
    ostore(O0)
    b("s_branch K1_STORED")
    b.label("K1_SLOWEND")
    b.label("K1_FIN2")
    if OPT['ost']:
        b(f"s_lshl_b32 s{sT}, s2, 2")
        b(f"s_add_u32 s{sT}, s{sT}, s{sW}")
        b(f"s_lshl_b32 s{sT}, s{sT}, 8")
        b(f"s_add_u32 s{sT}, s{sT}, {60<<20}")
        b(f"s_mov_b32 s{sO+2}, 0x10000000")
        b("v_lshlrev_b32 v3, 2, v0")
        b(f"buffer_store_dword v240, v3, {sr(sO)}, s{sT} offen")
    if OPT['stamps']:
        b("s_waitcnt vmcnt(0)")
        stamp(b,9)
        dump_stamps(b,10,sO,50<<20)
    b.label("K1_END")
    b("s_endpgm")
    ins,added=fix_hazards(b.ins)
    print(f"; k1: {len(ins)} instrs, {added} nop states added",file=sys.stderr)
    return ins

def op_phase(b):
    sWO=8; sOF=12; sPT=16; sOUT=20; sDBG=28
    sNT=45; sHQ=46; sBI=51; sB0=52; sB9=53; sWK2=54; sWM2=55; sBK=56; sITEM=57; sPOLL=58
    ACC0,ACC1,ACC9=4,24,44
    BF=64; AF=[160,180]
    WAd=[216,217,218,219,220]; DWO=[221,222,223,224,225]; VL=210; WAd2=[211,212,213,214,215]
    UNIT=20480
    bsc=' sc1' if OPT['bsc1'] else ''
    b(f"s_setprio 0")
    b(f"""
s_and_b32 s{sNT}, s{sH}, 7
s_lshr_b32 s{sHQ}, s{sH}, 3
v_and_b32 v1, 15, v0
v_lshrrev_b32 v2, 4, v0
v_lshlrev_b32 v{VL}, 4, v0
s_mov_b32 s{sT2}, {(1<<16)//10+1}
""")
    for e in range(5):
        b(f"""
v_add_u32 v3, {64*e}, v0
v_mul_u32_u24 v4, s{sT2}, v3
v_lshrrev_b32 v4, 16, v4
v_mul_u32_u24 v5, 10, v4
v_sub_u32 v5, v3, v5
v_mul_u32_u24 v4, 1280, v4
v_lshl_add_u32 v{DWO[e]}, v5, 4, v4
""")
        if 0<e<4: b(f"v_subrev_u32 v{DWO[e]}, {e*1024}, v{DWO[e]}")
    b(f"""
v_bfe_u32 v3, v0, 2, 2
v_lshl_add_u32 v3, v2, 2, v3
v_mul_u32_u24 v3, 160, v3
v_and_b32 v4, 3, v0
v_lshl_add_u32 v3, v4, 3, v3
""")
    for i in range(5):
        b(f"""
s_add_u32 s{sT}, s{sW}, {i}
s_cmp_ge_u32 s{sT}, 5
s_cselect_b32 s{sT2}, 5, 0
s_sub_u32 s{sT}, s{sT}, s{sT2}
s_mov_b32 s{33+i}, s{sT}
s_lshl_b32 s{sT}, s{sT}, 5
v_add_u32 v{WAd[i]}, s{sT}, v3
v_add_u32 v{WAd2[i]}, {2*24576}, v{WAd[i]}
""")
    b(f"""
s_mul_i32 s{sT}, s{sHQ}, {1024*1280}
s_mul_i32 s{sT2}, s{sNT}, 160
s_add_u32 s{sT}, s{sT}, s{sT2}
s_add_u32 s{sWO}, s84, s{sT}
s_addc_u32 s{sWO+1}, s85, 0
s_sub_u32 s{sWO+2}, 5242880, s{sT}
s_mov_b32 s{sWO+3}, 0x20000
s_mov_b32 s{sOF}, s40
s_mov_b32 s{sOF+1}, s41
s_mov_b32 s{sOF+2}, {O_BYTES}
s_mov_b32 s{sOF+3}, 0x20000
s_add_u32 s{sPT}, s40, {WS_PART}
s_addc_u32 s{sPT+1}, s41, 0
s_mov_b32 s{sPT+2}, {PART_BYTES}
s_mov_b32 s{sPT+3}, 0x20000
s_mov_b32 s{sOUT}, s96
s_mov_b32 s{sOUT+1}, s97
s_mov_b32 s{sOUT+2}, {8*144*1280*2}
s_mov_b32 s{sOUT+3}, 0x20000
s_mov_b32 s{sITEM}, 0
""")
    b.label("OP_ITEM")
    UN=24576
    b(f"""
s_lshl_b32 s{sBI}, s{sITEM}, {2 if not OPT['opown'] else 0}
{"s_add_u32 s%d, s%d, s%d"%(sBI,sBI,sB) if not OPT['opown'] else "s_mov_b32 s%d, s%d"%(sBI,sB)}
s_mul_i32 s{sWK2}, s{sW}, {32*1280}
s_mul_i32 s{sT}, s{sNT}, {128*1280}
s_add_u32 s{sWK2}, s{sWK2}, s{sT}
s_mul_i32 s{sWM2}, s{sW}, 5120
s_mul_i32 s{sBK}, s{sW}, {32*1280}
s_add_u32 s{sBK}, s{sBK}, {8*128*1280}
""")
    def wunit(slot):
        b(f"s_add_u32 m0, s{sWM2}, {slot*UN}")
        b("s_nop 0")
        for e in range(4):
            b(f"buffer_load_dwordx4 v{DWO[e]}, {sr(sWO)}, s{sWK2} offen offset:{e*1024} lds")
        b(f"s_add_u32 m0, m0, 4096")
        b(f"s_add_u32 s{sT}, s{sWK2}, {128*1280}")
        b(f"buffer_load_dwordx4 v{DWO[4]}, {sr(sWO)}, s{sWK2} offen lds")
        b(f"s_cmp_ge_u32 s{sT}, s{sBK}")
        b(f"s_cselect_b32 s{sT2}, {1024*1280}, 0")
        b(f"s_sub_u32 s{sWK2}, s{sT}, s{sT2}")
    s9K=59
    def t9unit(slot):
        b(f"s_lshl_b32 s{sT}, s{sW}, 10")
        b(f"s_add_u32 m0, s{sT}, {slot*UN+20480}")
        b(f"s_add_u32 s{sT2}, s{sB9}, s{s9K}")
        b(f"buffer_load_dwordx4 v{VL}, {sr(sOF)}, s{sT2} offen{bsc} lds")
        b(f"s_add_u32 s{s9K}, s{s9K}, 4096")
        b(f"s_and_b32 s{s9K}, s{s9K}, 32767")
    b("s_barrier")
    LB=OPT['oplb']; LW=OPT['oplw']
    for u_ in range(LW): wunit(u_)
    for r in range(4,56): b(f"v_mov_b32 v{r}, 0")
    if OPT['oponly']: b("s_branch OP_WAITED")
    b(f"s_cmp_lg_u32 s{sW}, 0")
    b("s_cbranch_scc1 OP_WAITED")
    b(f"""
s_lshl_b32 s{sT}, s{sBR}, 3
s_add_u32 s{sT}, s{sT}, s{sBI}
s_lshl_b32 s{sT}, s{sT}, 2
s_add_u32 s{sT}, s{sT}, 128
s_lshl_b32 s{sLAST}, s{sHQ}, 3
s_mov_b32 s{sPOLL}, 0
v_mov_b32 v61, 0
s_mov_b64 exec, 1
""")
    b.label("OP_POLL")
    b(f"""
{"buffer_load_dword v60, v61, "+sr(sDBG)+f", s{sT} offen sc1" if OPT['pollld'] else "v_mov_b32 v60, 0"+chr(10)+"buffer_atomic_or v60, v61, "+sr(sDBG)+f", s{sT} offen sc0 sc1"}
s_waitcnt vmcnt(0)
v_readfirstlane_b32 s{sT2}, v60
s_lshr_b32 s{sT2}, s{sT2}, s{sLAST}
s_and_b32 s{sT2}, s{sT2}, 255
s_cmp_eq_u32 s{sT2}, 255
s_cbranch_scc1 OP_POLLED
s_add_u32 s{sPOLL}, s{sPOLL}, 1
s_cmp_lt_u32 s{sPOLL}, 20000
s_cbranch_scc0 OP_POLLED
s_sleep {OPT['psleep']}
s_branch OP_POLL
""")
    b.label("OP_POLLED")
    b("s_mov_b64 exec, -1")
    b.label("OP_WAITED")
    b("s_barrier")
    if OPT['stamps']:
        l=b.new('ST'); b(f"s_cmp_eq_u32 s{sITEM}, 0"); b(f"s_cbranch_scc0 {l}a"); stamp(b,5); b(f"s_branch {l}b"); b.label(l+'a'); stamp(b,7); b.label(l+'b')
    b(f"""
s_lshl_b32 s{sT}, s{sBR}, 3
s_add_u32 s{sT}, s{sT}, s{sBI}
s_mul_i32 s{sT}, s{sT}, 9
s_lshl_b32 s{sT2}, s{sW}, 1
s_add_u32 s{sB0}, s{sT}, s{sT2}
s_lshl_b32 s{sB0}, s{sB0}, 17
s_add_u32 s{sB9}, s{sT}, 8
s_lshl_b32 s{sB9}, s{sB9}, 17
s_lshl_b32 s{sT}, s{sHQ}, 15
s_add_u32 s{sB0}, s{sB0}, s{sT}
s_add_u32 s{sB9}, s{sB9}, s{sT}
s_lshl_b32 s{sSEL}, s{sNT}, 12
s_lshl_b32 s{sT}, s{sW}, 10
s_add_u32 s{s9K}, s{sSEL}, s{sT}
s_add_u32 s{sPOLL}, s{sB0}, {32*4096}
""")
    def bload(kk):
        r=BF+8*(kk%8)
        return [f"s_add_u32 s{sT}, s{sB0}, s{sSEL}",
                f"s_add_u32 s{sT2}, s{sPOLL}, s{sSEL}",
                f"buffer_load_dwordx4 {vr(r)}, v{VL}, {sr(sOF)}, s{sT} offen{bsc}",
                f"buffer_load_dwordx4 {vr(r+4)}, v{VL}, {sr(sOF)}, s{sT2} offen{bsc}",
                f"s_add_u32 s{sSEL}, s{sSEL}, 1024",
                f"s_and_b32 s{sSEL}, s{sSEL}, 32767"]
    for u_ in range(LW): t9unit(u_)
    for kk in range(LB):
        for l in bload(kk): b(l)
    V9=226
    b(f"v_add_u32 v{V9}, 20480, v{VL}")
    b(f"v_add_u32 v{V9+1}, {2*UN}, v{V9}")
    B9F=[228,232]
    def areads(slot,ks,fs,b9):
        off=(slot*UN if slot<2 else 0)
        WW=WAd if slot<2 else WAd2
        o=[f"ds_read_b128 {vr(b9)}, v{V9 if slot<2 else V9+1} offset:{off+ks*1024}"]
        for i in range(5):
            o.append(f"ds_read_b64_tr_b16 {vr(fs+4*i,2)}, v{WW[i]} offset:{off+ks*5120}")
            o.append(f"ds_read_b64_tr_b16 {vr(fs+4*i+2,2)}, v{WW[i]} offset:{off+ks*5120+2560}")
        return o
    q=[]
    for u_ in range(LW): q+=[('W',u_)]*5
    for u_ in range(LW): q+=[('T',u_)]
    for k in range(LB): q+=[('B',k)]*2
    def after(tag):
        idx=max(i for i,t in enumerate(q) if t==tag)
        return len(q)-1-idx
    for UU in range(8):
        u=UU%3
        wb=min(after(('W',UU)),after(('T',UU)),after(('B',4*UU)))
        b(f"s_waitcnt vmcnt({wb})")
        b("s_barrier")
        if OPT['ost']:
            b("s_memtime s[90:91]")
            b("s_waitcnt lgkmcnt(0)")
            b(f"s_lshl_b32 s92, s{sITEM}, 4")
            b(f"s_add_u32 s92, s92, {UU}")
            b("s_mov_b32 m0, s92")
            b("s_nop 1")
            b("v_writelane_b32 v240, s90, m0")
        rd=areads(u,0,AF[0],B9F[0])
        for l in rd: b(l)
        if UU+LW<8 and not OPT['opnow']:
            wunit((UU+LW)%3); t9unit((UU+LW)%3)
            q+=[('W',UU+LW)]*5+[('T',UU+LW)]
        pend=[I(l) for l in rd]
        for ks in range(4):
            kk=4*UU+ks
            fs=AF[ks&1]; b9=B9F[ks&1]
            b(f"s_waitcnt vmcnt({after(('B',kk))})")
            r=BF+8*(kk%8)
            mm=[]
            for i in range(5):
                mm.append(mfma(ACC0+4*i,fs+4*i,r,ACC0+4*i))
                mm.append(mfma(ACC1+4*i,fs+4*i,r+4,ACC1+4*i))
                if i==0: mm.append(mfma(ACC9,fs,b9,ACC9))
                if i==4: mm.append(mfma(ACC9+4,fs+16,b9,ACC9+4))
            nxt=areads(u,ks+1,AF[(ks+1)&1],B9F[(ks+1)&1]) if ks<3 else []
            seq=[]
            for idx,m in enumerate(mm):
                seq.append(I(m))
                if idx<len(nxt): seq.append(I(nxt[idx]))
            if kk+LB<32 and not OPT['opnob']:
                bl=bload(kk+LB); q+=[('B',kk+LB)]*2
                if LB<8:
                    pos=len(seq)//2
                    seq=seq[:pos]+[I(x) for x in bl]+seq[pos:]
                else: seq+= [I(x) for x in bl]
            o,pend=insert_lgkm(seq,pending=pend)
            b.add(o)
    if OPT['stamps']:
        l=b.new('ST'); b(f"s_cmp_eq_u32 s{sITEM}, {0 if OPT['opown'] else 1}"); b(f"s_cbranch_scc0 {l}b"); stamp(b,8); b.label(l+'b')
    if OPT['ost']:
        b("s_memtime s[90:91]")
        b("s_waitcnt lgkmcnt(0)")
        b(f"s_lshl_b32 s92, s{sITEM}, 4")
        b(f"s_add_u32 s92, s92, 8")
        b("s_mov_b32 m0, s92")
        b("s_nop 1")
        b("v_writelane_b32 v240, s90, m0")
    b(f"""
s_lshl_b32 s{sT}, s{sBR}, 3
s_add_u32 s{sT}, s{sT}, s{sBI}
s_lshl_b32 s{sT}, s{sT}, 3
s_add_u32 s{sSEL}, s{sT}, s{sNT}
s_mul_i32 s{sB0}, s{sSEL}, {4*45*1024}
s_mul_i32 s{sT}, s{sHQ}, {45*1024}
s_add_u32 s{sB9}, s{sB0}, s{sT}
s_mul_i32 s{sBK}, s{sW}, {2*5*1024}
s_nop 7
""")
    tiles=[]
    for i in range(5):
        tiles.append((ACC0+4*i,0,i)); tiles.append((ACC1+4*i,5*1024,i))
    def toff(extra,i,dst):
        b(f"s_lshl_b32 s{dst}, s{33+i}, 10")
        b(f"s_add_u32 s{dst}, s{dst}, s{sBK}")
        if extra: b(f"s_add_u32 s{dst}, s{dst}, {extra}")
    for (acc,extra,i) in tiles:
        toff(extra,i,sT)
        b(f"s_add_u32 s{sT}, s{sT}, s{sB9}")
        if not OPT['opnop']: b(f"buffer_store_dwordx4 {vr(acc)}, v{VL}, {sr(sPT)}, s{sT} offen sc1")
    b(f"s_lshl_b32 s{sT}, s33, 10")
    b(f"s_add_u32 s{sT}, s{sT}, {40*1024}")
    b(f"s_add_u32 s{sT}, s{sT}, s{sB9}")
    b(f"buffer_store_dwordx4 {vr(ACC9)}, v{VL}, {sr(sPT)}, s{sT} offen sc1")
    b(f"s_cmp_lg_u32 s{sW}, 0")
    b("s_cbranch_scc1 OP_P1")
    b(f"s_add_u32 s{sT}, s{sB9}, {44*1024}")
    b(f"buffer_store_dwordx4 {vr(ACC9+4)}, v{VL}, {sr(sPT)}, s{sT} offen sc1")
    b.label("OP_P1")
    b("s_waitcnt vmcnt(0)")
    b("s_barrier")
    if OPT['dred']:
        b(f"s_cmp_lg_u32 s{sW}, 0")
        b("s_cbranch_scc1 OP_P2")
        b(f"""
s_and_b32 s{sLAST}, s{sSEL}, 3
s_lshl_b32 s{sLAST}, s{sLAST}, 3
s_lshl_b32 s{sT2}, 1, s{sLAST}
v_mov_b32 v60, s{sT2}
s_lshr_b32 s{sT2}, s{sSEL}, 2
s_lshl_b32 s{sT2}, s{sT2}, 2
v_mov_b32 v61, 0
s_mov_b64 exec, 1
buffer_atomic_add v60, v61, {sr(sDBG)}, s{sT2} offen sc0 sc1
s_mov_b32 s{sPOLL}, 0
s_waitcnt vmcnt(0)
v_readfirstlane_b32 s{sT}, v60
s_lshr_b32 s{sT}, s{sT}, s{sLAST}
s_and_b32 s{sT}, s{sT}, 255
s_cmp_ge_u32 s{sT}, 3
s_cbranch_scc1 OP_RPOLLED
""")
        b.label("OP_RPOLL")
        b(f"""
s_sleep {OPT['rsleep']}
v_mov_b32 v60, 0
buffer_atomic_or v60, v61, {sr(sDBG)}, s{sT2} offen sc0 sc1
s_waitcnt vmcnt(0)
v_readfirstlane_b32 s{sT}, v60
s_lshr_b32 s{sT}, s{sT}, s{sLAST}
s_and_b32 s{sT}, s{sT}, 255
s_cmp_ge_u32 s{sT}, 4
s_cbranch_scc1 OP_RPOLLED
s_add_u32 s{sPOLL}, s{sPOLL}, 1
s_cmp_lt_u32 s{sPOLL}, 20000
s_cbranch_scc1 OP_RPOLL
""")
        b.label("OP_RPOLLED")
        b("s_mov_b64 exec, -1")
        b.label("OP_P2")
        b("s_barrier")
        LD=64
        b(f"s_lshl_b32 s{sWK2}, s{sHQ}, 2")
        b(f"s_add_u32 s{sWK2}, s{sWK2}, s{sW}")
        for j in range(3):
            b(f"s_add_u32 s{sT}, s{sWK2}, {16*j}")
            b(f"s_min_u32 s{sT}, s{sT}, 44")
            b(f"s_lshl_b32 s{sT}, s{sT}, 10")
            b(f"s_add_u32 s{sT}, s{sT}, s{sB0}")
            for d in range(4):
                b(f"buffer_load_dwordx4 {vr(LD+16*j+4*d)}, v{VL}, {sr(sPT)}, s{sT} offen sc1")
                if d<3: b(f"s_add_u32 s{sT}, s{sT}, {45*1024}")
        b(f"""
s_mul_i32 s{sLAST}, s{sBI}, 144
v_add_u32 v3, s{sLAST}, v1
v_mul_u32_u24 v3, 2560, v3
v_lshl_add_u32 v3, v2, 3, v3
s_mul_i32 s{sLAST}, s{sBR}, 1280
s_mul_i32 s{sT2}, s{sNT}, 160
s_add_u32 s{sLAST}, s{sLAST}, s{sT2}
""")
        for j in range(3):
            r=LD+16*j
            b(f"s_waitcnt vmcnt({4*(2-j)+j})")
            for rr in range(4):
                b(f"v_add_f32 v{r+rr}, v{r+rr}, v{r+4+rr}")
                b(f"v_add_f32 v{r+8+rr}, v{r+8+rr}, v{r+12+rr}")
            for rr in range(4): b(f"v_add_f32 v{r+rr}, v{r+rr}, v{r+8+rr}")
            b(f"v_cvt_pk_bf16_f32 v{r}, v{r}, v{r+1}")
            b(f"v_cvt_pk_bf16_f32 v{r+1}, v{r+2}, v{r+3}")
            b(f"s_add_u32 s{sT}, s{sWK2}, {16*j}")
            if j==2:
                b(f"s_cmp_ge_u32 s{sT}, 45")
                b("s_cbranch_scc1 OP_DONE")
            b(f"s_mul_i32 s{sT2}, s{sT}, 52429")
            b(f"s_lshr_b32 s{sT2}, s{sT2}, 18")
            b(f"s_mul_i32 s{sIT}, s{sT2}, 5")
            b(f"s_sub_u32 s{sT}, s{sT}, s{sIT}")
            b(f"s_lshl_b32 s{sT}, s{sT}, 5")
            b(f"s_mul_i32 s{sT2}, s{sT2}, {16*2560}")
            b(f"s_add_u32 s{sT}, s{sT}, s{sT2}")
            b(f"s_add_u32 s{sT}, s{sT}, s{sLAST}")
            b(f"buffer_store_dwordx2 {vr(r,2)}, v3, {sr(sOUT)}, s{sT} offen")
        b.label("OP_DONE")
        if OPT['stamps']: stamp(b,6)
        return
    b(f"s_cmp_lg_u32 s{sW}, 0")
    b("s_cbranch_scc1 OP_P2")
    b(f"""
s_and_b32 s{sT}, s{sSEL}, 3
s_lshl_b32 s{sT}, s{sT}, 3
s_lshl_b32 s{sT2}, 1, s{sT}
v_mov_b32 v60, s{sT2}
s_lshr_b32 s{sT2}, s{sSEL}, 2
s_lshl_b32 s{sT2}, s{sT2}, 2
v_mov_b32 v61, 0
s_mov_b64 exec, 1
buffer_atomic_add v60, v61, {sr(sDBG)}, s{sT2} offen sc0 sc1
s_waitcnt vmcnt(0)
v_lshrrev_b32 v60, s{sT}, v60
v_and_b32 v60, 255, v60
ds_write_b32 v61, v60
s_waitcnt lgkmcnt(0)
s_mov_b64 exec, -1
""")
    b.label("OP_P2")
    b("s_barrier")
    b("""
v_mov_b32 v61, 0
ds_read_b32 v60, v61
s_waitcnt lgkmcnt(0)
""")
    b(f"v_readfirstlane_b32 s{sT}, v60")
    b(f"s_cmp_eq_u32 s{sT}, 3")
    b("s_cbranch_scc0 OP_DONE")
    LD=64
    def addparts(acc,offs_dst):
        for d in range(1,4):
            b(f"s_add_u32 s{sIT}, s{sHQ}, {d}")
            b(f"s_and_b32 s{sIT}, s{sIT}, 3")
            b(f"s_mul_i32 s{sIT}, s{sIT}, {45*1024}")
            b(f"s_add_u32 s{sIT}, s{sIT}, s{sB0}")
            b(f"s_add_u32 s{sIT}, s{sIT}, s{offs_dst}")
            b(f"buffer_load_dwordx4 {vr(acc+4*(d-1))}, v{VL}, {sr(sPT)}, s{sIT} offen sc1")
    k=0; ldmap=[]
    for (acc,extra,i) in tiles:
        toff(extra,i,sT)
        addparts(LD+12*k,sT); ldmap.append((acc,LD+12*k)); k+=1
    b(f"s_lshl_b32 s{sT}, s33, 10")
    b(f"s_add_u32 s{sT}, s{sT}, {40*1024}")
    addparts(LD+12*k,sT); ldmap.append((ACC9,LD+12*k)); k+=1
    b(f"s_mov_b32 s{sT}, {44*1024}")
    addparts(LD+12*k,sT); ldmap.append((ACC9+4,LD+12*k)); k+=1
    b(f"""
s_mul_i32 s{sLAST}, s{sBI}, 144
v_add_u32 v3, s{sLAST}, v1
v_mul_u32_u24 v3, 2560, v3
v_lshl_add_u32 v3, v2, 3, v3
s_mul_i32 s{sLAST}, s{sBR}, 1280
s_mul_i32 s{sT2}, s{sNT}, 160
s_add_u32 s{sLAST}, s{sLAST}, s{sT2}
s_waitcnt vmcnt(0)
""")
    for idx,(acc,ld) in enumerate(ldmap):
        for d in range(3):
            for r in range(4): b(f"v_add_f32 v{acc+r}, v{acc+r}, v{ld+4*d+r}")
        b(f"v_cvt_pk_bf16_f32 v{acc}, v{acc}, v{acc+1}")
        b(f"v_cvt_pk_bf16_f32 v{acc+1}, v{acc+2}, v{acc+3}")
        if idx<10:
            (a2,extra,i)=tiles[idx]
            b(f"s_lshl_b32 s{sT}, s{sW}, 1")
            if extra: b(f"s_add_u32 s{sT}, s{sT}, 1")
            b(f"s_mul_i32 s{sT}, s{sT}, {16*2560}")
            b(f"s_lshl_b32 s{sT2}, s{33+i}, 5")
        elif idx==10:
            b(f"s_mov_b32 s{sT}, {128*2560}")
            b(f"s_lshl_b32 s{sT2}, s33, 5")
        else:
            b(f"s_cmp_lg_u32 s{sW}, 0")
            b("s_cbranch_scc1 OP_DONE")
            b(f"s_mov_b32 s{sT}, {128*2560}")
            b(f"s_mov_b32 s{sT2}, {4*32}")
        b(f"s_add_u32 s{sT}, s{sT}, s{sT2}")
        b(f"s_add_u32 s{sT}, s{sT}, s{sLAST}")
        b(f"buffer_store_dwordx2 {vr(acc,2)}, v3, {sr(sOUT)}, s{sT} offen")
    b.label("OP_DONE")
    if OPT['stamps']:
        l=b.new('ST'); b(f"s_cmp_eq_u32 s{sITEM}, 0"); b(f"s_cbranch_scc0 {l}b"); stamp(b,6); b.label(l+'b')
    b(f"s_add_u32 s{sITEM}, s{sITEM}, 1")
    if not OPT['opown'] or OPT['oponly']:
        b(f"s_cmp_lt_u32 s{sITEM}, {OPT['opmode']}")
        b("s_cbranch_scc1 OP_ITEM")

def op_phase2(b):
    sWO=8; sOF=12; sPT=16; sOUT=20; sDBG=28
    sNT=45; sHQ=46; sBI=51; sB0=52; sB9=53; sWK2=54; sWM2=55; sBK=56; sITEM=57; sPOLL=58
    ACC0,ACC1,ACC9=4,24,44
    BF=64; AF=[160,180]
    WAd=[216,217,218,219,220]; DWO=[221,222,223,224,225]; VL=210; WAd2=[211,212,213,214,215]
    UNIT=20480
    bsc=' sc1' if OPT['bsc1'] else ''
    b(f"s_setprio 0")
    b(f"""
s_and_b32 s{sNT}, s{sH}, 7
s_lshr_b32 s{sHQ}, s{sH}, 3
v_and_b32 v1, 15, v0
v_lshrrev_b32 v2, 4, v0
v_lshlrev_b32 v{VL}, 4, v0
s_mov_b32 s{sT2}, {(1<<16)//10+1}
""")
    for e in range(5):
        b(f"""
v_add_u32 v3, {64*e}, v0
v_mul_u32_u24 v4, s{sT2}, v3
v_lshrrev_b32 v4, 16, v4
v_mul_u32_u24 v5, 10, v4
v_sub_u32 v5, v3, v5
v_mul_u32_u24 v4, 1280, v4
v_lshl_add_u32 v{DWO[e]}, v5, 4, v4
""")
        if 0<e<4: b(f"v_subrev_u32 v{DWO[e]}, {e*1024}, v{DWO[e]}")
    b(f"""
v_bfe_u32 v3, v0, 2, 2
v_lshl_add_u32 v3, v2, 2, v3
v_mul_u32_u24 v3, 160, v3
v_and_b32 v4, 3, v0
v_lshl_add_u32 v3, v4, 3, v3
""")
    for i in range(5):
        b(f"""
s_add_u32 s{sT}, s{sW}, {i}
s_cmp_ge_u32 s{sT}, 5
s_cselect_b32 s{sT2}, 5, 0
s_sub_u32 s{sT}, s{sT}, s{sT2}
s_mov_b32 s{33+i}, s{sT}
s_lshl_b32 s{sT}, s{sT}, 5
v_add_u32 v{WAd[i]}, s{sT}, v3
v_add_u32 v{WAd2[i]}, {2*24576}, v{WAd[i]}
""")
    b(f"""
s_mul_i32 s{sT}, s{sHQ}, {1024*1280}
s_mul_i32 s{sT2}, s{sNT}, 160
s_add_u32 s{sT}, s{sT}, s{sT2}
s_add_u32 s{sWO}, s84, s{sT}
s_addc_u32 s{sWO+1}, s85, 0
s_sub_u32 s{sWO+2}, 5242880, s{sT}
s_mov_b32 s{sWO+3}, 0x20000
s_mov_b32 s{sOF}, s40
s_mov_b32 s{sOF+1}, s41
s_mov_b32 s{sOF+2}, {O_BYTES}
s_mov_b32 s{sOF+3}, 0x20000
s_add_u32 s{sPT}, s40, {WS_PART}
s_addc_u32 s{sPT+1}, s41, 0
s_mov_b32 s{sPT+2}, {PART_BYTES}
s_mov_b32 s{sPT+3}, 0x20000
s_mov_b32 s{sOUT}, s96
s_mov_b32 s{sOUT+1}, s97
s_mov_b32 s{sOUT+2}, {8*144*1280*2}
s_mov_b32 s{sOUT+3}, 0x20000
s_mov_b32 s{sITEM}, 0
""")

    UN=24576; CHB=79872
    sDONE=59; s9K=89; sHD=91; sMSK=90; sFA=76
    V9=226; B9F=[228,232]; VP=244
    LB=8
    b(f"v_add_u32 v{V9}, 20480, v{VL}")
    b(f"v_add_u32 v{V9+1}, {2*UN}, v{V9}")
    b(f"v_mov_b32 v{VP+1}, 0")
    b(f"v_mov_b32 v{VP+2}, {CHB}")
    b(f"s_mul_i32 s{sWM2}, s{sW}, 5120")
    def set_head():
        b(f"s_mul_i32 s{sWK2}, s{sHD}, {128*1280}")
        b(f"s_mul_i32 s{sT}, s{sW}, {32*1280}")
        b(f"s_add_u32 s{sWK2}, s{sWK2}, s{sT}")
        b(f"s_lshl_b32 s{sSEL}, s{sHD}, 12")
        b(f"s_lshl_b32 s{sT}, s{sW}, 10")
        b(f"s_add_u32 s{s9K}, s{sSEL}, s{sT}")
    def wunit(slot):
        b(f"s_add_u32 m0, s{sWM2}, {slot*UN}")
        b("s_nop 0")
        for e in range(4):
            b(f"buffer_load_dwordx4 v{DWO[e]}, {sr(sWO)}, s{sWK2} offen offset:{e*1024} lds")
        b(f"s_add_u32 m0, m0, 4096")
        b("s_nop 0")
        b(f"buffer_load_dwordx4 v{DWO[4]}, {sr(sWO)}, s{sWK2} offen lds")
        b(f"s_lshl_b32 s{sT}, s{sW}, 10")
        b(f"s_add_u32 m0, s{sT}, {slot*UN+20480}")
        b(f"s_add_u32 s{sT2}, s{sB9}, s{s9K}")
        b(f"buffer_load_dwordx4 v{VL}, {sr(sOF)}, s{sT2} offen{bsc} lds")
    def bload(kk):
        r=BF+8*(kk%8)
        return [f"s_add_u32 s{sT}, s{sB0}, s{sSEL}",
                f"s_add_u32 s{sT2}, s{sPOLL}, s{sSEL}",
                f"buffer_load_dwordx4 {vr(r)}, v{VL}, {sr(sOF)}, s{sT} offen{bsc}",
                f"buffer_load_dwordx4 {vr(r+4)}, v{VL}, {sr(sOF)}, s{sT2} offen{bsc}",
                f"s_add_u32 s{sSEL}, s{sSEL}, 1024"]
    VFA=241
    if OPT['wsf']: flag_addr(b,VFA,243)
    def pollop():
        if OPT['wsf']:
            b(f"buffer_load_dword v{VP}, v{VFA}, s[72:75], 0 offen sc0 sc1")
        elif OPT['pl2']==0:
            b("s_mov_b64 exec, 1")
            b(f"v_mov_b32 v{VP}, 0")
            b(f"buffer_atomic_or v{VP}, v{VP+1}, {sr(sDBG)}, s{sFA} offen sc0 sc1")
            b("s_mov_b64 exec, -1")
        else:
            b(f"buffer_load_dword v{VP}, v{VP+1}, {sr(sDBG)}, s{sFA} offen sc0 sc1")
    sRDY=77
    def choose(slot,have_async):
        lskip=b.new('CH'); lp=b.new('CH'); lg=b.new('CH')
        b(f"s_cmp_lg_u32 s{sW}, 0")
        b(f"s_cbranch_scc1 {lskip}")
        b(f"s_mov_b32 s{sIT}, 0")
        b(f"s_andn2_b32 s{sMSK}, s{sRDY}, s{sDONE}")
        b(f"s_cmp_lg_u32 s{sMSK}, 0")
        b(f"s_cbranch_scc1 {lg}x")
        b.label(lp)
        pollop()
        b("s_waitcnt vmcnt(0)")
        if OPT['wsf']:
            b(f"v_cmp_ne_u32 vcc, v{VP}, v238")
            b(f"s_lshl_b32 s{sT}, s{sITEM}, 3")
            b(f"s_lshr_b32 s{sRDY}, vcc_lo, s{sT}")
        else:
            b(f"v_readfirstlane_b32 s{sRDY}, v{VP}")
            b(f"s_lshl_b32 s{sT}, s{sHQ}, 3")
            b(f"s_lshr_b32 s{sRDY}, s{sRDY}, s{sT}")
        b(f"""
s_and_b32 s{sRDY}, s{sRDY}, 255
s_add_u32 s{sIT}, s{sIT}, 1
s_cmp_ge_u32 s{sIT}, 20000
s_cselect_b32 s{sT}, 255, 0
s_or_b32 s{sRDY}, s{sRDY}, s{sT}
s_andn2_b32 s{sMSK}, s{sRDY}, s{sDONE}
s_cmp_lg_u32 s{sMSK}, 0
s_cbranch_scc1 {lg}x
s_sleep {OPT['psleep2']}
s_branch {lp}
""")
        b.label(lg+'x')
        b(f"""
s_lshl_b32 s{sT}, s{sMSK}, 8
s_or_b32 s{sT}, s{sT}, s{sMSK}
s_lshr_b32 s{sT}, s{sT}, s{sNT}
s_ff1_i32_b32 s{sT}, s{sT}
s_add_u32 s{sT}, s{sT}, s{sNT}
s_and_b32 s{sT}, s{sT}, 7
s_lshl_b32 s{sT2}, 1, s{sT}
s_or_b32 s{sDONE}, s{sDONE}, s{sT2}
v_mov_b32 v{VP+3}, s{sT}
ds_write_b32 v{VP+2}, v{VP+3} offset:{4*slot}
s_waitcnt lgkmcnt(0)
""")
        b.label(lskip)
    def fetch_head(slot):
        b(f"ds_read_b32 v{VP+3}, v{VP+2} offset:{4*slot}")
        b("s_waitcnt lgkmcnt(0)")
        b(f"v_readfirstlane_b32 s{sHD}, v{VP+3}")
    def areads(slot,ks,fs,b9):
        off=(slot*UN if slot<2 else 0)
        WW=WAd if slot<2 else WAd2
        o=[f"ds_read_b128 {vr(b9)}, v{V9 if slot<2 else V9+1} offset:{off+ks*1024}"]
        for i in range(5):
            o.append(f"ds_read_b64_tr_b16 {vr(fs+4*i,2)}, v{WW[i]} offset:{off+ks*5120}")
            o.append(f"ds_read_b64_tr_b16 {vr(fs+4*i+2,2)}, v{WW[i]} offset:{off+ks*5120+2560}")
        return o
    b(f"s_mov_b32 s{sITEM}, 0")
    b.label("OP_ITEM")
    b(f"""
s_lshl_b32 s{sBI}, s{sITEM}, 2
s_add_u32 s{sBI}, s{sBI}, s{sB}
s_lshl_b32 s{sT}, s{sBR}, 3
s_add_u32 s{sT}, s{sT}, s{sBI}
s_lshl_b32 s{sFA}, s{sT}, 2
s_add_u32 s{sFA}, s{sFA}, 128
s_mul_i32 s{sT}, s{sT}, 9
s_lshl_b32 s{sT2}, s{sW}, 1
s_add_u32 s{sB0}, s{sT}, s{sT2}
s_lshl_b32 s{sB0}, s{sB0}, 17
s_add_u32 s{sB9}, s{sT}, 8
s_lshl_b32 s{sB9}, s{sB9}, 17
s_lshl_b32 s{sT}, s{sHQ}, 15
s_add_u32 s{sB0}, s{sB0}, s{sT}
s_add_u32 s{sB9}, s{sB9}, s{sT}
s_add_u32 s{sPOLL}, s{sB0}, {32*4096}
s_mov_b32 s{sDONE}, 0
s_mov_b32 s77, 0
""")
    for r in range(4,56): b(f"v_mov_b32 v{r}, 0")
    b("s_barrier")
    q=[]
    choose(0,False)
    b("s_barrier")
    fetch_head(0); set_head(); wunit(0)
    for kk in range(4):
        for l in bload(kk): b(l)
    q+=[('W',0)]*6
    for k in range(4): q+=[('B',k)]*2
    choose(1,False)
    b("s_barrier")
    fetch_head(1); set_head(); wunit(1)
    for kk in range(4,8):
        for l in bload(kk): b(l)
    q+=[('W',1)]*6
    for k in range(4,8): q+=[('B',k)]*2
    if OPT['stamps']:
        l=b.new('ST'); b(f"s_cmp_eq_u32 s{sITEM}, 0"); b(f"s_cbranch_scc0 {l}a"); stamp(b,5); b(f"s_branch {l}b"); b.label(l+'a'); stamp(b,7); b.label(l+'b')
    def apoll():
        l_=b.new('AP')
        b(f"s_cmp_lg_u32 s{sW}, 0")
        b(f"s_cbranch_scc1 {l_}")
        pollop()
        b.label(l_)
    def after(tag):
        idx=max(i for i,t in enumerate(q) if t==tag)
        return len(q)-1-idx
    for UU in range(8):
        u=UU%3
        if UU+2<8: choose(UU&1,UU>0)
        wb=min(after(('W',UU)),after(('B',4*UU)))
        b(f"s_waitcnt vmcnt({wb})")
        b("s_barrier")
        rd=areads(u,0,AF[0],B9F[0])
        if UU+2<8:
            b(f"ds_read_b32 v{VP+3}, v{VP+2} offset:{4*(UU&1)}")
            for l in rd: b(l)
            b(f"s_waitcnt lgkmcnt({len(rd)})")
            b(f"v_readfirstlane_b32 s{sHD}, v{VP+3}")
            set_head(); wunit((UU+2)%3)
            q+=[('W',UU+2)]*6
        else:
            for l in rd: b(l)
        pend=[I(l) for l in rd]
        for ks in range(4):
            kk=4*UU+ks
            fs=AF[ks&1]; b9=B9F[ks&1]
            b(f"s_waitcnt vmcnt({after(('B',kk))})")
            r=BF+8*(kk%8)
            mm=[]
            for i in range(5):
                mm.append(mfma(ACC0+4*i,fs+4*i,r,ACC0+4*i))
                mm.append(mfma(ACC1+4*i,fs+4*i,r+4,ACC1+4*i))
                if i==0: mm.append(mfma(ACC9,fs,b9,ACC9))
                if i==4: mm.append(mfma(ACC9+4,fs+16,b9,ACC9+4))
            nxt=areads(u,ks+1,AF[(ks+1)&1],B9F[(ks+1)&1]) if ks<3 else []
            seq=[]
            for idx,m in enumerate(mm):
                seq.append(I(m))
                if idx<len(nxt): seq.append(I(nxt[idx]))
            if kk+LB<32:
                bl=bload(kk+LB); q+=[('B',kk+LB)]*2
                seq+= [I(x) for x in bl]
            o,pend=insert_lgkm(seq,pending=pend)
            b.add(o)
    if OPT['stamps']:
        l=b.new('ST'); b(f"s_cmp_eq_u32 s{sITEM}, 1"); b(f"s_cbranch_scc0 {l}b"); stamp(b,8); b.label(l+'b')
    b(f"""
s_lshl_b32 s{sT}, s{sBR}, 3
s_add_u32 s{sT}, s{sT}, s{sBI}
s_lshl_b32 s{sT}, s{sT}, 3
s_add_u32 s{sSEL}, s{sT}, s{sNT}
s_mul_i32 s{sB0}, s{sSEL}, {4*45*1024}
s_mul_i32 s{sT}, s{sHQ}, {45*1024}
s_add_u32 s{sB9}, s{sB0}, s{sT}
s_mul_i32 s{sBK}, s{sW}, {2*5*1024}
s_nop 7
""")
    tiles=[]
    for i in range(5):
        tiles.append((ACC0+4*i,0,i)); tiles.append((ACC1+4*i,5*1024,i))
    for (acc,extra,i) in tiles:
        b(f"s_lshl_b32 s{sT}, s{33+i}, 10")
        b(f"s_add_u32 s{sT}, s{sT}, s{sBK}")
        if extra: b(f"s_add_u32 s{sT}, s{sT}, {extra}")
        b(f"s_add_u32 s{sT}, s{sT}, s{sB9}")
        b(f"buffer_store_dwordx4 {vr(acc)}, v{VL}, {sr(sPT)}, s{sT} offen sc1")
    b(f"s_lshl_b32 s{sT}, s33, 10")
    b(f"s_add_u32 s{sT}, s{sT}, {40*1024}")
    b(f"s_add_u32 s{sT}, s{sT}, s{sB9}")
    b(f"buffer_store_dwordx4 {vr(ACC9)}, v{VL}, {sr(sPT)}, s{sT} offen sc1")
    b(f"s_cmp_lg_u32 s{sW}, 0")
    b("s_cbranch_scc1 OP_P1")
    b(f"s_add_u32 s{sT}, s{sB9}, {44*1024}")
    b(f"buffer_store_dwordx4 {vr(ACC9+4)}, v{VL}, {sr(sPT)}, s{sT} offen sc1")
    b.label("OP_P1")
    def reduce_code(item,tag):
        b(f"""
s_add_u32 s{sBI}, s{sB}, {4*item}
s_lshl_b32 s{sT}, s{sBR}, 3
s_add_u32 s{sT}, s{sT}, s{sBI}
s_lshl_b32 s{sT}, s{sT}, 3
s_add_u32 s{sT}, s{sT}, s{sNT}
s_mul_i32 s{sB0}, s{sT}, {4*45*1024}
s_cmp_lg_u32 s{sW}, 0
s_cbranch_scc1 OP_RP2{tag}
s_mov_b32 s{sPOLL}, 0
""")
        b.label("OP_RPOLL"+tag)
        b(f"""
buffer_load_dword v60, v{VFA}, s[72:75], 0 offen sc0 sc1
s_waitcnt vmcnt(0)
v_cmp_ne_u32 vcc, v60, v238
s_lshr_b32 s{sT}, vcc_lo, {16+4*item}
s_and_b32 s{sT}, s{sT}, 15
s_cmp_eq_u32 s{sT}, 15
s_cbranch_scc1 OP_RP2{tag}
s_add_u32 s{sPOLL}, s{sPOLL}, 1
s_cmp_lt_u32 s{sPOLL}, 20000
s_cbranch_scc0 OP_RP2{tag}
s_sleep {OPT['rsleep']}
s_branch OP_RPOLL{tag}
""")
        b.label("OP_RP2"+tag)
        b("s_barrier")
        LD=64
        b(f"s_lshl_b32 s{sWK2}, s{sHQ}, 2")
        b(f"s_add_u32 s{sWK2}, s{sWK2}, s{sW}")
        for j in range(3):
            b(f"s_add_u32 s{sT}, s{sWK2}, {16*j}")
            b(f"s_min_u32 s{sT}, s{sT}, 44")
            b(f"s_lshl_b32 s{sT}, s{sT}, 10")
            b(f"s_add_u32 s{sT}, s{sT}, s{sB0}")
            for d in range(4):
                b(f"buffer_load_dwordx4 {vr(LD+16*j+4*d)}, v{VL}, {sr(sPT)}, s{sT} offen sc1")
                if d<3: b(f"s_add_u32 s{sT}, s{sT}, {45*1024}")
        b(f"""
s_mul_i32 s{sLAST}, s{sBI}, 144
v_add_u32 v3, s{sLAST}, v1
v_mul_u32_u24 v3, 2560, v3
v_lshl_add_u32 v3, v2, 3, v3
s_mul_i32 s{sLAST}, s{sBR}, 1280
s_mul_i32 s{sT2}, s{sNT}, 160
s_add_u32 s{sLAST}, s{sLAST}, s{sT2}
""")
        for j in range(3):
            r=LD+16*j
            b(f"s_waitcnt vmcnt({4*(2-j)+j})")
            for rr in range(4):
                b(f"v_add_f32 v{r+rr}, v{r+rr}, v{r+4+rr}")
                b(f"v_add_f32 v{r+8+rr}, v{r+8+rr}, v{r+12+rr}")
            for rr in range(4): b(f"v_add_f32 v{r+rr}, v{r+rr}, v{r+8+rr}")
            b(f"v_cvt_pk_bf16_f32 v{r}, v{r}, v{r+1}")
            b(f"v_cvt_pk_bf16_f32 v{r+1}, v{r+2}, v{r+3}")
            b(f"s_add_u32 s{sT}, s{sWK2}, {16*j}")
            if j==2:
                b(f"s_cmp_ge_u32 s{sT}, 45")
                b(f"s_cbranch_scc1 OP_DONE{tag}")
            b(f"s_mul_i32 s{sT2}, s{sT}, 52429")
            b(f"s_lshr_b32 s{sT2}, s{sT2}, 18")
            b(f"s_mul_i32 s{sIT}, s{sT2}, 5")
            b(f"s_sub_u32 s{sT}, s{sT}, s{sIT}")
            b(f"s_lshl_b32 s{sT}, s{sT}, 5")
            b(f"s_mul_i32 s{sT2}, s{sT2}, {16*2560}")
            b(f"s_add_u32 s{sT}, s{sT}, s{sT2}")
            b(f"s_add_u32 s{sT}, s{sT}, s{sLAST}")
            b(f"buffer_store_dwordx2 {vr(r,2)}, v3, {sr(sOUT)}, s{sT} offen")
        b.label("OP_DONE"+tag)
    b(f"s_cmp_eq_u32 s{sITEM}, 1")
    b("s_cbranch_scc0 OP_NR0")
    reduce_code(0,'A')
    b.label("OP_NR0")
    b("s_waitcnt vmcnt(0)")
    b("s_barrier")
    b(f"s_cmp_lg_u32 s{sW}, 0")
    b("s_cbranch_scc1 OP_P2")
    b(f"""
s_lshl_b32 s{sT}, s{sITEM}, 2
s_add_u32 s{sT}, s{sT}, s{sHQ}
s_add_u32 s{sT}, s{sT}, 16
v_add_u32 v60, 1, v238
v_cmp_eq_u32 vcc, s{sT}, v0
s_and_saveexec_b64 s[78:79], vcc
buffer_store_dword v60, v{VFA}, s[72:75], 0 offen sc0 sc1
s_mov_b64 exec, -1
""")
    b.label("OP_P2")
    if OPT['stamps']:
        l=b.new('ST'); b(f"s_cmp_eq_u32 s{sITEM}, 0"); b(f"s_cbranch_scc0 {l}b"); stamp(b,6); b.label(l+'b')
    b(f"s_add_u32 s{sITEM}, s{sITEM}, 1")
    b(f"s_cmp_lt_u32 s{sITEM}, 2")
    b("s_cbranch_scc1 OP_ITEM")
    reduce_code(1,'B')

def emit(name,ins):
    s=f".globl {name}\n.p2align 8\n.type {name},@function\n{name}:\n"
    for i in ins:
        s+= (i.text+'\n') if i.kind=='label' else ('    '+i.text+'\n')
    return s
def desc(name,vgpr=256,sgpr=102):
    return f""".amdhsa_kernel {name}
  .amdhsa_next_free_vgpr {vgpr}
  .amdhsa_next_free_sgpr {sgpr}
  .amdhsa_accum_offset {(vgpr+3)//4*4}
  .amdhsa_group_segment_fixed_size 0
  .amdhsa_kernarg_size 104
  .amdhsa_user_sgpr_count 2
  .amdhsa_user_sgpr_kernarg_segment_ptr 1
  .amdhsa_system_sgpr_workgroup_id_x 1
.end_amdhsa_kernel
"""
if __name__=='__main__':
    outp=sys.argv[1]
    for a in sys.argv[2:]:
        k,v=a.split('='); OPT[k]=int(v)
    k1=gen_k1()
    txt="; @launch grid=(512,1,1) block=(256,1,1) lds=81920\n"
    txt+='.amdgcn_target "amdgcn-amd-amdhsa--gfx950"\n.text\n'
    txt+=emit(NAME,k1)
    txt+='.section .rodata,"a"\n.p2align 6\n'+desc(NAME)
    open(outp,'w').write(txt)
```

```python
import sys, math, struct
from isa import *
NAME='concat_heads__mha_block_cached__gqa_block_cached__near_ridge_kernel'
OPT=dict(qh=0, qhpos=12, rot3=0, searly=0, wsf=0, op2=0, pl2=0, psleep2=24, force_slow=0, dbg_q=0, stamps=0, qponly=0, qst=0, wxpf=1, kvpf=1, prio=2, k1only=0, k2only=0, fst=0, tw=2, tnt=1, kvpfl=1, rot=1,  dred=1, rsleep=32, lah=99, lpg=9, dmmode=0, dmo1=3, dmo2=5, ast=0, ost=0, opnobr=0, opnolds=0, oponly=0, opown=1, thr=0, ldelay=0, dsleep=16, dmax=24, nodma=0, nobar=0, noexp=0, novalu=0, nolds=0, not9=0, ldslat=140, dmk=3, dmv=9, lateexit=0, samekv=0, prioL=0, opmode=2, opnob=0, opnow=0, opnop=0, oplb=4, oplw=2, attla=3, wopf=1, wotit=5, pollld=0, psleep=64, dupst=1, bsc1=1, qtwice=0, prioatt=0, k0it=1, kvit=2, nok0=0)
class P:
    def __init__(s): s.ins=[]; s.n=0
    def __call__(s,text,**kw):
        for l in text.strip('\n').split('\n'):
            l=l.strip()
            if l and not l.startswith(';'): s.ins.append(I(l,**kw))
    def add(s,lst): s.ins+=lst
    def label(s,name): s.ins.append(I(name+':'))
    CNT=[0]
    def new(s,p='L'):
        P.CNT[0]+=1; return f'{p}_{P.CNT[0]}'
def vr(a,n=4): return f"v[{a}:{a+n-1}]"
def sr(a,n=4): return f"s[{a}:{a+n-1}]"
def mfma(d,a,b,c):
    cs=c if isinstance(c,str) else vr(c)
    return f"v_mfma_f32_16x16x32_bf16 {vr(d)}, {vr(a)}, {vr(b)}, {cs}"
def f2u(f): return struct.unpack('<I',struct.pack('<f',f))[0]
CSC=math.log2(math.e)/math.sqrt(128.0)

O0,O1,O9=4,36,68
Q0,Q1,Q9=76,92,108
NM0,NM1,NM9=124,128,132
S0=[136,144]; S1=[152,160]; S9=168
KF=[176,180,184,188,240,244]; VF=[192,196,200,204,248,252]; P9F=208
L0=[212,213]; L1=[214,215]; L9=[216,217]
KA=[218,219,220,221]; VA=list(range(222,230))
DK=[230,231]; DV=[232,233]; P9A=234; BP16=235; BP32=236
sW=4; sH=5; sB=6; sBR=7
sK=8; sV=12; sWQ=16; sX=20; sO=24
sIT=42; sSOFF=43; sM0=44; sT=47; sT2=48; sSEL=49; sLAST=50
sXK=51; sWK=52; sQH=55; sDH=56; sXM=57; sXS=58; sWM=53
SLOT=16384
XS=[0,18432]; WB=36864; K0B=69632; P9B=77824; L9B=79872; QB=32768
WS_O=0; WS_PART=20<<20; O_BYTES=18874368; PART_BYTES=512*45*1024

def finish(body,**kw):
    o,ms=schedule(body,**kw)
    o,q=insert_lgkm(o)
    return o,ms,q
def stamp(b,idx):
    if OPT['stamps']:
        b(f"s_memrealtime s[92:93]")
        b(f"s_memtime s[94:95]")
        b("s_waitcnt lgkmcnt(0)")
        b(f"v_writelane_b32 v237, s92, {2*idx}")
        b(f"v_writelane_b32 v237, s94, {2*idx+1}")
def dump_stamps(b,n,srd,base):
    if OPT['stamps']:
        b(f"s_lshl_b32 s{sT}, s2, 2")
        b(f"s_add_u32 s{sT}, s{sT}, s{sW}")
        b(f"s_lshl_b32 s{sT}, s{sT}, 7")
        b(f"s_add_u32 s{sT}, s{sT}, {base}")
        b(f"s_mov_b32 s{srd+2}, 0x10000000")
        b("v_lshlrev_b32 v3, 2, v0")
        b("v_cmp_gt_u32 vcc, 32, v0")
        b("s_and_saveexec_b64 s[78:79], vcc")
        b(f"buffer_store_dword v237, v3, s[{srd}:{srd+3}], s{sT} offen")
        b("s_waitcnt vmcnt(0)")

def att_step(p,ver):
    cur=p&1; nxt=cur^1; slot=p*SLOT; nslot=((p+1)%4)*SLOT
    b=P()
    b(f"ds_read_b128 {vr(P9F)}, v{P9A} offset:{cur*1024}")
    t9kt={'t9a':0,'t9b':1}.get(ver,None)
    if ver!='final':
        bufs={(0,0):KF[0],(0,1):KF[1],(0,2):KF[2],(0,3):KF[3],(1,0):KF[4],(1,1):KF[5],(1,2):KF[0],(1,3):KF[1]}
        b(f"ds_read_b128 {vr(KF[4])}, v{KA[0]} offset:{slot+4096}")
        b(f"ds_read_b128 {vr(KF[5])}, v{KA[1]} offset:{slot+4096}")
        for kt in range(2):
            for s in range(4):
                kf=bufs[(kt,s)]
                if kt==1 and s>=2:
                    b(f"ds_read_b128 {vr(kf)}, v{KA[s]} offset:{slot+4096}")
                lst=[(S0[nxt]+4*kt,Q0,NM0),(S1[nxt]+4*kt,Q1,NM1)]
                if t9kt==kt: lst.append((S9,Q9,NM9))
                for (d,Qx,NM) in lst:
                    b(mfma(d,kf,Qx+4*s, NM if s==0 else d))
    def softmax(S,L,n=8):
        for r in range(n): b(f"v_exp_f32 v{S+r}, v{S+r}")
        for r in range(n): b(f"v_add_f32 v{L[r&1]}, v{L[r&1]}, v{S+r}")
        for r in range(n//2): b(f"v_cvt_pk_bf16_f32 v{S+r}, v{S+2*r}, v{S+2*r+1}")
    softmax(S1[cur],L1)
    if t9kt is not None:
        softmax(S9,L9,4)
        b(f"ds_write_b64 v{P9A}, {vr(S9,2)} offset:{nxt*1024+8*t9kt}")
    for i in range(8):
        vf=VF[i%len(VF)]
        b(f"ds_read_b64_tr_b16 {vr(vf,2)}, v{VA[i]} offset:{slot}")
        b(f"ds_read_b64_tr_b16 {vr(vf+2,2)}, v{VA[i]} offset:{slot+4096}")
        b(mfma(O0+4*i,vf,S0[cur],O0+4*i))
        b(mfma(O1+4*i,vf,S1[cur],O1+4*i))
        if i<2: b(mfma(O9+4*i,vf,P9F,O9+4*i))
    if ver!='final':
        softmax(S0[nxt],L0)
        for s in range(4):
            b(f"ds_read_b128 {vr(KF[s])}, v{KA[s]} offset:{nslot}")
    return b.ins

def dma_macros(p,LA):
    P_=P()
    slotpos=(p+LA)%4
    jl=28+p; tgt=jl+LA
    out=[]
    for part,e_ in (('K',0),('K',1),('V',0),('V',1)):
        skip_last = (tgt>=31) if part=='K' else (tgt>=32)
        m=[]
        lab=P_.new('DM')
        if skip_last:
            m.append(I(f"s_cmp_eq_u32 s{sLAST}, 1"))
            m.append(I(f"s_cbranch_scc1 {lab}"))
        off=" offset:1024" if e_ else ""
        if part=='K':
            body=[f"s_add_u32 m0, s{sM0}, {slotpos*SLOT}", f"s_add_u32 s{sT}, s{sSOFF}, 8192",
                   f"buffer_load_dwordx4 v{DK[e_]}, {sr(sK)}, s{sT} offen{off} nt lds"]
        else:
            body=[f"s_add_u32 m0, s{sM0}, {slotpos*SLOT+8192}", "s_nop 0",
                   f"buffer_load_dwordx4 v{DV[e_]}, {sr(sV)}, s{sSOFF} offen{off} nt lds"]
            if e_==1: body.append(f"s_add_u32 s{sSOFF}, s{sSOFF}, 8192")
        for l in body:
            i=I(l); i.skip=skip_last; m.append(i)
        if skip_last: m.append(I(lab+':'))
        out.append(m)
    return out

def dmpos(ver):
    m=OPT['dmmode']
    if m==0: return [3,4,9,10] if False else [3,3.5,9,9.5]
    off={'plain':0,'t9a':OPT['dmo1'],'t9b':OPT['dmo2']}[ver]
    return [x+off for x in {1:[2,10,18,26],2:[1,5,9,13],3:[16,20,24,28]}[m]]
def place_macros(o,macros,positions):
    res=[]; n=0; todo=sorted(zip(positions,range(len(macros))))
    for i in o:
        res.append(i)
        if i.kind=='mfma':
            n+=1
            while todo and int(todo[0][0])<=n: res+=macros[todo.pop(0)[1]]
    for _,k in todo: res+=macros[k]
    return res

def dma_slot(b,slotpos,kpart=True,vpart=True):
    if kpart:
        b(f"s_add_u32 m0, s{sM0}, {slotpos*SLOT}")
        b(f"s_add_u32 s{sT}, s{sSOFF}, 8192")
        b(f"buffer_load_dwordx4 v{DK[0]}, {sr(sK)}, s{sT} offen nt lds")
        b(f"buffer_load_dwordx4 v{DK[1]}, {sr(sK)}, s{sT} offen offset:1024 nt lds")
    if vpart:
        b(f"s_add_u32 m0, s{sM0}, {slotpos*SLOT+8192}")
        b(f"s_nop 0")
        b(f"buffer_load_dwordx4 v{DV[0]}, {sr(sV)}, s{sSOFF} offen nt lds")
        b(f"buffer_load_dwordx4 v{DV[1]}, {sr(sV)}, s{sSOFF} offen offset:1024 nt lds")


FLG=46<<20
def flag_srd(b):
    b(f"""
s_add_u32 s72, s40, {FLG}
s_addc_u32 s73, s41, 0
s_mov_b32 s74, 32768
s_mov_b32 s75, 0x20000
""")
def flag_addr(b,vd,vt):
    b(f"""
s_lshl_b32 s{sT}, s{sBR}, 3
s_add_u32 s{sT}, s{sT}, s{sB}
s_lshr_b32 s{sT2}, s{sH}, 3
s_lshl_b32 s{sLAST}, s{sT}, 2
s_add_u32 s{sLAST}, s{sLAST}, s{sT2}
s_lshl_b32 s{sLAST}, s{sLAST}, 7
s_and_b32 s{sT2}, s{sH}, 7
s_lshl_b32 s{sT}, s{sT}, 3
s_add_u32 s{sT}, s{sT}, s{sT2}
s_lshl_b32 s{sT}, s{sT}, 7
s_add_u32 s{sT}, s{sT}, 8192
v_and_b32 v{vt}, 7, v0
v_lshlrev_b32 v{vd}, 2, v{vt}
v_add_u32 v{vd}, s{sLAST}, v{vd}
v_bfe_u32 v{vt}, v0, 3, 1
v_lshl_add_u32 v{vd}, v{vt}, 11, v{vd}
v_and_b32 v{vt}, 3, v0
v_lshlrev_b32 v{vt}, 2, v{vt}
v_add_u32 v{vt}, s{sT}, v{vt}
v_bfe_u32 v{vd+1}, v0, 2, 1
v_lshl_add_u32 v{vt}, v{vd+1}, 12, v{vt}
v_cmp_lt_u32 vcc, 15, v0
v_cndmask_b32 v{vd}, v{vd}, v{vt}, vcc
v_cmp_lt_u32 vcc, 23, v0
v_mov_b32 v{vt}, s{sLAST}
v_cndmask_b32 v{vd}, v{vd}, v{vt}, vcc
""")
def decode_ids(b):
    b(f"""
s_bfe_u32 s{sBR}, s2, 0x10002
s_and_b32 s{sH}, s2, 3
s_lshl_b32 s{sH}, s{sH}, 3
s_bfe_u32 s{sT}, s2, 0x30003
s_add_u32 s{sH}, s{sH}, s{sT}
s_bfe_u32 s{sB}, s2, 0x20006
s_lshr_b32 s{sT}, s2, 8
s_lshl_b32 s{sT}, s{sT}, 2
s_add_u32 s{sB}, s{sB}, s{sT}
""")

def gen_k1():
    b=P()
    b("s_cmp_ge_u32 s2, 512")
    b("s_cbranch_scc1 K1_END")
    if OPT['lateexit']:
        b("s_cmp_ge_u32 s2, 256")
        b("s_cbranch_scc1 K1_END")
    decode_ids(b)
    b(f"""
s_mul_i32 s3, s{sBR}, 40
s_add_u32 s28, s0, s3
s_addc_u32 s29, s1, 0
s_load_dwordx8 s[32:39], s[28:29], 0
s_load_dwordx2 s[40:41], s[0:1], 96
s_load_dwordx2 s[84:85], s[28:29], 32
s_load_dwordx4 s[96:99], s[0:1], 80
v_lshrrev_b32 v1, 6, v0
v_and_b32 v0, 63, v0
s_nop 0
v_readfirstlane_b32 s{sW}, v1
v_and_b32 v1, 15, v0
v_lshrrev_b32 v2, 4, v0
""")
    stamp(b,0)
    if OPT['stamps']:
        for i in range(1,10):
            b(f"v_writelane_b32 v237, s92, {2*i}"); b(f"v_writelane_b32 v237, s94, {2*i+1}")
    if OPT['prio']:
        b("s_cmp_lt_u32 s2, 256")
        b("s_cbranch_scc0 K1_NOPRIO")
        b(f"s_setprio {OPT['prio']}")
        b.label("K1_NOPRIO")
    qWA=[148,149,150,151]; qXB=[152,153]; qX9=[154,155]; qDX=[156,157]; qDW=[158,159,160]
    FA=[76,112]
    b(f"""
v_lshrrev_b32 v3, 3, v0
v_mul_u32_u24 v3, 1280, v3
v_and_b32 v4, 7, v0
v_xor_b32 v5, v4, v2
v_lshl_add_u32 v{qDX[0]}, v5, 4, v3
v_xor_b32 v5, 4, v5
v_lshl_add_u32 v{qDX[1]}, v5, 4, v3
""")
    for e in range(3):
        b(f"""
s_mul_i32 s{sT}, s{sW}, 3
s_add_u32 s{sT}, s{sT}, {e}
s_min_u32 s{sT}, s{sT}, 7
s_bfe_u32 s{sT2}, s{sT}, 0x10001
s_lshl_b32 s{sT2}, s{sT2}, 3
v_lshlrev_b32 v3, 1, v2
v_add_u32 v3, s{sT2}, v3
v_xor_b32 v3, v1, v3
v_lshlrev_b32 v3, 4, v3
v_lshl_add_u32 v3, v2, 13, v3
s_lshl_b32 s{sT2}, s{sT}, 15
v_add_u32 v{qDW[e]}, s{sT2}, v3
s_lshl_b32 s{86+e}, s{sT}, 10
s_add_u32 s{86+e}, s{86+e}, {WB}
""")
    b(f"""
s_mul_i32 s{sXM}, s{sW}, {6*1024}
s_mul_i32 s{sXS}, s{sW}, {6*10240}
s_mov_b32 s{sXK}, 0
s_mov_b32 s{sWK}, 0
s_and_b32 s{sQH}, s{sW}, 1
s_lshr_b32 s{sDH}, s{sW}, 1
s_lshl_b32 s{sM0}, s{sW}, 11
s_waitcnt lgkmcnt(0)
""")
    if OPT['fst']: stamp(b,1)
    b(f"""
s_mul_i32 s{sT}, s{sB}, 184320
s_add_u32 s{sX}, s32, s{sT}
s_addc_u32 s{sX+1}, s33, 0
s_mov_b32 s{sX+2}, 184320
s_mov_b32 s{sX+3}, 0x20000
s_lshl_b32 s{sT}, s{sH}, 8
s_add_u32 s{sWQ}, s38, s{sT}
s_addc_u32 s{sWQ+1}, s39, 0
s_sub_u32 s{sWQ+2}, 5242880, s{sT}
s_mov_b32 s{sWQ+3}, 0x20000
s_lshl_b32 s{sT}, s{sB}, 5
s_add_u32 s{sT}, s{sT}, s{sH}
s_lshr_b32 s{sT2}, s{sT}, 14
s_lshl_b32 s{sT}, s{sT}, 18
{"s_and_b32 s47, s47, 0x1c0000" + chr(10) + "s_mov_b32 s48, 0" if OPT['samekv'] else ""}
s_add_u32 s{sK}, s34, s{sT}
s_addc_u32 s{sK+1}, s35, s{sT2}
s_mov_b32 s{sK+2}, 262144
s_mov_b32 s{sK+3}, 0x20000
s_add_u32 s{sV}, s36, s{sT}
s_addc_u32 s{sV+1}, s37, s{sT2}
s_mov_b32 s{sV+2}, 262144
s_mov_b32 s{sV+3}, 0x20000
s_mov_b32 s{sO}, s40
s_mov_b32 s{sO+1}, s41
s_mov_b32 s{sO+2}, {O_BYTES}
s_mov_b32 s{sO+3}, 0x20000
""")
    if OPT['oponly']:
        b(f"""
s_mov_b32 s28, s98
s_mov_b32 s29, s99
s_mov_b32 s30, 256
s_mov_b32 s31, 0x20000
""")
        b("s_branch K1_OPONLY")
    if OPT['wsf']:
        flag_srd(b)
        flag_addr(b,234,236)
        b("buffer_load_dword v238, v234, s[72:75], 0 offen sc0 sc1")
    def xops(slot):
        ops=[]
        for e in range(6):
            o=[]
            if e==0:
                o.append(f"s_add_u32 s{sT}, s{sXS}, s{sXK}")
                o.append(f"s_add_u32 m0, s{sXM}, {XS[slot]}")
                o.append(f"s_add_u32 s{sXK}, s{sXK}, 128")
                o.append(f"s_cmp_eq_u32 s{sXK}, 1280")
                o.append(f"s_cselect_b32 s{sXK}, 0, s{sXK}")
            else:
                o.append(f"s_add_u32 m0, m0, 1024")
                o.append(f"s_add_u32 s{sT}, s{sT}, 10240")
            o.append(f"buffer_load_dwordx4 v{qDX[e&1]}, {sr(sX)}, s{sT} offen lds")
            ops.append(o)
        return ops
    def wops(slot):
        ops=[]
        for e in range(3):
            o=[f"s_add_u32 m0, s{86+e}, {slot*8192}"]
            o.append("s_nop 0")
            o.append(f"buffer_load_dwordx4 v{qDW[e]}, {sr(sWQ)}, s{sWK} offen lds")
            if e==2:
                o.append(f"s_add_u32 s{sWK}, s{sWK}, {32*8192}")
                o.append(f"s_cmp_eq_u32 s{sWK}, {640*8192}")
                o.append(f"s_cselect_b32 s{sWK}, 0, s{sWK}")
            ops.append(o)
        return ops
    def emit_ops(ops):
        for o in ops:
            for l in o: b(l)
    if OPT['rot']:
        b(f"""
{"s_and_b32 s47, s6, 3" if OPT['rot3'] else "s_mov_b32 s47, s6"}
s_mul_i32 s{sT}, s{sT}, 3
s_and_b32 s{sT2}, s{sH}, 7
s_add_u32 s{sT}, s{sT}, s{sT2}
s_cmp_ge_u32 s{sT}, 20
s_cselect_b32 s{sT2}, 20, 0
s_sub_u32 s{sT}, s{sT}, s{sT2}
s_cmp_ge_u32 s{sT}, 10
s_cselect_b32 s{sT2}, 10, 0
s_sub_u32 s{sT}, s{sT}, s{sT2}
s_lshl_b32 s{sXK}, s{sT}, 7
s_lshl_b32 s{sWK}, s{sT}, 19
""")
    def wtouch(t,dst):
        b(f"v_add_u32 v5, {32*t}, v3")
        b(f"v_lshlrev_b32 v5, 2, v5")
        b(f"v_add_u32 v5, s{sB}, v5")
        b(f"v_lshl_add_u32 v5, v5, 13, v4")
        b(f"buffer_load_dword v{dst}, v5, {sr(sWQ)}, 0 offen{' nt' if OPT['tnt'] else ''}")
    def xtouch(t,dst):
        b(f"v_add_u32 v5, {64*t}, v0")
        b(f"v_min_u32 v5, 179, v5")
        b(f"v_mul_u32_u24 v6, s{sT2}, v5")
        b(f"v_lshrrev_b32 v6, 16, v6")
        b(f"v_mul_u32_u24 v7, 18, v6")
        b(f"v_sub_u32 v7, v5, v7")
        b(f"v_lshlrev_b32 v7, 3, v7")
        b(f"v_add_u32 v7, s{sT}, v7")
        b(f"v_mul_u32_u24 v7, 1280, v7")
        b(f"v_lshl_add_u32 v7, v6, 7, v7")
        b(f"buffer_load_dword v{dst}, v7, {sr(sX)}, 0 offen{' nt' if OPT['tnt'] else ''}")
    def k0load():
        for vw in range(4):
            b(f"""
v_add_u32 v190, {8*vw}, v2
v_lshlrev_b32 v191, 8, v190
v_and_b32 v192, 15, v190
v_xor_b32 v192, v1, v192
v_lshl_add_u32 v193, v192, 4, v191
v_add_u32 v192, 4, v190
v_and_b32 v192, 15, v192
v_xor_b32 v192, v1, v192
v_lshl_add_u32 v194, v192, 4, v191
s_mov_b32 m0, {K0B+vw*2048}
s_nop 0
buffer_load_dwordx4 v193, {sr(sK)}, 0 offen nt lds
buffer_load_dwordx4 v194, {sr(sK)}, 0 offen offset:1024 nt lds
""")
    def kvtouch(n):
        if n==0: return
        b(f"v_lshlrev_b32 v195, 7, v0")
        for t in range(n):
            b(f"s_mov_b32 s{sLAST}, {(t+1)*8192}")
            b(f"buffer_load_dword v{172+2*t}, v195, {sr(sK)}, s{sLAST} offen nt")
            b(f"s_mov_b32 s{sLAST}, {t*8192}")
            b(f"buffer_load_dword v{173+2*t}, v195, {sr(sV)}, s{sLAST} offen nt")
    if OPT['ldelay']:
        FL=48<<20
        b(f"""
s_add_u32 s28, s40, {FL}
s_addc_u32 s29, s41, 0
s_mov_b32 s30, 32768
s_mov_b32 s31, 0x20000
s_and_b32 s{sT}, s2, 255
s_lshl_b32 s89, s{sT}, 7
v_mov_b32 v61, 0
""")
        b("s_cmp_lt_u32 s2, 256")
        b("s_cbranch_scc0 K1_DLATE")
        b(f"s_cmp_lg_u32 s{sW}, 3")
        b("s_cbranch_scc1 K1_NODELAY")
        b(f"buffer_load_dword v199, v61, s[28:31], s89 offen sc1")
        b("s_branch K1_NODELAY")
        b.label("K1_DLATE")
        b(f"s_cmp_lg_u32 s{sW}, 0")
        b("s_cbranch_scc1 K1_DELAYB")
        b(f"buffer_load_dword v62, v61, s[28:31], s89 offen sc1")
        b(f"s_mov_b32 s{sIT}, 0")
        b("s_waitcnt vmcnt(0)")
        b(f"v_readfirstlane_b32 s{sLAST}, v62")
        b.label("K1_DPOLL")
        b(f"""
s_sleep {OPT['dsleep']}
buffer_load_dword v60, v61, s[28:31], s89 offen sc1
s_waitcnt vmcnt(0)
v_readfirstlane_b32 s{sT}, v60
s_cmp_lg_u32 s{sT}, s{sLAST}
s_cbranch_scc1 K1_DELAYB
s_add_u32 s{sIT}, s{sIT}, 1
s_cmp_lt_u32 s{sIT}, {OPT['dmax']}
s_cbranch_scc1 K1_DPOLL
""")
        b.label("K1_DELAYB")
        b("s_barrier")
        b.label("K1_NODELAY")
    if OPT['rot']:
        b(f"s_cmp_eq_u32 s{sW}, 3")
        b("s_cbranch_scc1 K1_SETUP")
        emit_ops(xops(0)); emit_ops(wops(0)); emit_ops(wops(1))
        b("s_branch K1_SETUP")
    b(f"s_cmp_eq_u32 s{sW}, 3")
    b("s_cbranch_scc0 K1_SETUP")
    b(f"v_lshrrev_b32 v3, 1, v0")
    b(f"v_and_b32 v4, 1, v0")
    b(f"v_lshlrev_b32 v4, 7, v4")
    b(f"s_and_b32 s{sT}, s{sH}, 7")
    b(f"s_mov_b32 s{sT2}, {(1<<16)//18+1}")
    b("s_cmp_lt_u32 s2, 256")
    b("s_cbranch_scc0 K1_TLATE")
    wtouch(0,164); xtouch(0,165); wtouch(1,166); wtouch(2,167); xtouch(1,168); wtouch(3,169); xtouch(2,170); wtouch(4,171)
    b("s_branch K1_SETUP")
    b.label("K1_TLATE")
    k0load()
    kvtouch(OPT['kvpfl'])
    xtouch(0,165); xtouch(1,168); xtouch(2,170)
    b.label("K1_SETUP")
    b(f"""
s_lshl_b32 s{sT}, s{sW}, 3
v_add_u32 v3, s{sT}, v2
v_lshlrev_b32 v4, 8, v3
v_and_b32 v5, 15, v3
v_xor_b32 v5, v1, v5
v_lshl_add_u32 v{DK[0]}, v5, 4, v4
v_add_u32 v5, 4, v3
v_and_b32 v5, 15, v5
v_xor_b32 v5, v1, v5
v_lshl_add_u32 v{DK[1]}, v5, 4, v4
v_lshlrev_b32 v5, 1, v2
v_xor_b32 v5, v1, v5
v_lshl_add_u32 v{DV[0]}, v5, 4, v4
v_lshlrev_b32 v5, 1, v2
v_add_u32 v5, 8, v5
v_xor_b32 v5, v1, v5
v_lshl_add_u32 v{DV[1]}, v5, 4, v4
""")
    b(f"""
v_bfe_u32 v3, v0, 2, 2
v_and_b32 v4, 1, v2
v_lshl_add_u32 v4, v4, 2, v3
v_lshl_add_u32 v5, v2, 3, v3
v_lshlrev_b32 v5, 8, v5
v_and_b32 v6, 3, v0
v_lshl_add_u32 v5, v6, 3, v5
v_add_u32 v5, {WB}, v5
""")
    for i in range(4):
        b(f"""
s_lshl_b32 s{sT}, s{sQH}, 1
s_add_u32 s{sT}, s{sT}, {i}
s_and_b32 s{sT}, s{sT}, 3
s_lshl_b32 s{sT2}, s{sDH}, 2
s_add_u32 s{sT}, s{sT}, s{sT2}
v_xor_b32 v6, s{sT}, v4
v_lshl_add_u32 v{qWA[i]}, v6, 5, v5
""")
    b(f"""
v_lshrrev_b32 v3, 1, v1
v_xor_b32 v3, v3, v2
v_lshlrev_b32 v3, 4, v3
v_lshl_add_u32 v3, v1, 7, v3
s_lshl_b32 s{sT}, s{sQH}, 13
v_add_u32 v{qXB[0]}, s{sT}, v3
v_xor_b32 v{qXB[1]}, 64, v{qXB[0]}
v_add_u32 v{qX9[0]}, 16384, v3
v_xor_b32 v{qX9[1]}, 64, v{qX9[0]}
""")
    for r in range(O0,O0+72): b(f"v_mov_b32 v{r}, 0")
    def qreads(k,fs):
        wb=(k%4)*8192; xb=XS[(k>>1)&1]; e=k&1
        o=[]
        for t in range(4):
            o.append(f"ds_read_b128 {vr(fs+16+4*t)}, v{qXB[e]} offset:{xb+t*2048}")
            o.append(f"ds_read_b64_tr_b16 {vr(fs+4*t,2)}, v{qWA[t]} offset:{wb}")
            o.append(f"ds_read_b64_tr_b16 {vr(fs+4*t+2,2)}, v{qWA[t]} offset:{wb+1024}")
        o.append(f"ds_read_b128 {vr(fs+32)}, v{qX9[e]} offset:{xb}")
        return o
    def qstep(p,dma,nexthead=None,pre=None):
        cur=FA[p&1]; nxt=FA[(p&1)^1]
        if OPT['qst']:
            b("s_memtime s[90:91]")
            b("s_waitcnt lgkmcnt(0)")
            b(f"s_lshl_b32 s92, s{sIT}, 2")
            b(f"s_add_u32 s92, s92, {p}")
            b("s_mov_b32 m0, s92")
            b("s_sub_u32 s90, s90, s61")
            b("v_writelane_b32 v200, s90, m0")
        rd=qreads(p+1,nxt)
        mf=[]
        for i in range(4):
            for t in range(4): mf.append(mfma(O0+16*t+4*i,cur+4*i,cur+16+4*t,O0+16*t+4*i))
            if i<2: mf.append(mfma(O9+4*i,cur+4*i,cur+32,O9+4*i))
        ops=[]
        if dma:
            if p%2==1: ops+=xops((p>>1)&1)
            ops+=wops(p)
        pos={}
        n=len(ops)
        if nexthead is None:
            for idx in range(n): pos[7+idx*10//max(n,1)]=ops[idx]
        else:
            for idx in range(n): pos[2+idx*10//max(n,1)]=ops[idx]
        for idx,m in enumerate(mf):
            b(m)
            for r_ in rd[2*idx:2*idx+2]: b(r_)
            if idx in pos:
                for l in pos[idx]: b(l)
            if nexthead is not None and idx==OPT['qhpos']:
                for l in nexthead: b(l)
    if OPT['qtwice']:
        b("s_mov_b32 s95, 0")
        b.label("K1_QAGAIN")
        b("s_cmp_eq_u32 s95, 0")
        b("s_cbranch_scc1 K1_QFIRST")
        b("s_barrier")
        b("s_memtime s[62:63]")
        b("s_memrealtime s[60:61]")
        b("s_waitcnt lgkmcnt(0)")
        b(f"s_cmp_eq_u32 s{sW}, 3")
        b("s_cbranch_scc1 K1_QFIRST")
        emit_ops(xops(0)); emit_ops(wops(0)); emit_ops(wops(1))
        b.label("K1_QFIRST")
    b(f"s_cmp_eq_u32 s{sW}, 3")
    b("s_cbranch_scc1 K1_Q3")
    if not OPT['rot']:
        b("s_barrier")
        if OPT['fst']: stamp(b,2)
        emit_ops(xops(0)); emit_ops(wops(0)); emit_ops(wops(1)); emit_ops(xops(1)); emit_ops(wops(2)); emit_ops(wops(3))
    elif OPT['fst']: stamp(b,2)
    b("s_waitcnt vmcnt(3)")
    b("s_barrier")
    if OPT['fst']: stamp(b,3)
    for l in qreads(0,FA[0]): b(l)
    emit_ops(xops(1)); emit_ops(wops(2)); emit_ops(wops(3))
    b(f"s_mov_b32 s{sIT}, 0")
    if OPT['thr']:
        b(f"s_lshr_b32 s{sSEL}, s2, 8")
        b(f"s_mul_i32 s{sSEL}, s{sSEL}, {OPT['thr']}")
    if OPT['qh']:
        b("s_waitcnt vmcnt(12) lgkmcnt(0)")
        b("s_barrier")
        b.label("K1_QLOOP")
        for p in range(4):
            qstep(p,True,[f"s_waitcnt vmcnt({12 if (p+1)%2==0 else 6}) lgkmcnt(0)","s_barrier"])
        b(f"s_add_u32 s{sIT}, s{sIT}, 1")
        b(f"s_cmp_lt_u32 s{sIT}, 4")
        b("s_cbranch_scc1 K1_QLOOP")
        for p in range(4):
            qstep(p,False,[f"s_waitcnt vmcnt({[3,0,0][p]}) lgkmcnt(0)","s_barrier"] if p<3 else [])
    else:
        b.label("K1_QLOOP")
        for p in range(4):
            b(f"s_waitcnt vmcnt({12 if p%2==0 else 6}) lgkmcnt(0)")
            if OPT['thr']:
                lt=b.new('TH')
                b(f"s_cmp_lt_u32 s{sIT}, s{sSEL}")
                b(f"s_cbranch_scc0 {lt}")
                b("s_waitcnt vmcnt(0)")
                b.label(lt)
            b("s_barrier")
            qstep(p,True)
        b(f"s_add_u32 s{sIT}, s{sIT}, 1")
        b(f"s_cmp_lt_u32 s{sIT}, 4")
        b("s_cbranch_scc1 K1_QLOOP")
        for p in range(4):
            b(f"s_waitcnt vmcnt({[12,3,0,0][p] if not OPT['searly'] else [12,3,0,4][p]}) lgkmcnt(0)")
            b("s_barrier")
            if OPT['searly'] and p in (2,3):
                b(f"s_mov_b32 s{sSOFF}, {(p-2)*8192}")
                dma_slot(b,p-2)
            qstep(p,False)
    b("s_branch K1_QDONE")
    b.label("K1_Q3")
    if OPT['rot']:
        if OPT['fst']: stamp(b,2)
        b("s_barrier")
        if OPT['fst']: stamp(b,3)
        for l in qreads(0,FA[0]): b(l)
        b(f"s_mov_b32 s{sIT}, 0")
        if OPT['qh']:
            b("s_waitcnt lgkmcnt(0)")
            b("s_barrier")
        b("s_branch K1_QLOOP3")
    b("s_cmp_lt_u32 s2, 256")
    b("s_cbranch_scc0 K1_Q3L")
    b(f"s_waitcnt vmcnt({8-OPT['tw']})")
    b("s_barrier")
    if OPT['fst']: stamp(b,2)
    k0load()
    kvtouch(OPT['kvpf'])
    b("s_branch K1_Q3J")
    b.label("K1_Q3L")
    b("s_waitcnt vmcnt(0)")
    b("s_barrier")
    if OPT['fst']: stamp(b,2)
    b.label("K1_Q3J")
    b("s_barrier")
    if OPT['fst']: stamp(b,3)
    for l in qreads(0,FA[0]): b(l)
    b(f"s_mov_b32 s{sIT}, 0")
    b.label("K1_QLOOP3")
    if OPT['rot']:
        l1=b.new('W3'); l2=b.new('W3')
        b(f"s_cmp_eq_u32 s{sIT}, {OPT['k0it']}")
        b(f"s_cbranch_scc0 {l1}")
        k0load()
        b.label(l1)
        b(f"s_cmp_eq_u32 s{sIT}, {OPT['kvit']}")
        b(f"s_cbranch_scc0 {l2}")
        b("s_cmp_lt_u32 s2, 256")
        b(f"s_cbranch_scc0 {l2}L")
        kvtouch(OPT['kvpf'])
        b(f"s_branch {l2}")
        b.label(l2+"L")
        kvtouch(OPT['kvpfl'])
        b.label(l2)
    if OPT['qh']:
        for p in range(4):
            qstep(p,False,["s_waitcnt lgkmcnt(0)","s_barrier"])
        b(f"s_add_u32 s{sIT}, s{sIT}, 1")
        b(f"s_cmp_lt_u32 s{sIT}, 4")
        b("s_cbranch_scc1 K1_QLOOP3")
        for p in range(4):
            qstep(p,False,["s_waitcnt lgkmcnt(0)","s_barrier"] if p<3 else [])
    else:
        for p in range(4):
            b(f"s_waitcnt lgkmcnt(0)")
            b("s_barrier")
            if OPT['searly'] and p in (2,3):
                l_=b.new('SE')
                b(f"s_cmp_eq_u32 s{sIT}, 4")
                b(f"s_cbranch_scc0 {l_}")
                b(f"s_mov_b32 s{sSOFF}, {(p-2)*8192}")
                dma_slot(b,p-2)
                b.label(l_)
            qstep(p,False)
        b(f"s_add_u32 s{sIT}, s{sIT}, 1")
        b(f"s_cmp_lt_u32 s{sIT}, 5")
        b("s_cbranch_scc1 K1_QLOOP3")
    b.label("K1_QDONE")
    if OPT['ldelay']:
        ls=b.new('LS')
        b("s_cmp_lt_u32 s2, 256")
        b(f"s_cbranch_scc0 {ls}")
        b(f"s_cmp_lg_u32 s{sW}, 3")
        b(f"s_cbranch_scc1 {ls}")
        b("s_waitcnt vmcnt(0)")
        b("v_add_u32 v199, 1, v199")
        b("v_mov_b32 v198, 0")
        b(f"buffer_store_dword v199, v198, s[28:31], s89 offen sc1")
        b.label(ls)
    if OPT['qtwice']:
        b("s_waitcnt vmcnt(0) lgkmcnt(0)")
        b("s_add_u32 s95, s95, 1")
        b("s_cmp_lt_u32 s95, 2")
        b("s_cbranch_scc1 K1_QAGAIN")
    if not OPT['fst']: stamp(b,1)
    if OPT['qponly']:
        b("s_waitcnt vmcnt(0)")
        if OPT['qst']:
            b(f"s_lshl_b32 s{sT}, s2, 2")
            b(f"s_add_u32 s{sT}, s{sT}, s{sW}")
            b(f"s_lshl_b32 s{sT}, s{sT}, 8")
            b(f"s_add_u32 s{sT}, s{sT}, {60<<20}")
            b(f"s_mov_b32 s{sO+2}, 0x10000000")
            b("v_lshlrev_b32 v3, 2, v0")
            b(f"buffer_store_dword v200, v3, {sr(sO)}, s{sT} offen")
        for i in ((4,) if OPT['fst'] else (2,3,4)): stamp(b,i)
        dump_stamps(b,10,sO,50<<20)
        b("s_endpgm")
    if OPT['searly']:
        b("s_waitcnt vmcnt(8) lgkmcnt(0)")
        b("s_barrier")
    else:
        b("s_waitcnt vmcnt(0) lgkmcnt(0)")
        b("s_barrier")
        b(f"s_mov_b32 s{sSOFF}, 0")
        dma_slot(b,0)
    b(f"s_mov_b32 s{sSEL}, {f2u(CSC)}")
    b(f"""
v_lshlrev_b32 v3, 8, v1
v_and_b32 v76, 1, v2
v_lshl_add_u32 v3, v76, 3, v3
v_add_u32 v3, {QB}, v3
v_lshrrev_b32 v77, 1, v2
s_lshl_b32 s{sT2}, s{sQH}, 14
v_add_u32 v78, s{sT2}, v3
""")
    for i in range(4):
        b(f"""
s_lshl_b32 s{sIT}, s{sQH}, 1
s_add_u32 s{sIT}, s{sIT}, {i}
s_and_b32 s{sIT}, s{sIT}, 3
s_lshl_b32 s{sT2}, s{sDH}, 2
s_add_u32 s{sIT}, s{sIT}, s{sT2}
s_lshl_b32 s{sIT}, s{sIT}, 1
v_add_u32 v79, s{sIT}, v77
v_xor_b32 v79, v79, v1
v_lshlrev_b32 v79, 4, v79
v_add_u32 v80, v79, v78
""")
        for t in range(4):
            acc=O0+16*t+4*i
            for r in range(4): b(f"v_mul_f32 v{acc+r}, s{sSEL}, v{acc+r}")
            b(f"v_cvt_pk_bf16_f32 v{acc}, v{acc}, v{acc+1}")
            b(f"v_cvt_pk_bf16_f32 v{acc+1}, v{acc+2}, v{acc+3}")
            b(f"ds_write_b64 v80, {vr(acc,2)} offset:{t*4096}")
        if i<2:
            acc=O9+4*i
            b(f"v_add_u32 v82, v79, v3")
            for r in range(4): b(f"v_mul_f32 v{acc+r}, s{sSEL}, v{acc+r}")
            b(f"v_cvt_pk_bf16_f32 v{acc}, v{acc}, v{acc+1}")
            b(f"v_cvt_pk_bf16_f32 v{acc+1}, v{acc+2}, v{acc+3}")
            b(f"ds_write_b64 v82, {vr(acc,2)} offset:32768")
    for s in range(4):
        b(f"""
v_add_u32 v79, {4*s}, v2
v_xor_b32 v79, v79, v1
v_lshlrev_b32 v79, 4, v79
v_lshl_add_u32 v{KA[s]}, v1, 8, v79
""")
    b(f"s_lshl_b32 s{sT2}, s{sW}, 13")
    b(f"s_add_u32 s{sT2}, s{sT2}, {QB}")
    for s in range(4):
        b(f"v_add_u32 v{S0[1]+s}, s{sT2}, v{KA[s]}")
        b(f"v_add_u32 v{S1[1]+s}, {K0B}, v{KA[s]}")
    b("s_waitcnt lgkmcnt(0)")
    b("s_barrier")
    for s in range(4): b(f"ds_read_b128 {vr(Q0+4*s)}, v{S0[1]+s} offset:0")
    for s in range(4): b(f"ds_read_b128 {vr(Q1+4*s)}, v{S0[1]+s} offset:4096")
    for s in range(4): b(f"v_add_u32 v{S1[0]+s}, {QB+32768}, v{KA[s]}")
    for s in range(4): b(f"ds_read_b128 {vr(Q9+4*s)}, v{S1[0]+s} offset:0")
    b(f"""
v_bfe_u32 v3, v0, 2, 2
v_and_b32 v4, 1, v2
v_lshl_add_u32 v4, v4, 2, v3
v_lshl_add_u32 v5, v2, 2, v3
v_lshlrev_b32 v5, 8, v5
v_and_b32 v6, 3, v0
v_lshl_add_u32 v5, v6, 3, v5
v_add_u32 v5, 8192, v5
s_lshl_b32 s{sT}, s{sW}, 1
""")
    for i in range(8):
        b(f"""
s_add_u32 s{sT2}, s{sT}, {i}
s_and_b32 s{sT2}, s{sT2}, 7
v_xor_b32 v6, s{sT2}, v4
v_lshl_add_u32 v{VA[i]}, v6, 5, v5
""")
    b(f"""
v_lshlrev_b32 v{P9A}, 4, v0
v_add_u32 v{P9A}, {P9B}, v{P9A}
v_xor_b32 v{BP16}, 16, v0
v_lshlrev_b32 v{BP16}, 2, v{BP16}
""")
    for r in range(O0,O0+72): b(f"v_mov_b32 v{r}, 0")
    for r in L0+L1+L9: b(f"v_mov_b32 v{r}, 0")
    b("s_waitcnt lgkmcnt(0)")
    b(f"v_xor_b32 v{BP32}, 32, v0")
    b(f"v_lshlrev_b32 v{BP32}, 2, v{BP32}")
    b("s_barrier")
    if OPT['dbg_q']:
        b(f"""
s_mul_i32 s{sT}, s2, {4*12*1024}
s_mul_i32 s{sT2}, s{sW}, {12*1024}
s_add_u32 s{sT}, s{sT}, s{sT2}
v_lshlrev_b32 v3, 4, v0
s_mov_b32 s{sO+2}, 0x10000000
""")
        for f in range(12):
            b(f"buffer_store_dwordx4 {vr(Q0+4*f)}, v3, {sr(sO)}, s{sT} offen")
            b(f"s_add_u32 s{sT}, s{sT}, 1024")
        b("s_waitcnt vmcnt(0)")
        b("s_branch K1_END")
    LA=OPT['attla']
    for sl in range(2 if OPT['searly'] else 1,LA):
        b(f"s_mov_b32 s{sSOFF}, {sl*8192}")
        dma_slot(b,sl)
    b(f"s_mov_b32 s{sSOFF}, {LA*8192}")
    pb=P()
    for kt in range(2):
        for s in range(4):
            kf=KF[(kt*4+s)%len(KF)]
            pb(f"ds_read_b128 {vr(kf)}, v{S1[1]+s} offset:{kt*4096}")
            for (Sx,Qx) in ((S0[0],Q0),(S1[0],Q1),(S9,Q9)):
                d=Sx+4*kt
                pb(mfma(d,kf,Qx+4*s,'0' if s==0 else d))
    o,ms,q=finish(pb.ins); b.add(o)
    TT=((S0[0],NM0),(S1[0],NM1),(S9,NM9))
    for (Sx,NM) in TT:
        b(f"""
v_max3_f32 v{NM}, v{Sx}, v{Sx+1}, v{Sx+2}
v_max3_f32 v{NM+2}, v{Sx+3}, v{Sx+4}, v{Sx+5}
v_max3_f32 v{NM}, v{NM}, v{Sx+6}, v{Sx+7}
v_max_f32 v{NM}, v{NM}, v{NM+2}
ds_bpermute_b32 v{NM+1}, v{BP16}, v{NM}
""")
    b("s_waitcnt lgkmcnt(0)")
    for (Sx,NM) in TT:
        b(f"v_max_f32 v{NM}, v{NM}, v{NM+1}")
        b(f"ds_bpermute_b32 v{NM+1}, v{BP32}, v{NM}")
    b("s_waitcnt lgkmcnt(0)")
    for (Sx,NM) in TT:
        b(f"""
v_max_f32 v{NM}, v{NM}, v{NM+1}
v_sub_f32 v{NM}, 0, v{NM}
v_mov_b32 v{NM+1}, v{NM}
v_mov_b32 v{NM+2}, v{NM}
v_mov_b32 v{NM+3}, v{NM}
""")
        for r in range(8): b(f"v_add_f32 v{Sx+r}, v{Sx+r}, v{NM}")
    def softmax_seq(S,L):
        for r in range(8): b(f"v_exp_f32 v{S+r}, v{S+r}")
        for r in range(8): b(f"v_add_f32 v{L[r&1]}, v{L[r&1]}, v{S+r}")
        for r in range(4): b(f"v_cvt_pk_bf16_f32 v{S+r}, v{S+2*r}, v{S+2*r+1}")
    softmax_seq(S0[0],L0)
    b(f"s_cmp_lg_u32 s{sW}, 0")
    b("s_cbranch_scc1 K1_NOP9")
    softmax_seq(S9,L9)
    b(f"ds_write_b128 v{P9A}, {vr(S9)} offset:0")
    b.label("K1_NOP9")
    b(f"s_mov_b32 s{sIT}, 0")
    if not OPT['prioatt']: b("s_setprio 0")
    if OPT['prioL']:
        b("s_cmp_lt_u32 s2, 256")
        b("s_cbranch_scc1 K1_PL")
        b(f"s_setprio {OPT['prioL']}")
        b.label("K1_PL")
    stamp(b,2)
    LA=OPT['attla']
    assert LA==3
    b("s_waitcnt vmcnt(10) lgkmcnt(0)")
    b("s_barrier")
    for s_ in range(4): b(f"ds_read_b128 {vr(KF[s_])}, v{KA[s_]} offset:0")
    bodies={}
    for p in range(4):
        for ver in ('plain','t9a','t9b')+(('final',) if p==3 else ()):
            if ver=='t9a' or ver=='t9b':
                pass
            o,ms=schedule(att_step(p,ver),lds_lat=OPT['ldslat'],lds_ahead=(OPT['lah'] if ver!='final' else 99),lds_per_gap=(OPT['lpg'] if ver!='final' else 9))
            if ver!='final' and not OPT['nodma']:
                o=place_macros(o,dma_macros(p,LA),dmpos(ver))
            if OPT['noexp']: o=[x for x in o if x.kind!='trans']
            if OPT['novalu']: o=[x for x in o if x.kind not in('trans','valu')]
            if OPT['nolds']: o=[x for x in o if x.kind not in('dsr','dsw')]
            o,q=insert_lgkm(o)
            bodies[(p,ver)]=o
            if p==0 or ver=='final': print(f"; step p={p} {ver}: est {ms} cycles, {len(o)} instrs",file=sys.stderr)
    b.label("K1_LOOP")
    b(f"s_cmp_eq_u32 s{sIT}, 7")
    b(f"s_cselect_b32 s{sLAST}, 1, 0")
    for p in range(4):
        d1=b.new('D'); d2=b.new('D')
        lastcnt=[6,4,2,0][p]
        if lastcnt==6:
            b(f"s_waitcnt vmcnt(6) lgkmcnt(0)")
            if not OPT['nobar']: b("s_barrier")
        else:
            if p!=0: b(f"s_cmp_eq_u32 s{sLAST}, 1")
            b(f"s_cbranch_scc1 K1_LW_{p}")
            b(f"s_waitcnt vmcnt(6) lgkmcnt(0)")
            if not OPT['nobar']: b("s_barrier")
            b.label(f"K1_LWB_{p}")
        if p==0 and OPT['wopf']:
            lw=b.new('WO')
            b(f"s_cmp_eq_u32 s{sIT}, {OPT['wotit']}")
            b(f"s_cbranch_scc0 {lw}")
            b(f"""
s_lshr_b32 s{sT}, s{sH}, 3
s_lshl_b32 s{sT}, s{sT}, 5
s_bfe_u32 s{sT2}, s2, 0x50003
s_add_u32 s{sT}, s{sT}, s{sT2}
s_mul_i32 s{sT}, s{sT}, 40960
s_add_u32 s80, s84, s{sT}
s_addc_u32 s81, s85, 0
s_mov_b32 s82, 40960
s_mov_b32 s83, 0x20000
v_lshlrev_b32 v3, 7, v0
s_lshl_b32 s{sT}, s{sW}, 13
buffer_load_dword v1, v3, s[80:83], s{sT} offen
s_mov_b32 s{sT}, 32768
buffer_load_dword v2, v3, s[80:83], s{sT} offen
""")
            b.label(lw)
        if OPT['ast']:
            b("s_memrealtime s[90:91]")
            b("s_waitcnt lgkmcnt(0)")
            b(f"s_lshl_b32 s92, s{sIT}, 2")
            b(f"s_add_u32 s92, s92, {p}")
            b("s_mov_b32 m0, s92")
            b("s_nop 1")
            b("v_writelane_b32 v237, s90, m0")
        wa=0 if p%2==0 else 2
        if not OPT['not9']:
            b(f"s_cmp_eq_u32 s{sW}, {wa}")
            b(f"s_cbranch_scc1 K1_T9A_{p}")
            b(f"s_cmp_eq_u32 s{sW}, {wa+1}")
            b(f"s_cbranch_scc1 K1_T9B_{p}")
        b.add(bodies[(p,'plain')])
        b.label(f"K1_NEXT_{p}")
    b(f"s_add_u32 s{sIT}, s{sIT}, 1")
    b("s_branch K1_LOOP")
    for p in range(4):
        b.label(f"K1_T9A_{p}")
        b.add(bodies[(p,'t9a')])
        b(f"s_branch K1_NEXT_{p}")
        b.label(f"K1_T9B_{p}")
        b.add(bodies[(p,'t9b')])
        b(f"s_branch K1_NEXT_{p}")
    for p in (1,2,3):
        b.label(f"K1_LW_{p}")
        b(f"s_waitcnt vmcnt({[6,4,2,0][p]}) lgkmcnt(0)")
        b("s_barrier")
        if p==3: b("s_branch K1_FINAL")
        else: b(f"s_branch K1_LWB_{p}")
    b.label("K1_FINAL")
    b.add(bodies[(3,'final')])
    b("s_waitcnt lgkmcnt(0)")
    stamp(b,3)
    if OPT['ast']:
        b(f"s_lshl_b32 s{sT}, s2, 2")
        b(f"s_add_u32 s{sT}, s{sT}, s{sW}")
        b(f"s_lshl_b32 s{sT}, s{sT}, 8")
        b(f"s_add_u32 s{sT}, s{sT}, {60<<20}")
        b(f"s_mov_b32 s{sO+2}, 0x10000000")
        b("v_lshlrev_b32 v3, 2, v0")
        b(f"buffer_store_dword v237, v3, {sr(sO)}, s{sT} offen")
        b(f"s_mov_b32 s{sO+2}, {O_BYTES}")
    LL=(L0,L1,L9)
    for L in LL:
        b(f"v_add_f32 v{L[0]}, v{L[0]}, v{L[1]}")
        b(f"ds_bpermute_b32 v{L[1]}, v{BP16}, v{L[0]}")
    b("s_waitcnt lgkmcnt(0)")
    for L in LL:
        b(f"v_add_f32 v{L[0]}, v{L[0]}, v{L[1]}")
        b(f"ds_bpermute_b32 v{L[1]}, v{BP32}, v{L[0]}")
    b("s_waitcnt lgkmcnt(0)")
    for L in LL: b(f"v_add_f32 v{L[0]}, v{L[0]}, v{L[1]}")
    THR=f2u(2.0**60) if not OPT['force_slow'] else f2u(0.5)
    b(f"""
s_mov_b32 s{sSEL}, {THR}
v_cmp_ngt_f32 vcc, s{sSEL}, v{L0[0]}
s_mov_b64 s[76:77], vcc
v_cmp_ngt_f32 vcc, s{sSEL}, v{L1[0]}
s_or_b64 s[76:77], s[76:77], vcc
s_cmp_lg_u64 s[76:77], 0
s_cselect_b32 s{sT}, 0x7f800000, 0
v_mov_b32 v1, s{sT}
v_max_f32 v{L9[0]}, v{L9[0]}, v1
""")
    b(f"""
s_lshl_b32 s{sT}, s{sW}, 8
v_lshlrev_b32 v3, 2, v0
v_add_u32 v3, {L9B}, v3
v_add_u32 v1, s{sT}, v3
ds_write_b32 v1, v{L9[0]}
v_rcp_f32 v{L0[0]}, v{L0[0]}
v_rcp_f32 v{L1[0]}, v{L1[0]}
s_waitcnt lgkmcnt(0)
s_barrier
ds_read_b32 v{S9}, v3
ds_read_b32 v{S9+1}, v3 offset:256
ds_read_b32 v{S9+2}, v3 offset:512
ds_read_b32 v{S9+3}, v3 offset:768
""")
    b(f"""
s_lshl_b32 s{sT}, s{sBR}, 3
s_add_u32 s{sT}, s{sT}, s{sB}
s_mul_i32 s{sT}, s{sT}, 9
s_lshl_b32 s{sT2}, s{sW}, 1
s_add_u32 s{sSEL}, s{sT}, s{sT2}
s_lshl_b32 s{sSEL}, s{sSEL}, 5
s_add_u32 s{sSEL}, s{sSEL}, s{sH}
s_lshl_b32 s{sSEL}, s{sSEL}, 12
s_add_u32 s{sT}, s{sT}, 8
s_lshl_b32 s{sT}, s{sT}, 5
s_add_u32 s{sT}, s{sT}, s{sH}
s_lshl_b32 s{sIT}, s{sT}, 12
v_lshlrev_b32 v3, 4, v0
s_waitcnt lgkmcnt(0)
v_add_f32 v{S9}, v{S9}, v{S9+1}
v_add_f32 v{S9+2}, v{S9+2}, v{S9+3}
v_add_f32 v{L9[0]}, v{S9}, v{S9+2}
s_mov_b32 s{sT}, {THR}
v_cmp_ngt_f32 vcc, s{sT}, v{L9[0]}
v_rcp_f32 v{L9[0]}, v{L9[0]}
s_cmp_lg_u64 vcc, 0
s_cbranch_scc1 K1_SLOW
""")
    def ostore(r):
        if OPT['dupst']==2:
            b(f"buffer_store_dwordx4 {vr(r)}, v3, {sr(sO)}, s{sLAST} offen")
        elif OPT['dupst']==3:
            b(f"buffer_store_dwordx4 {vr(r)}, v3, {sr(sO)}, s{sLAST} offen")
            b(f"buffer_store_dwordx4 {vr(r)}, v3, {sr(sO)}, s{sLAST} offen sc1")
        elif OPT['dupst']==4:
            b(f"buffer_store_dwordx4 {vr(r)}, v3, {sr(sO)}, s{sLAST} offen sc0 sc1")
        else:
            b(f"buffer_store_dwordx4 {vr(r)}, v3, {sr(sO)}, s{sLAST} offen sc1")
            if OPT['dupst']: b(f"buffer_store_dwordx4 {vr(r)}, v3, {sr(sO)}, s{sLAST} offen")
    def pack(acc,i,L):
        for r in range(8): b(f"v_mul_f32 v{acc+4*i+r}, v{acc+4*i+r}, v{L}")
        b(f"v_cvt_pk_bf16_f32 v{acc+4*i}, v{acc+4*i}, v{acc+4*i+1}")
        b(f"v_cvt_pk_bf16_f32 v{acc+4*i+1}, v{acc+4*i+2}, v{acc+4*i+3}")
        b(f"v_cvt_pk_bf16_f32 v{acc+4*i+2}, v{acc+4*i+4}, v{acc+4*i+5}")
        b(f"v_cvt_pk_bf16_f32 v{acc+4*i+3}, v{acc+4*i+6}, v{acc+4*i+7}")
    for i in (0,2,4,6):
        b(f"""
s_add_u32 s{sT2}, s{sW}, {i//2}
s_and_b32 s{sT2}, s{sT2}, 3
s_lshl_b32 s{sT2}, s{sT2}, 10
s_add_u32 s{sLAST}, s{sT2}, s{sSEL}
""")
        pack(O0,i,L0[0])
        ostore(O0+4*i)
        b(f"s_add_u32 s{sLAST}, s{sLAST}, {32*4096}")
        pack(O1,i,L1[0])
        ostore(O1+4*i)
    b(f"""
s_lshl_b32 s{sT2}, s{sW}, 10
s_add_u32 s{sLAST}, s{sT2}, s{sIT}
""")
    pack(O9,0,L9[0])
    ostore(O9)
    b.label("K1_STORED")
    sDBG=28
    b(f"""
s_mov_b32 s{sDBG}, s98
s_mov_b32 s{sDBG+1}, s99
s_mov_b32 s{sDBG+2}, 256
s_mov_b32 s{sDBG+3}, 0x20000
s_waitcnt vmcnt(0)
s_barrier
s_cmp_lg_u32 s{sW}, 0
s_cbranch_scc1 K1_SIG
""")
    if OPT['wsf']:
        flag_addr(b,4,6)
        b(f"""
s_and_b32 s{sT}, s{sH}, 7
s_mov_b32 m0, s{sT}
v_add_u32 v6, 1, v238
v_cmp_eq_u32 vcc, s{sT}, v0
s_and_saveexec_b64 s[78:79], vcc
buffer_store_dword v6, v4, s[72:75], 0 offen sc0 sc1
s_mov_b64 exec, -1
""")
    else:
        b(f"""
s_lshl_b32 s{sT}, s{sBR}, 3
s_add_u32 s{sT}, s{sT}, s{sB}
s_lshl_b32 s{sT}, s{sT}, 2
s_add_u32 s{sT}, s{sT}, 128
s_lshl_b32 s{sT2}, 1, s{sH}
v_mov_b32 v4, s{sT2}
v_mov_b32 v5, 0
s_mov_b64 exec, 1
buffer_atomic_or v4, v5, {sr(sDBG)}, s{sT} offen sc1
s_mov_b64 exec, -1
""")
    b.label("K1_SIG")
    b.label("K1_OPONLY")
    stamp(b,4)
    if OPT['op2']:
        if OPT['op2']==1:
            b("s_cmp_lt_u32 s2, 256")
            b("s_cbranch_scc0 K1_FIN")
        op_phase2(b)
    else:
        if not OPT['opown']:
            b("s_cmp_lt_u32 s2, 256")
            b("s_cbranch_scc0 K1_FIN")
        if OPT['opmode']: op_phase(b)
    b.label("K1_FIN")
    b("s_branch K1_FIN2")
    b("s_branch K1_SLOWEND")
    b.label("K1_SLOW")
    QC=S0[0]
    SS_=S1[0]
    M_,LL_,MT,AL=L0[0],L0[1],L1[0],L1[1]
    s77=77
    b(f"s_mov_b32 s76, s{sSEL}")
    b(f"s_mov_b32 s77, s{sIT}")
    b("s_mov_b32 s78, 0")
    b.label("K1_SPASS")
    for pi,Qx in enumerate((Q0,Q1,Q9)):
        l_=b.new('SP')
        b(f"s_cmp_eq_u32 s78, {pi}")
        b(f"s_cbranch_scc0 {l_}")
        for r in range(16): b(f"v_mov_b32 v{QC+r}, v{Qx+r}")
        b.label(l_)
    for r in range(32): b(f"v_mov_b32 v{O0+r}, 0")
    b(f"v_mov_b32 v{M_}, 0xff800000")
    b(f"v_mov_b32 v{LL_}, 0")
    b(f"s_mov_b32 s{sSOFF}, 0")
    b.label("K1_STILE")
    b("s_barrier")
    b(f"""
s_mov_b32 m0, s{sM0}
s_nop 0
buffer_load_dwordx4 v{DK[0]}, {sr(sK)}, s{sSOFF} offen lds
buffer_load_dwordx4 v{DK[1]}, {sr(sK)}, s{sSOFF} offen offset:1024 lds
s_add_u32 m0, s{sM0}, 8192
s_nop 0
buffer_load_dwordx4 v{DV[0]}, {sr(sV)}, s{sSOFF} offen lds
buffer_load_dwordx4 v{DV[1]}, {sr(sV)}, s{sSOFF} offen offset:1024 lds
s_waitcnt vmcnt(0)
s_barrier
""")
    for kt in range(2):
        for s_ in range(4):
            b(f"ds_read_b128 {vr(KF[s_])}, v{KA[s_]} offset:{kt*4096}")
        b("s_waitcnt lgkmcnt(0)")
        for s_ in range(4):
            b(mfma(SS_+4*kt,KF[s_],QC+4*s_,'0' if s_==0 else SS_+4*kt))
    b("s_nop 7")
    b(f"""
v_max3_f32 v{MT}, v{SS_}, v{SS_+1}, v{SS_+2}
v_max3_f32 v{MT}, v{MT}, v{SS_+3}, v{SS_+4}
v_max3_f32 v{MT}, v{MT}, v{SS_+5}, v{SS_+6}
v_max_f32 v{MT}, v{MT}, v{SS_+7}
ds_bpermute_b32 v{AL}, v{BP16}, v{MT}
s_waitcnt lgkmcnt(0)
v_max_f32 v{MT}, v{MT}, v{AL}
ds_bpermute_b32 v{AL}, v{BP32}, v{MT}
s_waitcnt lgkmcnt(0)
v_max_f32 v{MT}, v{MT}, v{AL}
v_max_f32 v{MT}, v{MT}, v{M_}
v_sub_f32 v{AL}, v{M_}, v{MT}
v_exp_f32 v{AL}, v{AL}
v_mov_b32 v{M_}, v{MT}
""")
    for r in range(8): b(f"v_sub_f32 v{SS_+r}, v{SS_+r}, v{MT}")
    for r in range(8): b(f"v_exp_f32 v{SS_+r}, v{SS_+r}")
    b(f"v_mul_f32 v{LL_}, v{LL_}, v{AL}")
    for r in range(8): b(f"v_add_f32 v{LL_}, v{LL_}, v{SS_+r}")
    for r in range(4): b(f"v_cvt_pk_bf16_f32 v{SS_+r}, v{SS_+2*r}, v{SS_+2*r+1}")
    for r in range(32): b(f"v_mul_f32 v{O0+r}, v{O0+r}, v{AL}")
    for i in range(8):
        b(f"ds_read_b64_tr_b16 {vr(VF[0],2)}, v{VA[i]} offset:0")
        b(f"ds_read_b64_tr_b16 {vr(VF[0]+2,2)}, v{VA[i]} offset:4096")
        b("s_waitcnt lgkmcnt(0)")
        b(mfma(O0+4*i,VF[0],SS_,O0+4*i))
    b(f"s_add_u32 s{sSOFF}, s{sSOFF}, 8192")
    b(f"s_cmp_lt_u32 s{sSOFF}, 262144")
    b("s_cbranch_scc1 K1_STILE")
    b(f"""
ds_bpermute_b32 v{AL}, v{BP16}, v{LL_}
s_waitcnt lgkmcnt(0)
v_add_f32 v{LL_}, v{LL_}, v{AL}
ds_bpermute_b32 v{AL}, v{BP32}, v{LL_}
s_waitcnt lgkmcnt(0)
v_add_f32 v{LL_}, v{LL_}, v{AL}
v_rcp_f32 v{LL_}, v{LL_}
s_nop 7
""")
    b("s_cmp_eq_u32 s78, 2")
    b("s_cbranch_scc1 K1_SP2")
    b(f"s_mul_i32 s{sIT}, s78, {32*4096}")
    b(f"s_add_u32 s{sIT}, s{sIT}, s76")
    for i in (0,2,4,6):
        b(f"""
s_add_u32 s{sT2}, s{sW}, {i//2}
s_and_b32 s{sT2}, s{sT2}, 3
s_lshl_b32 s{sT2}, s{sT2}, 10
s_add_u32 s{sLAST}, s{sT2}, s{sIT}
""")
        pack(O0,i,LL_)
        ostore(O0+4*i)
    b("s_add_u32 s78, s78, 1")
    b("s_waitcnt vmcnt(0)")
    b("s_branch K1_SPASS")
    b.label("K1_SP2")
    b(f"s_lshl_b32 s{sT2}, s{sW}, 10")
    b(f"s_add_u32 s{sLAST}, s{sT2}, s77")
    pack(O0,0,LL_)
    ostore(O0)
    b("s_branch K1_STORED")
    b.label("K1_SLOWEND")
    b.label("K1_FIN2")
    if OPT['ost']:
        b(f"s_lshl_b32 s{sT}, s2, 2")
        b(f"s_add_u32 s{sT}, s{sT}, s{sW}")
        b(f"s_lshl_b32 s{sT}, s{sT}, 8")
        b(f"s_add_u32 s{sT}, s{sT}, {60<<20}")
        b(f"s_mov_b32 s{sO+2}, 0x10000000")
        b("v_lshlrev_b32 v3, 2, v0")
        b(f"buffer_store_dword v240, v3, {sr(sO)}, s{sT} offen")
    if OPT['stamps']:
        b("s_waitcnt vmcnt(0)")
        stamp(b,9)
        dump_stamps(b,10,sO,50<<20)
    b.label("K1_END")
    b("s_endpgm")
    ins,added=fix_hazards(b.ins)
    print(f"; k1: {len(ins)} instrs, {added} nop states added",file=sys.stderr)
    return ins

def op_phase(b):
    sWO=8; sOF=12; sPT=16; sOUT=20; sDBG=28
    sNT=45; sHQ=46; sBI=51; sB0=52; sB9=53; sWK2=54; sWM2=55; sBK=56; sITEM=57; sPOLL=58
    ACC0,ACC1,ACC9=4,24,44
    BF=64; AF=[160,180]
    WAd=[216,217,218,219,220]; DWO=[221,222,223,224,225]; VL=210; WAd2=[211,212,213,214,215]
    UNIT=20480
    bsc=' sc1' if OPT['bsc1'] else ''
    b(f"s_setprio 0")
    b(f"""
s_and_b32 s{sNT}, s{sH}, 7
s_lshr_b32 s{sHQ}, s{sH}, 3
v_and_b32 v1, 15, v0
v_lshrrev_b32 v2, 4, v0
v_lshlrev_b32 v{VL}, 4, v0
s_mov_b32 s{sT2}, {(1<<16)//10+1}
""")
    for e in range(5):
        b(f"""
v_add_u32 v3, {64*e}, v0
v_mul_u32_u24 v4, s{sT2}, v3
v_lshrrev_b32 v4, 16, v4
v_mul_u32_u24 v5, 10, v4
v_sub_u32 v5, v3, v5
v_mul_u32_u24 v4, 1280, v4
v_lshl_add_u32 v{DWO[e]}, v5, 4, v4
""")
        if 0<e<4: b(f"v_subrev_u32 v{DWO[e]}, {e*1024}, v{DWO[e]}")
    b(f"""
v_bfe_u32 v3, v0, 2, 2
v_lshl_add_u32 v3, v2, 2, v3
v_mul_u32_u24 v3, 160, v3
v_and_b32 v4, 3, v0
v_lshl_add_u32 v3, v4, 3, v3
""")
    for i in range(5):
        b(f"""
s_add_u32 s{sT}, s{sW}, {i}
s_cmp_ge_u32 s{sT}, 5
s_cselect_b32 s{sT2}, 5, 0
s_sub_u32 s{sT}, s{sT}, s{sT2}
s_mov_b32 s{33+i}, s{sT}
s_lshl_b32 s{sT}, s{sT}, 5
v_add_u32 v{WAd[i]}, s{sT}, v3
v_add_u32 v{WAd2[i]}, {2*24576}, v{WAd[i]}
""")
    b(f"""
s_mul_i32 s{sT}, s{sHQ}, {1024*1280}
s_mul_i32 s{sT2}, s{sNT}, 160
s_add_u32 s{sT}, s{sT}, s{sT2}
s_add_u32 s{sWO}, s84, s{sT}
s_addc_u32 s{sWO+1}, s85, 0
s_sub_u32 s{sWO+2}, 5242880, s{sT}
s_mov_b32 s{sWO+3}, 0x20000
s_mov_b32 s{sOF}, s40
s_mov_b32 s{sOF+1}, s41
s_mov_b32 s{sOF+2}, {O_BYTES}
s_mov_b32 s{sOF+3}, 0x20000
s_add_u32 s{sPT}, s40, {WS_PART}
s_addc_u32 s{sPT+1}, s41, 0
s_mov_b32 s{sPT+2}, {PART_BYTES}
s_mov_b32 s{sPT+3}, 0x20000
s_mov_b32 s{sOUT}, s96
s_mov_b32 s{sOUT+1}, s97
s_mov_b32 s{sOUT+2}, {8*144*1280*2}
s_mov_b32 s{sOUT+3}, 0x20000
s_mov_b32 s{sITEM}, 0
""")
    b.label("OP_ITEM")
    UN=24576
    b(f"""
s_lshl_b32 s{sBI}, s{sITEM}, {2 if not OPT['opown'] else 0}
{"s_add_u32 s%d, s%d, s%d"%(sBI,sBI,sB) if not OPT['opown'] else "s_mov_b32 s%d, s%d"%(sBI,sB)}
s_mul_i32 s{sWK2}, s{sW}, {32*1280}
s_mul_i32 s{sT}, s{sNT}, {128*1280}
s_add_u32 s{sWK2}, s{sWK2}, s{sT}
s_mul_i32 s{sWM2}, s{sW}, 5120
s_mul_i32 s{sBK}, s{sW}, {32*1280}
s_add_u32 s{sBK}, s{sBK}, {8*128*1280}
""")
    def wunit(slot):
        b(f"s_add_u32 m0, s{sWM2}, {slot*UN}")
        b("s_nop 0")
        for e in range(4):
            b(f"buffer_load_dwordx4 v{DWO[e]}, {sr(sWO)}, s{sWK2} offen offset:{e*1024} lds")
        b(f"s_add_u32 m0, m0, 4096")
        b(f"s_add_u32 s{sT}, s{sWK2}, {128*1280}")
        b(f"buffer_load_dwordx4 v{DWO[4]}, {sr(sWO)}, s{sWK2} offen lds")
        b(f"s_cmp_ge_u32 s{sT}, s{sBK}")
        b(f"s_cselect_b32 s{sT2}, {1024*1280}, 0")
        b(f"s_sub_u32 s{sWK2}, s{sT}, s{sT2}")
    s9K=59
    def t9unit(slot):
        b(f"s_lshl_b32 s{sT}, s{sW}, 10")
        b(f"s_add_u32 m0, s{sT}, {slot*UN+20480}")
        b(f"s_add_u32 s{sT2}, s{sB9}, s{s9K}")
        b(f"buffer_load_dwordx4 v{VL}, {sr(sOF)}, s{sT2} offen{bsc} lds")
        b(f"s_add_u32 s{s9K}, s{s9K}, 4096")
        b(f"s_and_b32 s{s9K}, s{s9K}, 32767")
    b("s_barrier")
    LB=OPT['oplb']; LW=OPT['oplw']
    for u_ in range(LW): wunit(u_)
    for r in range(4,56): b(f"v_mov_b32 v{r}, 0")
    if OPT['oponly']: b("s_branch OP_WAITED")
    b(f"s_cmp_lg_u32 s{sW}, 0")
    b("s_cbranch_scc1 OP_WAITED")
    b(f"""
s_lshl_b32 s{sT}, s{sBR}, 3
s_add_u32 s{sT}, s{sT}, s{sBI}
s_lshl_b32 s{sT}, s{sT}, 2
s_add_u32 s{sT}, s{sT}, 128
s_lshl_b32 s{sLAST}, s{sHQ}, 3
s_mov_b32 s{sPOLL}, 0
v_mov_b32 v61, 0
s_mov_b64 exec, 1
""")
    b.label("OP_POLL")
    b(f"""
{"buffer_load_dword v60, v61, "+sr(sDBG)+f", s{sT} offen sc1" if OPT['pollld'] else "v_mov_b32 v60, 0"+chr(10)+"buffer_atomic_or v60, v61, "+sr(sDBG)+f", s{sT} offen sc0 sc1"}
s_waitcnt vmcnt(0)
v_readfirstlane_b32 s{sT2}, v60
s_lshr_b32 s{sT2}, s{sT2}, s{sLAST}
s_and_b32 s{sT2}, s{sT2}, 255
s_cmp_eq_u32 s{sT2}, 255
s_cbranch_scc1 OP_POLLED
s_add_u32 s{sPOLL}, s{sPOLL}, 1
s_cmp_lt_u32 s{sPOLL}, 20000
s_cbranch_scc0 OP_POLLED
s_sleep {OPT['psleep']}
s_branch OP_POLL
""")
    b.label("OP_POLLED")
    b("s_mov_b64 exec, -1")
    b.label("OP_WAITED")
    b("s_barrier")
    if OPT['stamps']:
        l=b.new('ST'); b(f"s_cmp_eq_u32 s{sITEM}, 0"); b(f"s_cbranch_scc0 {l}a"); stamp(b,5); b(f"s_branch {l}b"); b.label(l+'a'); stamp(b,7); b.label(l+'b')
    b(f"""
s_lshl_b32 s{sT}, s{sBR}, 3
s_add_u32 s{sT}, s{sT}, s{sBI}
s_mul_i32 s{sT}, s{sT}, 9
s_lshl_b32 s{sT2}, s{sW}, 1
s_add_u32 s{sB0}, s{sT}, s{sT2}
s_lshl_b32 s{sB0}, s{sB0}, 17
s_add_u32 s{sB9}, s{sT}, 8
s_lshl_b32 s{sB9}, s{sB9}, 17
s_lshl_b32 s{sT}, s{sHQ}, 15
s_add_u32 s{sB0}, s{sB0}, s{sT}
s_add_u32 s{sB9}, s{sB9}, s{sT}
s_lshl_b32 s{sSEL}, s{sNT}, 12
s_lshl_b32 s{sT}, s{sW}, 10
s_add_u32 s{s9K}, s{sSEL}, s{sT}
s_add_u32 s{sPOLL}, s{sB0}, {32*4096}
""")
    def bload(kk):
        r=BF+8*(kk%8)
        return [f"s_add_u32 s{sT}, s{sB0}, s{sSEL}",
                f"s_add_u32 s{sT2}, s{sPOLL}, s{sSEL}",
                f"buffer_load_dwordx4 {vr(r)}, v{VL}, {sr(sOF)}, s{sT} offen{bsc}",
                f"buffer_load_dwordx4 {vr(r+4)}, v{VL}, {sr(sOF)}, s{sT2} offen{bsc}",
                f"s_add_u32 s{sSEL}, s{sSEL}, 1024",
                f"s_and_b32 s{sSEL}, s{sSEL}, 32767"]
    for u_ in range(LW): t9unit(u_)
    for kk in range(LB):
        for l in bload(kk): b(l)
    V9=226
    b(f"v_add_u32 v{V9}, 20480, v{VL}")
    b(f"v_add_u32 v{V9+1}, {2*UN}, v{V9}")
    B9F=[228,232]
    def areads(slot,ks,fs,b9):
        off=(slot*UN if slot<2 else 0)
        WW=WAd if slot<2 else WAd2
        o=[f"ds_read_b128 {vr(b9)}, v{V9 if slot<2 else V9+1} offset:{off+ks*1024}"]
        for i in range(5):
            o.append(f"ds_read_b64_tr_b16 {vr(fs+4*i,2)}, v{WW[i]} offset:{off+ks*5120}")
            o.append(f"ds_read_b64_tr_b16 {vr(fs+4*i+2,2)}, v{WW[i]} offset:{off+ks*5120+2560}")
        return o
    q=[]
    for u_ in range(LW): q+=[('W',u_)]*5
    for u_ in range(LW): q+=[('T',u_)]
    for k in range(LB): q+=[('B',k)]*2
    def after(tag):
        idx=max(i for i,t in enumerate(q) if t==tag)
        return len(q)-1-idx
    for UU in range(8):
        u=UU%3
        wb=min(after(('W',UU)),after(('T',UU)),after(('B',4*UU)))
        b(f"s_waitcnt vmcnt({wb})")
        b("s_barrier")
        if OPT['ost']:
            b("s_memtime s[90:91]")
            b("s_waitcnt lgkmcnt(0)")
            b(f"s_lshl_b32 s92, s{sITEM}, 4")
            b(f"s_add_u32 s92, s92, {UU}")
            b("s_mov_b32 m0, s92")
            b("s_nop 1")
            b("v_writelane_b32 v240, s90, m0")
        rd=areads(u,0,AF[0],B9F[0])
        for l in rd: b(l)
        if UU+LW<8 and not OPT['opnow']:
            wunit((UU+LW)%3); t9unit((UU+LW)%3)
            q+=[('W',UU+LW)]*5+[('T',UU+LW)]
        pend=[I(l) for l in rd]
        for ks in range(4):
            kk=4*UU+ks
            fs=AF[ks&1]; b9=B9F[ks&1]
            b(f"s_waitcnt vmcnt({after(('B',kk))})")
            r=BF+8*(kk%8)
            mm=[]
            for i in range(5):
                mm.append(mfma(ACC0+4*i,fs+4*i,r,ACC0+4*i))
                mm.append(mfma(ACC1+4*i,fs+4*i,r+4,ACC1+4*i))
                if i==0: mm.append(mfma(ACC9,fs,b9,ACC9))
                if i==4: mm.append(mfma(ACC9+4,fs+16,b9,ACC9+4))
            nxt=areads(u,ks+1,AF[(ks+1)&1],B9F[(ks+1)&1]) if ks<3 else []
            seq=[]
            for idx,m in enumerate(mm):
                seq.append(I(m))
                if idx<len(nxt): seq.append(I(nxt[idx]))
            if kk+LB<32 and not OPT['opnob']:
                bl=bload(kk+LB); q+=[('B',kk+LB)]*2
                if LB<8:
                    pos=len(seq)//2
                    seq=seq[:pos]+[I(x) for x in bl]+seq[pos:]
                else: seq+= [I(x) for x in bl]
            o,pend=insert_lgkm(seq,pending=pend)
            b.add(o)
    if OPT['stamps']:
        l=b.new('ST'); b(f"s_cmp_eq_u32 s{sITEM}, {0 if OPT['opown'] else 1}"); b(f"s_cbranch_scc0 {l}b"); stamp(b,8); b.label(l+'b')
    if OPT['ost']:
        b("s_memtime s[90:91]")
        b("s_waitcnt lgkmcnt(0)")
        b(f"s_lshl_b32 s92, s{sITEM}, 4")
        b(f"s_add_u32 s92, s92, 8")
        b("s_mov_b32 m0, s92")
        b("s_nop 1")
        b("v_writelane_b32 v240, s90, m0")
    b(f"""
s_lshl_b32 s{sT}, s{sBR}, 3
s_add_u32 s{sT}, s{sT}, s{sBI}
s_lshl_b32 s{sT}, s{sT}, 3
s_add_u32 s{sSEL}, s{sT}, s{sNT}
s_mul_i32 s{sB0}, s{sSEL}, {4*45*1024}
s_mul_i32 s{sT}, s{sHQ}, {45*1024}
s_add_u32 s{sB9}, s{sB0}, s{sT}
s_mul_i32 s{sBK}, s{sW}, {2*5*1024}
s_nop 7
""")
    tiles=[]
    for i in range(5):
        tiles.append((ACC0+4*i,0,i)); tiles.append((ACC1+4*i,5*1024,i))
    def toff(extra,i,dst):
        b(f"s_lshl_b32 s{dst}, s{33+i}, 10")
        b(f"s_add_u32 s{dst}, s{dst}, s{sBK}")
        if extra: b(f"s_add_u32 s{dst}, s{dst}, {extra}")
    for (acc,extra,i) in tiles:
        toff(extra,i,sT)
        b(f"s_add_u32 s{sT}, s{sT}, s{sB9}")
        if not OPT['opnop']: b(f"buffer_store_dwordx4 {vr(acc)}, v{VL}, {sr(sPT)}, s{sT} offen sc1")
    b(f"s_lshl_b32 s{sT}, s33, 10")
    b(f"s_add_u32 s{sT}, s{sT}, {40*1024}")
    b(f"s_add_u32 s{sT}, s{sT}, s{sB9}")
    b(f"buffer_store_dwordx4 {vr(ACC9)}, v{VL}, {sr(sPT)}, s{sT} offen sc1")
    b(f"s_cmp_lg_u32 s{sW}, 0")
    b("s_cbranch_scc1 OP_P1")
    b(f"s_add_u32 s{sT}, s{sB9}, {44*1024}")
    b(f"buffer_store_dwordx4 {vr(ACC9+4)}, v{VL}, {sr(sPT)}, s{sT} offen sc1")
    b.label("OP_P1")
    b("s_waitcnt vmcnt(0)")
    b("s_barrier")
    if OPT['dred']:
        b(f"s_cmp_lg_u32 s{sW}, 0")
        b("s_cbranch_scc1 OP_P2")
        b(f"""
s_and_b32 s{sLAST}, s{sSEL}, 3
s_lshl_b32 s{sLAST}, s{sLAST}, 3
s_lshl_b32 s{sT2}, 1, s{sLAST}
v_mov_b32 v60, s{sT2}
s_lshr_b32 s{sT2}, s{sSEL}, 2
s_lshl_b32 s{sT2}, s{sT2}, 2
v_mov_b32 v61, 0
s_mov_b64 exec, 1
buffer_atomic_add v60, v61, {sr(sDBG)}, s{sT2} offen sc0 sc1
s_mov_b32 s{sPOLL}, 0
s_waitcnt vmcnt(0)
v_readfirstlane_b32 s{sT}, v60
s_lshr_b32 s{sT}, s{sT}, s{sLAST}
s_and_b32 s{sT}, s{sT}, 255
s_cmp_ge_u32 s{sT}, 3
s_cbranch_scc1 OP_RPOLLED
""")
        b.label("OP_RPOLL")
        b(f"""
s_sleep {OPT['rsleep']}
v_mov_b32 v60, 0
buffer_atomic_or v60, v61, {sr(sDBG)}, s{sT2} offen sc0 sc1
s_waitcnt vmcnt(0)
v_readfirstlane_b32 s{sT}, v60
s_lshr_b32 s{sT}, s{sT}, s{sLAST}
s_and_b32 s{sT}, s{sT}, 255
s_cmp_ge_u32 s{sT}, 4
s_cbranch_scc1 OP_RPOLLED
s_add_u32 s{sPOLL}, s{sPOLL}, 1
s_cmp_lt_u32 s{sPOLL}, 20000
s_cbranch_scc1 OP_RPOLL
""")
        b.label("OP_RPOLLED")
        b("s_mov_b64 exec, -1")
        b.label("OP_P2")
        b("s_barrier")
        LD=64
        b(f"s_lshl_b32 s{sWK2}, s{sHQ}, 2")
        b(f"s_add_u32 s{sWK2}, s{sWK2}, s{sW}")
        for j in range(3):
            b(f"s_add_u32 s{sT}, s{sWK2}, {16*j}")
            b(f"s_min_u32 s{sT}, s{sT}, 44")
            b(f"s_lshl_b32 s{sT}, s{sT}, 10")
            b(f"s_add_u32 s{sT}, s{sT}, s{sB0}")
            for d in range(4):
                b(f"buffer_load_dwordx4 {vr(LD+16*j+4*d)}, v{VL}, {sr(sPT)}, s{sT} offen sc1")
                if d<3: b(f"s_add_u32 s{sT}, s{sT}, {45*1024}")
        b(f"""
s_mul_i32 s{sLAST}, s{sBI}, 144
v_add_u32 v3, s{sLAST}, v1
v_mul_u32_u24 v3, 2560, v3
v_lshl_add_u32 v3, v2, 3, v3
s_mul_i32 s{sLAST}, s{sBR}, 1280
s_mul_i32 s{sT2}, s{sNT}, 160
s_add_u32 s{sLAST}, s{sLAST}, s{sT2}
""")
        for j in range(3):
            r=LD+16*j
            b(f"s_waitcnt vmcnt({4*(2-j)+j})")
            for rr in range(4):
                b(f"v_add_f32 v{r+rr}, v{r+rr}, v{r+4+rr}")
                b(f"v_add_f32 v{r+8+rr}, v{r+8+rr}, v{r+12+rr}")
            for rr in range(4): b(f"v_add_f32 v{r+rr}, v{r+rr}, v{r+8+rr}")
            b(f"v_cvt_pk_bf16_f32 v{r}, v{r}, v{r+1}")
            b(f"v_cvt_pk_bf16_f32 v{r+1}, v{r+2}, v{r+3}")
            b(f"s_add_u32 s{sT}, s{sWK2}, {16*j}")
            if j==2:
                b(f"s_cmp_ge_u32 s{sT}, 45")
                b("s_cbranch_scc1 OP_DONE")
            b(f"s_mul_i32 s{sT2}, s{sT}, 52429")
            b(f"s_lshr_b32 s{sT2}, s{sT2}, 18")
            b(f"s_mul_i32 s{sIT}, s{sT2}, 5")
            b(f"s_sub_u32 s{sT}, s{sT}, s{sIT}")
            b(f"s_lshl_b32 s{sT}, s{sT}, 5")
            b(f"s_mul_i32 s{sT2}, s{sT2}, {16*2560}")
            b(f"s_add_u32 s{sT}, s{sT}, s{sT2}")
            b(f"s_add_u32 s{sT}, s{sT}, s{sLAST}")
            b(f"buffer_store_dwordx2 {vr(r,2)}, v3, {sr(sOUT)}, s{sT} offen")
        b.label("OP_DONE")
        if OPT['stamps']: stamp(b,6)
        return
    b(f"s_cmp_lg_u32 s{sW}, 0")
    b("s_cbranch_scc1 OP_P2")
    b(f"""
s_and_b32 s{sT}, s{sSEL}, 3
s_lshl_b32 s{sT}, s{sT}, 3
s_lshl_b32 s{sT2}, 1, s{sT}
v_mov_b32 v60, s{sT2}
s_lshr_b32 s{sT2}, s{sSEL}, 2
s_lshl_b32 s{sT2}, s{sT2}, 2
v_mov_b32 v61, 0
s_mov_b64 exec, 1
buffer_atomic_add v60, v61, {sr(sDBG)}, s{sT2} offen sc0 sc1
s_waitcnt vmcnt(0)
v_lshrrev_b32 v60, s{sT}, v60
v_and_b32 v60, 255, v60
ds_write_b32 v61, v60
s_waitcnt lgkmcnt(0)
s_mov_b64 exec, -1
""")
    b.label("OP_P2")
    b("s_barrier")
    b("""
v_mov_b32 v61, 0
ds_read_b32 v60, v61
s_waitcnt lgkmcnt(0)
""")
    b(f"v_readfirstlane_b32 s{sT}, v60")
    b(f"s_cmp_eq_u32 s{sT}, 3")
    b("s_cbranch_scc0 OP_DONE")
    LD=64
    def addparts(acc,offs_dst):
        for d in range(1,4):
            b(f"s_add_u32 s{sIT}, s{sHQ}, {d}")
            b(f"s_and_b32 s{sIT}, s{sIT}, 3")
            b(f"s_mul_i32 s{sIT}, s{sIT}, {45*1024}")
            b(f"s_add_u32 s{sIT}, s{sIT}, s{sB0}")
            b(f"s_add_u32 s{sIT}, s{sIT}, s{offs_dst}")
            b(f"buffer_load_dwordx4 {vr(acc+4*(d-1))}, v{VL}, {sr(sPT)}, s{sIT} offen sc1")
    k=0; ldmap=[]
    for (acc,extra,i) in tiles:
        toff(extra,i,sT)
        addparts(LD+12*k,sT); ldmap.append((acc,LD+12*k)); k+=1
    b(f"s_lshl_b32 s{sT}, s33, 10")
    b(f"s_add_u32 s{sT}, s{sT}, {40*1024}")
    addparts(LD+12*k,sT); ldmap.append((ACC9,LD+12*k)); k+=1
    b(f"s_mov_b32 s{sT}, {44*1024}")
    addparts(LD+12*k,sT); ldmap.append((ACC9+4,LD+12*k)); k+=1
    b(f"""
s_mul_i32 s{sLAST}, s{sBI}, 144
v_add_u32 v3, s{sLAST}, v1
v_mul_u32_u24 v3, 2560, v3
v_lshl_add_u32 v3, v2, 3, v3
s_mul_i32 s{sLAST}, s{sBR}, 1280
s_mul_i32 s{sT2}, s{sNT}, 160
s_add_u32 s{sLAST}, s{sLAST}, s{sT2}
s_waitcnt vmcnt(0)
""")
    for idx,(acc,ld) in enumerate(ldmap):
        for d in range(3):
            for r in range(4): b(f"v_add_f32 v{acc+r}, v{acc+r}, v{ld+4*d+r}")
        b(f"v_cvt_pk_bf16_f32 v{acc}, v{acc}, v{acc+1}")
        b(f"v_cvt_pk_bf16_f32 v{acc+1}, v{acc+2}, v{acc+3}")
        if idx<10:
            (a2,extra,i)=tiles[idx]
            b(f"s_lshl_b32 s{sT}, s{sW}, 1")
            if extra: b(f"s_add_u32 s{sT}, s{sT}, 1")
            b(f"s_mul_i32 s{sT}, s{sT}, {16*2560}")
            b(f"s_lshl_b32 s{sT2}, s{33+i}, 5")
        elif idx==10:
            b(f"s_mov_b32 s{sT}, {128*2560}")
            b(f"s_lshl_b32 s{sT2}, s33, 5")
        else:
            b(f"s_cmp_lg_u32 s{sW}, 0")
            b("s_cbranch_scc1 OP_DONE")
            b(f"s_mov_b32 s{sT}, {128*2560}")
            b(f"s_mov_b32 s{sT2}, {4*32}")
        b(f"s_add_u32 s{sT}, s{sT}, s{sT2}")
        b(f"s_add_u32 s{sT}, s{sT}, s{sLAST}")
        b(f"buffer_store_dwordx2 {vr(acc,2)}, v3, {sr(sOUT)}, s{sT} offen")
    b.label("OP_DONE")
    if OPT['stamps']:
        l=b.new('ST'); b(f"s_cmp_eq_u32 s{sITEM}, 0"); b(f"s_cbranch_scc0 {l}b"); stamp(b,6); b.label(l+'b')
    b(f"s_add_u32 s{sITEM}, s{sITEM}, 1")
    if not OPT['opown'] or OPT['oponly']:
        b(f"s_cmp_lt_u32 s{sITEM}, {OPT['opmode']}")
        b("s_cbranch_scc1 OP_ITEM")

def op_phase2(b):
    sWO=8; sOF=12; sPT=16; sOUT=20; sDBG=28
    sNT=45; sHQ=46; sBI=51; sB0=52; sB9=53; sWK2=54; sWM2=55; sBK=56; sITEM=57; sPOLL=58
    ACC0,ACC1,ACC9=4,24,44
    BF=64; AF=[160,180]
    WAd=[216,217,218,219,220]; DWO=[221,222,223,224,225]; VL=210; WAd2=[211,212,213,214,215]
    UNIT=20480
    bsc=' sc1' if OPT['bsc1'] else ''
    b(f"s_setprio 0")
    b(f"""
s_and_b32 s{sNT}, s{sH}, 7
s_lshr_b32 s{sHQ}, s{sH}, 3
v_and_b32 v1, 15, v0
v_lshrrev_b32 v2, 4, v0
v_lshlrev_b32 v{VL}, 4, v0
s_mov_b32 s{sT2}, {(1<<16)//10+1}
""")
    for e in range(5):
        b(f"""
v_add_u32 v3, {64*e}, v0
v_mul_u32_u24 v4, s{sT2}, v3
v_lshrrev_b32 v4, 16, v4
v_mul_u32_u24 v5, 10, v4
v_sub_u32 v5, v3, v5
v_mul_u32_u24 v4, 1280, v4
v_lshl_add_u32 v{DWO[e]}, v5, 4, v4
""")
        if 0<e<4: b(f"v_subrev_u32 v{DWO[e]}, {e*1024}, v{DWO[e]}")
    b(f"""
v_bfe_u32 v3, v0, 2, 2
v_lshl_add_u32 v3, v2, 2, v3
v_mul_u32_u24 v3, 160, v3
v_and_b32 v4, 3, v0
v_lshl_add_u32 v3, v4, 3, v3
""")
    for i in range(5):
        b(f"""
s_add_u32 s{sT}, s{sW}, {i}
s_cmp_ge_u32 s{sT}, 5
s_cselect_b32 s{sT2}, 5, 0
s_sub_u32 s{sT}, s{sT}, s{sT2}
s_mov_b32 s{33+i}, s{sT}
s_lshl_b32 s{sT}, s{sT}, 5
v_add_u32 v{WAd[i]}, s{sT}, v3
v_add_u32 v{WAd2[i]}, {2*24576}, v{WAd[i]}
""")
    b(f"""
s_mul_i32 s{sT}, s{sHQ}, {1024*1280}
s_mul_i32 s{sT2}, s{sNT}, 160
s_add_u32 s{sT}, s{sT}, s{sT2}
s_add_u32 s{sWO}, s84, s{sT}
s_addc_u32 s{sWO+1}, s85, 0
s_sub_u32 s{sWO+2}, 5242880, s{sT}
s_mov_b32 s{sWO+3}, 0x20000
s_mov_b32 s{sOF}, s40
s_mov_b32 s{sOF+1}, s41
s_mov_b32 s{sOF+2}, {O_BYTES}
s_mov_b32 s{sOF+3}, 0x20000
s_add_u32 s{sPT}, s40, {WS_PART}
s_addc_u32 s{sPT+1}, s41, 0
s_mov_b32 s{sPT+2}, {PART_BYTES}
s_mov_b32 s{sPT+3}, 0x20000
s_mov_b32 s{sOUT}, s96
s_mov_b32 s{sOUT+1}, s97
s_mov_b32 s{sOUT+2}, {8*144*1280*2}
s_mov_b32 s{sOUT+3}, 0x20000
s_mov_b32 s{sITEM}, 0
""")

    UN=24576; CHB=79872
    sDONE=59; s9K=89; sHD=91; sMSK=90; sFA=76
    V9=226; B9F=[228,232]; VP=244
    LB=8
    b(f"v_add_u32 v{V9}, 20480, v{VL}")
    b(f"v_add_u32 v{V9+1}, {2*UN}, v{V9}")
    b(f"v_mov_b32 v{VP+1}, 0")
    b(f"v_mov_b32 v{VP+2}, {CHB}")
    b(f"s_mul_i32 s{sWM2}, s{sW}, 5120")
    def set_head():
        b(f"s_mul_i32 s{sWK2}, s{sHD}, {128*1280}")
        b(f"s_mul_i32 s{sT}, s{sW}, {32*1280}")
        b(f"s_add_u32 s{sWK2}, s{sWK2}, s{sT}")
        b(f"s_lshl_b32 s{sSEL}, s{sHD}, 12")
        b(f"s_lshl_b32 s{sT}, s{sW}, 10")
        b(f"s_add_u32 s{s9K}, s{sSEL}, s{sT}")
    def wunit(slot):
        b(f"s_add_u32 m0, s{sWM2}, {slot*UN}")
        b("s_nop 0")
        for e in range(4):
            b(f"buffer_load_dwordx4 v{DWO[e]}, {sr(sWO)}, s{sWK2} offen offset:{e*1024} lds")
        b(f"s_add_u32 m0, m0, 4096")
        b("s_nop 0")
        b(f"buffer_load_dwordx4 v{DWO[4]}, {sr(sWO)}, s{sWK2} offen lds")
        b(f"s_lshl_b32 s{sT}, s{sW}, 10")
        b(f"s_add_u32 m0, s{sT}, {slot*UN+20480}")
        b(f"s_add_u32 s{sT2}, s{sB9}, s{s9K}")
        b(f"buffer_load_dwordx4 v{VL}, {sr(sOF)}, s{sT2} offen{bsc} lds")
    def bload(kk):
        r=BF+8*(kk%8)
        return [f"s_add_u32 s{sT}, s{sB0}, s{sSEL}",
                f"s_add_u32 s{sT2}, s{sPOLL}, s{sSEL}",
                f"buffer_load_dwordx4 {vr(r)}, v{VL}, {sr(sOF)}, s{sT} offen{bsc}",
                f"buffer_load_dwordx4 {vr(r+4)}, v{VL}, {sr(sOF)}, s{sT2} offen{bsc}",
                f"s_add_u32 s{sSEL}, s{sSEL}, 1024"]
    VFA=241
    if OPT['wsf']: flag_addr(b,VFA,243)
    def pollop():
        if OPT['wsf']:
            b(f"buffer_load_dword v{VP}, v{VFA}, s[72:75], 0 offen sc0 sc1")
        elif OPT['pl2']==0:
            b("s_mov_b64 exec, 1")
            b(f"v_mov_b32 v{VP}, 0")
            b(f"buffer_atomic_or v{VP}, v{VP+1}, {sr(sDBG)}, s{sFA} offen sc0 sc1")
            b("s_mov_b64 exec, -1")
        else:
            b(f"buffer_load_dword v{VP}, v{VP+1}, {sr(sDBG)}, s{sFA} offen sc0 sc1")
    sRDY=77
    def choose(slot,have_async):
        lskip=b.new('CH'); lp=b.new('CH'); lg=b.new('CH')
        b(f"s_cmp_lg_u32 s{sW}, 0")
        b(f"s_cbranch_scc1 {lskip}")
        b(f"s_mov_b32 s{sIT}, 0")
        b(f"s_andn2_b32 s{sMSK}, s{sRDY}, s{sDONE}")
        b(f"s_cmp_lg_u32 s{sMSK}, 0")
        b(f"s_cbranch_scc1 {lg}x")
        b.label(lp)
        pollop()
        b("s_waitcnt vmcnt(0)")
        if OPT['wsf']:
            b(f"v_cmp_ne_u32 vcc, v{VP}, v238")
            b(f"s_lshl_b32 s{sT}, s{sITEM}, 3")
            b(f"s_lshr_b32 s{sRDY}, vcc_lo, s{sT}")
        else:
            b(f"v_readfirstlane_b32 s{sRDY}, v{VP}")
            b(f"s_lshl_b32 s{sT}, s{sHQ}, 3")
            b(f"s_lshr_b32 s{sRDY}, s{sRDY}, s{sT}")
        b(f"""
s_and_b32 s{sRDY}, s{sRDY}, 255
s_add_u32 s{sIT}, s{sIT}, 1
s_cmp_ge_u32 s{sIT}, 20000
s_cselect_b32 s{sT}, 255, 0
s_or_b32 s{sRDY}, s{sRDY}, s{sT}
s_andn2_b32 s{sMSK}, s{sRDY}, s{sDONE}
s_cmp_lg_u32 s{sMSK}, 0
s_cbranch_scc1 {lg}x
s_sleep {OPT['psleep2']}
s_branch {lp}
""")
        b.label(lg+'x')
        b(f"""
s_lshl_b32 s{sT}, s{sMSK}, 8
s_or_b32 s{sT}, s{sT}, s{sMSK}
s_lshr_b32 s{sT}, s{sT}, s{sNT}
s_ff1_i32_b32 s{sT}, s{sT}
s_add_u32 s{sT}, s{sT}, s{sNT}
s_and_b32 s{sT}, s{sT}, 7
s_lshl_b32 s{sT2}, 1, s{sT}
s_or_b32 s{sDONE}, s{sDONE}, s{sT2}
v_mov_b32 v{VP+3}, s{sT}
ds_write_b32 v{VP+2}, v{VP+3} offset:{4*slot}
s_waitcnt lgkmcnt(0)
""")
        b.label(lskip)
    def fetch_head(slot):
        b(f"ds_read_b32 v{VP+3}, v{VP+2} offset:{4*slot}")
        b("s_waitcnt lgkmcnt(0)")
        b(f"v_readfirstlane_b32 s{sHD}, v{VP+3}")
    def areads(slot,ks,fs,b9):
        off=(slot*UN if slot<2 else 0)
        WW=WAd if slot<2 else WAd2
        o=[f"ds_read_b128 {vr(b9)}, v{V9 if slot<2 else V9+1} offset:{off+ks*1024}"]
        for i in range(5):
            o.append(f"ds_read_b64_tr_b16 {vr(fs+4*i,2)}, v{WW[i]} offset:{off+ks*5120}")
            o.append(f"ds_read_b64_tr_b16 {vr(fs+4*i+2,2)}, v{WW[i]} offset:{off+ks*5120+2560}")
        return o
    if OPT['ost']:
        b("s_memtime s[94:95]")
        b("s_waitcnt lgkmcnt(0)")
        b(f"v_writelane_b32 v240, s94, 0")
    b(f"s_mov_b32 s{sITEM}, 0")
    b.label("OP_ITEM")
    b(f"""
s_lshl_b32 s{sBI}, s{sITEM}, 2
s_add_u32 s{sBI}, s{sBI}, s{sB}
s_lshl_b32 s{sT}, s{sBR}, 3
s_add_u32 s{sT}, s{sT}, s{sBI}
s_lshl_b32 s{sFA}, s{sT}, 2
s_add_u32 s{sFA}, s{sFA}, 128
s_mul_i32 s{sT}, s{sT}, 9
s_lshl_b32 s{sT2}, s{sW}, 1
s_add_u32 s{sB0}, s{sT}, s{sT2}
s_lshl_b32 s{sB0}, s{sB0}, 17
s_add_u32 s{sB9}, s{sT}, 8
s_lshl_b32 s{sB9}, s{sB9}, 17
s_lshl_b32 s{sT}, s{sHQ}, 15
s_add_u32 s{sB0}, s{sB0}, s{sT}
s_add_u32 s{sB9}, s{sB9}, s{sT}
s_add_u32 s{sPOLL}, s{sB0}, {32*4096}
s_mov_b32 s{sDONE}, 0
s_mov_b32 s77, 0
""")
    for r in range(4,56): b(f"v_mov_b32 v{r}, 0")
    b("s_barrier")
    q=[]
    if OPT['ost']:
        b("s_memtime s[94:95]")
        b("s_waitcnt lgkmcnt(0)")
        b(f"v_writelane_b32 v240, s94, 1")
    choose(0,False)
    b("s_barrier")
    fetch_head(0); set_head(); wunit(0)
    for kk in range(4):
        for l in bload(kk): b(l)
    q+=[('W',0)]*6
    for k in range(4): q+=[('B',k)]*2
    choose(1,False)
    b("s_barrier")
    fetch_head(1); set_head(); wunit(1)
    for kk in range(4,8):
        for l in bload(kk): b(l)
    q+=[('W',1)]*6
    for k in range(4,8): q+=[('B',k)]*2
    if OPT['stamps']:
        l=b.new('ST'); b(f"s_cmp_eq_u32 s{sITEM}, 0"); b(f"s_cbranch_scc0 {l}a"); stamp(b,5); b(f"s_branch {l}b"); b.label(l+'a'); stamp(b,7); b.label(l+'b')
    def apoll():
        l_=b.new('AP')
        b(f"s_cmp_lg_u32 s{sW}, 0")
        b(f"s_cbranch_scc1 {l_}")
        pollop()
        b.label(l_)
    def after(tag):
        idx=max(i for i,t in enumerate(q) if t==tag)
        return len(q)-1-idx
    for UU in range(8):
        u=UU%3
        if UU+2<8: choose(UU&1,UU>0)
        wb=min(after(('W',UU)),after(('B',4*UU)))
        b(f"s_waitcnt vmcnt({wb})")
        b("s_barrier")
        if OPT['ost']:
            b("s_memtime s[94:95]")
            b("s_waitcnt lgkmcnt(0)")
            b(f"v_writelane_b32 v240, s94, {UU+2}")
        rd=areads(u,0,AF[0],B9F[0])
        if UU+2<8:
            b(f"ds_read_b32 v{VP+3}, v{VP+2} offset:{4*(UU&1)}")
            for l in rd: b(l)
            b(f"s_waitcnt lgkmcnt({len(rd)})")
            b(f"v_readfirstlane_b32 s{sHD}, v{VP+3}")
            set_head(); wunit((UU+2)%3)
            q+=[('W',UU+2)]*6
        else:
            for l in rd: b(l)
        pend=[I(l) for l in rd]
        for ks in range(4):
            kk=4*UU+ks
            fs=AF[ks&1]; b9=B9F[ks&1]
            b(f"s_waitcnt vmcnt({after(('B',kk))})")
            r=BF+8*(kk%8)
            mm=[]
            for i in range(5):
                mm.append(mfma(ACC0+4*i,fs+4*i,r,ACC0+4*i))
                mm.append(mfma(ACC1+4*i,fs+4*i,r+4,ACC1+4*i))
                if i==0: mm.append(mfma(ACC9,fs,b9,ACC9))
                if i==4: mm.append(mfma(ACC9+4,fs+16,b9,ACC9+4))
            nxt=areads(u,ks+1,AF[(ks+1)&1],B9F[(ks+1)&1]) if ks<3 else []
            seq=[]
            for idx,m in enumerate(mm):
                seq.append(I(m))
                if idx<len(nxt): seq.append(I(nxt[idx]))
            if kk+LB<32:
                bl=bload(kk+LB); q+=[('B',kk+LB)]*2
                seq+= [I(x) for x in bl]
            o,pend=insert_lgkm(seq,pending=pend)
            b.add(o)
    if OPT['stamps']:
        l=b.new('ST'); b(f"s_cmp_eq_u32 s{sITEM}, 1"); b(f"s_cbranch_scc0 {l}b"); stamp(b,8); b.label(l+'b')
    if OPT['ost']:
        b("s_memtime s[94:95]")
        b("s_waitcnt lgkmcnt(0)")
        b(f"v_writelane_b32 v240, s94, 10")
    b(f"""
s_lshl_b32 s{sT}, s{sBR}, 3
s_add_u32 s{sT}, s{sT}, s{sBI}
s_lshl_b32 s{sT}, s{sT}, 3
s_add_u32 s{sSEL}, s{sT}, s{sNT}
s_mul_i32 s{sB0}, s{sSEL}, {4*45*1024}
s_mul_i32 s{sT}, s{sHQ}, {45*1024}
s_add_u32 s{sB9}, s{sB0}, s{sT}
s_mul_i32 s{sBK}, s{sW}, {2*5*1024}
s_nop 7
""")
    tiles=[]
    for i in range(5):
        tiles.append((ACC0+4*i,0,i)); tiles.append((ACC1+4*i,5*1024,i))
    for (acc,extra,i) in tiles:
        b(f"s_lshl_b32 s{sT}, s{33+i}, 10")
        b(f"s_add_u32 s{sT}, s{sT}, s{sBK}")
        if extra: b(f"s_add_u32 s{sT}, s{sT}, {extra}")
        b(f"s_add_u32 s{sT}, s{sT}, s{sB9}")
        b(f"buffer_store_dwordx4 {vr(acc)}, v{VL}, {sr(sPT)}, s{sT} offen sc1")
    b(f"s_lshl_b32 s{sT}, s33, 10")
    b(f"s_add_u32 s{sT}, s{sT}, {40*1024}")
    b(f"s_add_u32 s{sT}, s{sT}, s{sB9}")
    b(f"buffer_store_dwordx4 {vr(ACC9)}, v{VL}, {sr(sPT)}, s{sT} offen sc1")
    b(f"s_cmp_lg_u32 s{sW}, 0")
    b("s_cbranch_scc1 OP_P1")
    b(f"s_add_u32 s{sT}, s{sB9}, {44*1024}")
    b(f"buffer_store_dwordx4 {vr(ACC9+4)}, v{VL}, {sr(sPT)}, s{sT} offen sc1")
    b.label("OP_P1")
    def reduce_code(item,tag):
        b(f"""
s_add_u32 s{sBI}, s{sB}, {4*item}
s_lshl_b32 s{sT}, s{sBR}, 3
s_add_u32 s{sT}, s{sT}, s{sBI}
s_lshl_b32 s{sT}, s{sT}, 3
s_add_u32 s{sT}, s{sT}, s{sNT}
s_mul_i32 s{sB0}, s{sT}, {4*45*1024}
s_cmp_lg_u32 s{sW}, 0
s_cbranch_scc1 OP_RP2{tag}
s_mov_b32 s{sPOLL}, 0
""")
        b.label("OP_RPOLL"+tag)
        b(f"""
buffer_load_dword v60, v{VFA}, s[72:75], 0 offen sc0 sc1
s_waitcnt vmcnt(0)
v_cmp_ne_u32 vcc, v60, v238
s_lshr_b32 s{sT}, vcc_lo, {16+4*item}
s_and_b32 s{sT}, s{sT}, 15
s_cmp_eq_u32 s{sT}, 15
s_cbranch_scc1 OP_RP2{tag}
s_add_u32 s{sPOLL}, s{sPOLL}, 1
s_cmp_lt_u32 s{sPOLL}, 20000
s_cbranch_scc0 OP_RP2{tag}
s_sleep {OPT['rsleep']}
s_branch OP_RPOLL{tag}
""")
        b.label("OP_RP2"+tag)
        b("s_barrier")
        LD=64
        b(f"s_lshl_b32 s{sWK2}, s{sHQ}, 2")
        b(f"s_add_u32 s{sWK2}, s{sWK2}, s{sW}")
        for j in range(3):
            b(f"s_add_u32 s{sT}, s{sWK2}, {16*j}")
            b(f"s_min_u32 s{sT}, s{sT}, 44")
            b(f"s_lshl_b32 s{sT}, s{sT}, 10")
            b(f"s_add_u32 s{sT}, s{sT}, s{sB0}")
            for d in range(4):
                b(f"buffer_load_dwordx4 {vr(LD+16*j+4*d)}, v{VL}, {sr(sPT)}, s{sT} offen sc1")
                if d<3: b(f"s_add_u32 s{sT}, s{sT}, {45*1024}")
        b(f"""
s_mul_i32 s{sLAST}, s{sBI}, 144
v_add_u32 v3, s{sLAST}, v1
v_mul_u32_u24 v3, 2560, v3
v_lshl_add_u32 v3, v2, 3, v3
s_mul_i32 s{sLAST}, s{sBR}, 1280
s_mul_i32 s{sT2}, s{sNT}, 160
s_add_u32 s{sLAST}, s{sLAST}, s{sT2}
""")
        for j in range(3):
            r=LD+16*j
            b(f"s_waitcnt vmcnt({4*(2-j)+j})")
            for rr in range(4):
                b(f"v_add_f32 v{r+rr}, v{r+rr}, v{r+4+rr}")
                b(f"v_add_f32 v{r+8+rr}, v{r+8+rr}, v{r+12+rr}")
            for rr in range(4): b(f"v_add_f32 v{r+rr}, v{r+rr}, v{r+8+rr}")
            b(f"v_cvt_pk_bf16_f32 v{r}, v{r}, v{r+1}")
            b(f"v_cvt_pk_bf16_f32 v{r+1}, v{r+2}, v{r+3}")
            b(f"s_add_u32 s{sT}, s{sWK2}, {16*j}")
            if j==2:
                b(f"s_cmp_ge_u32 s{sT}, 45")
                b(f"s_cbranch_scc1 OP_DONE{tag}")
            b(f"s_mul_i32 s{sT2}, s{sT}, 52429")
            b(f"s_lshr_b32 s{sT2}, s{sT2}, 18")
            b(f"s_mul_i32 s{sIT}, s{sT2}, 5")
            b(f"s_sub_u32 s{sT}, s{sT}, s{sIT}")
            b(f"s_lshl_b32 s{sT}, s{sT}, 5")
            b(f"s_mul_i32 s{sT2}, s{sT2}, {16*2560}")
            b(f"s_add_u32 s{sT}, s{sT}, s{sT2}")
            b(f"s_add_u32 s{sT}, s{sT}, s{sLAST}")
            b(f"buffer_store_dwordx2 {vr(r,2)}, v3, {sr(sOUT)}, s{sT} offen")
        b.label("OP_DONE"+tag)
    if OPT['op2']==1:
        b(f"s_cmp_eq_u32 s{sITEM}, 1")
        b("s_cbranch_scc0 OP_NR0")
        reduce_code(0,'A')
        b.label("OP_NR0")
    b("s_waitcnt vmcnt(0)")
    b("s_barrier")
    b(f"s_cmp_lg_u32 s{sW}, 0")
    b("s_cbranch_scc1 OP_P2")
    b(f"""
s_lshl_b32 s{sT}, s{sITEM}, 2
s_add_u32 s{sT}, s{sT}, s{sHQ}
s_add_u32 s{sT}, s{sT}, 16
v_add_u32 v60, 1, v238
v_cmp_eq_u32 vcc, s{sT}, v0
s_and_saveexec_b64 s[78:79], vcc
buffer_store_dword v60, v{VFA}, s[72:75], 0 offen sc0 sc1
s_mov_b64 exec, -1
""")
    b.label("OP_P2")
    if OPT['ost']:
        b("s_memtime s[94:95]")
        b("s_waitcnt lgkmcnt(0)")
        b(f"v_writelane_b32 v240, s94, 11")
    if OPT['stamps']:
        l=b.new('ST'); b(f"s_cmp_eq_u32 s{sITEM}, 0"); b(f"s_cbranch_scc0 {l}b"); stamp(b,6); b.label(l+'b')
    if OPT['op2']==1:
        b(f"s_add_u32 s{sITEM}, s{sITEM}, 1")
        b(f"s_cmp_lt_u32 s{sITEM}, 2")
        b("s_cbranch_scc1 OP_ITEM")
        reduce_code(1,'B')
    else:
        reduce_code(0,'B')

def emit(name,ins):
    s=f".globl {name}\n.p2align 8\n.type {name},@function\n{name}:\n"
    for i in ins:
        s+= (i.text+'\n') if i.kind=='label' else ('    '+i.text+'\n')
    return s
def desc(name,vgpr=256,sgpr=102):
    return f""".amdhsa_kernel {name}
  .amdhsa_next_free_vgpr {vgpr}
  .amdhsa_next_free_sgpr {sgpr}
  .amdhsa_accum_offset {(vgpr+3)//4*4}
  .amdhsa_group_segment_fixed_size 0
  .amdhsa_kernarg_size 104
  .amdhsa_user_sgpr_count 2
  .amdhsa_user_sgpr_kernarg_segment_ptr 1
  .amdhsa_system_sgpr_workgroup_id_x 1
.end_amdhsa_kernel
"""
if __name__=='__main__':
    outp=sys.argv[1]
    for a in sys.argv[2:]:
        k,v=a.split('='); OPT[k]=int(v)
    k1=gen_k1()
    txt="; @launch grid=(512,1,1) block=(256,1,1) lds=81920\n"
    txt+='.amdgcn_target "amdgcn-amd-amdhsa--gfx950"\n.text\n'
    txt+=emit(NAME,k1)
    txt+='.section .rodata,"a"\n.p2align 6\n'+desc(NAME)
    open(outp,'w').write(txt)
```

```python
import sys, math, struct
from isa import *
NAME='concat_heads__mha_block_cached__gqa_block_cached__near_ridge_kernel'
OPT=dict(xnt=0, wnt=0, wont=0, ownfirst=0, wearly=0, opprio=0, qh=0, qhpos=12, rot3=0, searly=0, wsf=0, op2=0, pl2=0, psleep2=24, force_slow=0, dbg_q=0, stamps=0, qponly=0, qst=0, wxpf=1, kvpf=1, prio=2, k1only=0, k2only=0, fst=0, tw=2, tnt=1, kvpfl=1, rot=1,  dred=1, rsleep=32, lah=99, lpg=9, dmmode=0, dmo1=3, dmo2=5, ast=0, ost=0, opnobr=0, opnolds=0, oponly=0, opown=1, thr=0, ldelay=0, dsleep=16, dmax=24, nodma=0, nobar=0, noexp=0, novalu=0, nolds=0, not9=0, ldslat=140, dmk=3, dmv=9, lateexit=0, samekv=0, prioL=0, opmode=2, opnob=0, opnow=0, opnop=0, oplb=4, oplw=2, attla=3, wopf=1, wotit=5, pollld=0, psleep=64, dupst=1, bsc1=1, qtwice=0, prioatt=0, k0it=1, kvit=2, nok0=0)
class P:
    def __init__(s): s.ins=[]; s.n=0
    def __call__(s,text,**kw):
        for l in text.strip('\n').split('\n'):
            l=l.strip()
            if l and not l.startswith(';'): s.ins.append(I(l,**kw))
    def add(s,lst): s.ins+=lst
    def label(s,name): s.ins.append(I(name+':'))
    CNT=[0]
    def new(s,p='L'):
        P.CNT[0]+=1; return f'{p}_{P.CNT[0]}'
def vr(a,n=4): return f"v[{a}:{a+n-1}]"
def sr(a,n=4): return f"s[{a}:{a+n-1}]"
def mfma(d,a,b,c):
    cs=c if isinstance(c,str) else vr(c)
    return f"v_mfma_f32_16x16x32_bf16 {vr(d)}, {vr(a)}, {vr(b)}, {cs}"
def f2u(f): return struct.unpack('<I',struct.pack('<f',f))[0]
CSC=math.log2(math.e)/math.sqrt(128.0)

O0,O1,O9=4,36,68
Q0,Q1,Q9=76,92,108
NM0,NM1,NM9=124,128,132
S0=[136,144]; S1=[152,160]; S9=168
KF=[176,180,184,188,240,244]; VF=[192,196,200,204,248,252]; P9F=208
L0=[212,213]; L1=[214,215]; L9=[216,217]
KA=[218,219,220,221]; VA=list(range(222,230))
DK=[230,231]; DV=[232,233]; P9A=234; BP16=235; BP32=236
sW=4; sH=5; sB=6; sBR=7
sK=8; sV=12; sWQ=16; sX=20; sO=24
sIT=42; sSOFF=43; sM0=44; sT=47; sT2=48; sSEL=49; sLAST=50
sXK=51; sWK=52; sQH=55; sDH=56; sXM=57; sXS=58; sWM=53
SLOT=16384
XS=[0,18432]; WB=36864; K0B=69632; P9B=77824; L9B=79872; QB=32768
WS_O=0; WS_PART=20<<20; O_BYTES=18874368; PART_BYTES=512*45*1024

def finish(body,**kw):
    o,ms=schedule(body,**kw)
    o,q=insert_lgkm(o)
    return o,ms,q
def stamp(b,idx):
    if OPT['stamps']:
        b(f"s_memrealtime s[92:93]")
        b(f"s_memtime s[94:95]")
        b("s_waitcnt lgkmcnt(0)")
        b(f"v_writelane_b32 v237, s92, {2*idx}")
        b(f"v_writelane_b32 v237, s94, {2*idx+1}")
def dump_stamps(b,n,srd,base):
    if OPT['stamps']:
        b(f"s_lshl_b32 s{sT}, s2, 2")
        b(f"s_add_u32 s{sT}, s{sT}, s{sW}")
        b(f"s_lshl_b32 s{sT}, s{sT}, 7")
        b(f"s_add_u32 s{sT}, s{sT}, {base}")
        b(f"s_mov_b32 s{srd+2}, 0x10000000")
        b("v_lshlrev_b32 v3, 2, v0")
        b("v_cmp_gt_u32 vcc, 32, v0")
        b("s_and_saveexec_b64 s[78:79], vcc")
        b(f"buffer_store_dword v237, v3, s[{srd}:{srd+3}], s{sT} offen")
        b("s_waitcnt vmcnt(0)")

def att_step(p,ver):
    cur=p&1; nxt=cur^1; slot=p*SLOT; nslot=((p+1)%4)*SLOT
    b=P()
    b(f"ds_read_b128 {vr(P9F)}, v{P9A} offset:{cur*1024}")
    t9kt={'t9a':0,'t9b':1}.get(ver,None)
    if ver!='final':
        bufs={(0,0):KF[0],(0,1):KF[1],(0,2):KF[2],(0,3):KF[3],(1,0):KF[4],(1,1):KF[5],(1,2):KF[0],(1,3):KF[1]}
        b(f"ds_read_b128 {vr(KF[4])}, v{KA[0]} offset:{slot+4096}")
        b(f"ds_read_b128 {vr(KF[5])}, v{KA[1]} offset:{slot+4096}")
        for kt in range(2):
            for s in range(4):
                kf=bufs[(kt,s)]
                if kt==1 and s>=2:
                    b(f"ds_read_b128 {vr(kf)}, v{KA[s]} offset:{slot+4096}")
                lst=[(S0[nxt]+4*kt,Q0,NM0),(S1[nxt]+4*kt,Q1,NM1)]
                if t9kt==kt: lst.append((S9,Q9,NM9))
                for (d,Qx,NM) in lst:
                    b(mfma(d,kf,Qx+4*s, NM if s==0 else d))
    def softmax(S,L,n=8):
        for r in range(n): b(f"v_exp_f32 v{S+r}, v{S+r}")
        for r in range(n): b(f"v_add_f32 v{L[r&1]}, v{L[r&1]}, v{S+r}")
        for r in range(n//2): b(f"v_cvt_pk_bf16_f32 v{S+r}, v{S+2*r}, v{S+2*r+1}")
    softmax(S1[cur],L1)
    if t9kt is not None:
        softmax(S9,L9,4)
        b(f"ds_write_b64 v{P9A}, {vr(S9,2)} offset:{nxt*1024+8*t9kt}")
    for i in range(8):
        vf=VF[i%len(VF)]
        b(f"ds_read_b64_tr_b16 {vr(vf,2)}, v{VA[i]} offset:{slot}")
        b(f"ds_read_b64_tr_b16 {vr(vf+2,2)}, v{VA[i]} offset:{slot+4096}")
        b(mfma(O0+4*i,vf,S0[cur],O0+4*i))
        b(mfma(O1+4*i,vf,S1[cur],O1+4*i))
        if i<2: b(mfma(O9+4*i,vf,P9F,O9+4*i))
    if ver!='final':
        softmax(S0[nxt],L0)
        for s in range(4):
            b(f"ds_read_b128 {vr(KF[s])}, v{KA[s]} offset:{nslot}")
    return b.ins

def dma_macros(p,LA):
    P_=P()
    slotpos=(p+LA)%4
    jl=28+p; tgt=jl+LA
    out=[]
    for part,e_ in (('K',0),('K',1),('V',0),('V',1)):
        skip_last = (tgt>=31) if part=='K' else (tgt>=32)
        m=[]
        lab=P_.new('DM')
        if skip_last:
            m.append(I(f"s_cmp_eq_u32 s{sLAST}, 1"))
            m.append(I(f"s_cbranch_scc1 {lab}"))
        off=" offset:1024" if e_ else ""
        if part=='K':
            body=[f"s_add_u32 m0, s{sM0}, {slotpos*SLOT}", f"s_add_u32 s{sT}, s{sSOFF}, 8192",
                   f"buffer_load_dwordx4 v{DK[e_]}, {sr(sK)}, s{sT} offen{off} nt lds"]
        else:
            body=[f"s_add_u32 m0, s{sM0}, {slotpos*SLOT+8192}", "s_nop 0",
                   f"buffer_load_dwordx4 v{DV[e_]}, {sr(sV)}, s{sSOFF} offen{off} nt lds"]
            if e_==1: body.append(f"s_add_u32 s{sSOFF}, s{sSOFF}, 8192")
        for l in body:
            i=I(l); i.skip=skip_last; m.append(i)
        if skip_last: m.append(I(lab+':'))
        out.append(m)
    return out

def dmpos(ver):
    m=OPT['dmmode']
    if m==0: return [3,4,9,10] if False else [3,3.5,9,9.5]
    off={'plain':0,'t9a':OPT['dmo1'],'t9b':OPT['dmo2']}[ver]
    return [x+off for x in {1:[2,10,18,26],2:[1,5,9,13],3:[16,20,24,28]}[m]]
def place_macros(o,macros,positions):
    res=[]; n=0; todo=sorted(zip(positions,range(len(macros))))
    for i in o:
        res.append(i)
        if i.kind=='mfma':
            n+=1
            while todo and int(todo[0][0])<=n: res+=macros[todo.pop(0)[1]]
    for _,k in todo: res+=macros[k]
    return res

def dma_slot(b,slotpos,kpart=True,vpart=True):
    if kpart:
        b(f"s_add_u32 m0, s{sM0}, {slotpos*SLOT}")
        b(f"s_add_u32 s{sT}, s{sSOFF}, 8192")
        b(f"buffer_load_dwordx4 v{DK[0]}, {sr(sK)}, s{sT} offen nt lds")
        b(f"buffer_load_dwordx4 v{DK[1]}, {sr(sK)}, s{sT} offen offset:1024 nt lds")
    if vpart:
        b(f"s_add_u32 m0, s{sM0}, {slotpos*SLOT+8192}")
        b(f"s_nop 0")
        b(f"buffer_load_dwordx4 v{DV[0]}, {sr(sV)}, s{sSOFF} offen nt lds")
        b(f"buffer_load_dwordx4 v{DV[1]}, {sr(sV)}, s{sSOFF} offen offset:1024 nt lds")


FLG=46<<20
def flag_srd(b):
    b(f"""
s_add_u32 s72, s40, {FLG}
s_addc_u32 s73, s41, 0
s_mov_b32 s74, 32768
s_mov_b32 s75, 0x20000
""")
def flag_addr(b,vd,vt):
    b(f"""
s_lshl_b32 s{sT}, s{sBR}, 3
s_add_u32 s{sT}, s{sT}, s{sB}
s_lshr_b32 s{sT2}, s{sH}, 3
s_lshl_b32 s{sLAST}, s{sT}, 2
s_add_u32 s{sLAST}, s{sLAST}, s{sT2}
s_lshl_b32 s{sLAST}, s{sLAST}, 7
s_and_b32 s{sT2}, s{sH}, 7
s_lshl_b32 s{sT}, s{sT}, 3
s_add_u32 s{sT}, s{sT}, s{sT2}
s_lshl_b32 s{sT}, s{sT}, 7
s_add_u32 s{sT}, s{sT}, 8192
v_and_b32 v{vt}, 7, v0
v_lshlrev_b32 v{vd}, 2, v{vt}
v_add_u32 v{vd}, s{sLAST}, v{vd}
v_bfe_u32 v{vt}, v0, 3, 1
v_lshl_add_u32 v{vd}, v{vt}, 11, v{vd}
v_and_b32 v{vt}, 3, v0
v_lshlrev_b32 v{vt}, 2, v{vt}
v_add_u32 v{vt}, s{sT}, v{vt}
v_bfe_u32 v{vd+1}, v0, 2, 1
v_lshl_add_u32 v{vt}, v{vd+1}, 12, v{vt}
v_cmp_lt_u32 vcc, 15, v0
v_cndmask_b32 v{vd}, v{vd}, v{vt}, vcc
v_cmp_lt_u32 vcc, 23, v0
v_mov_b32 v{vt}, s{sLAST}
v_cndmask_b32 v{vd}, v{vd}, v{vt}, vcc
""")

def op_early(b):
    sWO=8; sNT=45; sHQ=46; sWK2=54; sWM2=55; sBK=56
    DWO=[221,222,223,224,225]; UN=24576
    b(f"""
s_and_b32 s{sNT}, s{sH}, 7
s_lshr_b32 s{sHQ}, s{sH}, 3
s_mov_b32 s{sT2}, {(1<<16)//10+1}
""")
    for e in range(5):
        b(f"""
v_add_u32 v1, {64*e}, v0
v_mul_u32_u24 v2, s{sT2}, v1
v_lshrrev_b32 v2, 16, v2
v_mul_u32_u24 v{DWO[e]}, 10, v2
v_sub_u32 v{DWO[e]}, v1, v{DWO[e]}
v_mul_u32_u24 v2, 1280, v2
v_lshl_add_u32 v{DWO[e]}, v{DWO[e]}, 4, v2
""")
        if 0<e<4: b(f"v_subrev_u32 v{DWO[e]}, {e*1024}, v{DWO[e]}")
    b(f"""
s_mul_i32 s{sT}, s{sHQ}, {1024*1280}
s_mul_i32 s{sT2}, s{sNT}, 160
s_add_u32 s{sT}, s{sT}, s{sT2}
s_add_u32 s{sWO}, s84, s{sT}
s_addc_u32 s{sWO+1}, s85, 0
s_sub_u32 s{sWO+2}, 5242880, s{sT}
s_mov_b32 s{sWO+3}, 0x20000
s_mul_i32 s{sWK2}, s{sW}, {32*1280}
s_mov_b32 s88, s{sNT}
s_mul_i32 s{sT}, s88, {128*1280}
s_add_u32 s{sWK2}, s{sWK2}, s{sT}
s_mul_i32 s{sWM2}, s{sW}, 5120
s_mul_i32 s{sBK}, s{sW}, {32*1280}
s_add_u32 s{sBK}, s{sBK}, {8*128*1280}
""")
    for slot in range(2):
        b(f"s_add_u32 m0, s{sWM2}, {slot*UN}")
        b("s_nop 0")
        for e in range(4):
            b(f"buffer_load_dwordx4 v{DWO[e]}, {sr(sWO)}, s{sWK2} offen offset:{e*1024} lds")
        b(f"s_add_u32 m0, m0, 4096")
        b(f"s_add_u32 s{sT}, s{sWK2}, {128*1280}")
        b(f"buffer_load_dwordx4 v{DWO[4]}, {sr(sWO)}, s{sWK2} offen lds")
        b(f"s_cmp_ge_u32 s{sT}, s{sBK}")
        b(f"s_cselect_b32 s{sT2}, {1024*1280}, 0")
        b(f"s_sub_u32 s{sWK2}, s{sT}, s{sT2}")

def decode_ids(b):
    b(f"""
s_bfe_u32 s{sBR}, s2, 0x10002
s_and_b32 s{sH}, s2, 3
s_lshl_b32 s{sH}, s{sH}, 3
s_bfe_u32 s{sT}, s2, 0x30003
s_add_u32 s{sH}, s{sH}, s{sT}
s_bfe_u32 s{sB}, s2, 0x20006
s_lshr_b32 s{sT}, s2, 8
s_lshl_b32 s{sT}, s{sT}, 2
s_add_u32 s{sB}, s{sB}, s{sT}
""")

def gen_k1():
    b=P()
    b("s_cmp_ge_u32 s2, 512")
    b("s_cbranch_scc1 K1_END")
    if OPT['lateexit']:
        b("s_cmp_ge_u32 s2, 256")
        b("s_cbranch_scc1 K1_END")
    decode_ids(b)
    b(f"""
s_mul_i32 s3, s{sBR}, 40
s_add_u32 s28, s0, s3
s_addc_u32 s29, s1, 0
s_load_dwordx8 s[32:39], s[28:29], 0
s_load_dwordx2 s[40:41], s[0:1], 96
s_load_dwordx2 s[84:85], s[28:29], 32
s_load_dwordx4 s[96:99], s[0:1], 80
v_lshrrev_b32 v1, 6, v0
v_and_b32 v0, 63, v0
s_nop 0
v_readfirstlane_b32 s{sW}, v1
v_and_b32 v1, 15, v0
v_lshrrev_b32 v2, 4, v0
""")
    stamp(b,0)
    if OPT['stamps']:
        for i in range(1,10):
            b(f"v_writelane_b32 v237, s92, {2*i}"); b(f"v_writelane_b32 v237, s94, {2*i+1}")
    if OPT['prio']:
        b("s_cmp_lt_u32 s2, 256")
        b("s_cbranch_scc0 K1_NOPRIO")
        b(f"s_setprio {OPT['prio']}")
        b.label("K1_NOPRIO")
    qWA=[148,149,150,151]; qXB=[152,153]; qX9=[154,155]; qDX=[156,157]; qDW=[158,159,160]
    FA=[76,112]
    b(f"""
v_lshrrev_b32 v3, 3, v0
v_mul_u32_u24 v3, 1280, v3
v_and_b32 v4, 7, v0
v_xor_b32 v5, v4, v2
v_lshl_add_u32 v{qDX[0]}, v5, 4, v3
v_xor_b32 v5, 4, v5
v_lshl_add_u32 v{qDX[1]}, v5, 4, v3
""")
    for e in range(3):
        b(f"""
s_mul_i32 s{sT}, s{sW}, 3
s_add_u32 s{sT}, s{sT}, {e}
s_min_u32 s{sT}, s{sT}, 7
s_bfe_u32 s{sT2}, s{sT}, 0x10001
s_lshl_b32 s{sT2}, s{sT2}, 3
v_lshlrev_b32 v3, 1, v2
v_add_u32 v3, s{sT2}, v3
v_xor_b32 v3, v1, v3
v_lshlrev_b32 v3, 4, v3
v_lshl_add_u32 v3, v2, 13, v3
s_lshl_b32 s{sT2}, s{sT}, 15
v_add_u32 v{qDW[e]}, s{sT2}, v3
s_lshl_b32 s{86+e}, s{sT}, 10
s_add_u32 s{86+e}, s{86+e}, {WB}
""")
    b(f"""
s_mul_i32 s{sXM}, s{sW}, {6*1024}
s_mul_i32 s{sXS}, s{sW}, {6*10240}
s_mov_b32 s{sXK}, 0
s_mov_b32 s{sWK}, 0
s_and_b32 s{sQH}, s{sW}, 1
s_lshr_b32 s{sDH}, s{sW}, 1
s_lshl_b32 s{sM0}, s{sW}, 11
s_waitcnt lgkmcnt(0)
""")
    if OPT['fst']: stamp(b,1)
    b(f"""
s_mul_i32 s{sT}, s{sB}, 184320
s_add_u32 s{sX}, s32, s{sT}
s_addc_u32 s{sX+1}, s33, 0
s_mov_b32 s{sX+2}, 184320
s_mov_b32 s{sX+3}, 0x20000
s_lshl_b32 s{sT}, s{sH}, 8
s_add_u32 s{sWQ}, s38, s{sT}
s_addc_u32 s{sWQ+1}, s39, 0
s_sub_u32 s{sWQ+2}, 5242880, s{sT}
s_mov_b32 s{sWQ+3}, 0x20000
s_lshl_b32 s{sT}, s{sB}, 5
s_add_u32 s{sT}, s{sT}, s{sH}
s_lshr_b32 s{sT2}, s{sT}, 14
s_lshl_b32 s{sT}, s{sT}, 18
{"s_and_b32 s47, s47, 0x1c0000" + chr(10) + "s_mov_b32 s48, 0" if OPT['samekv'] else ""}
s_add_u32 s{sK}, s34, s{sT}
s_addc_u32 s{sK+1}, s35, s{sT2}
s_mov_b32 s{sK+2}, 262144
s_mov_b32 s{sK+3}, 0x20000
s_add_u32 s{sV}, s36, s{sT}
s_addc_u32 s{sV+1}, s37, s{sT2}
s_mov_b32 s{sV+2}, 262144
s_mov_b32 s{sV+3}, 0x20000
s_mov_b32 s{sO}, s40
s_mov_b32 s{sO+1}, s41
s_mov_b32 s{sO+2}, {O_BYTES}
s_mov_b32 s{sO+3}, 0x20000
""")
    if OPT['oponly']:
        b(f"""
s_mov_b32 s28, s98
s_mov_b32 s29, s99
s_mov_b32 s30, 256
s_mov_b32 s31, 0x20000
""")
        b("s_branch K1_OPONLY")
    if OPT['wsf']:
        flag_srd(b)
        flag_addr(b,234,236)
        b("buffer_load_dword v238, v234, s[72:75], 0 offen sc0 sc1")
    def xops(slot):
        ops=[]
        for e in range(6):
            o=[]
            if e==0:
                o.append(f"s_add_u32 s{sT}, s{sXS}, s{sXK}")
                o.append(f"s_add_u32 m0, s{sXM}, {XS[slot]}")
                o.append(f"s_add_u32 s{sXK}, s{sXK}, 128")
                o.append(f"s_cmp_eq_u32 s{sXK}, 1280")
                o.append(f"s_cselect_b32 s{sXK}, 0, s{sXK}")
            else:
                o.append(f"s_add_u32 m0, m0, 1024")
                o.append(f"s_add_u32 s{sT}, s{sT}, 10240")
            o.append(f"buffer_load_dwordx4 v{qDX[e&1]}, {sr(sX)}, s{sT} offen{' nt' if OPT['xnt'] else ''} lds")
            ops.append(o)
        return ops
    def wops(slot):
        ops=[]
        for e in range(3):
            o=[f"s_add_u32 m0, s{86+e}, {slot*8192}"]
            o.append("s_nop 0")
            o.append(f"buffer_load_dwordx4 v{qDW[e]}, {sr(sWQ)}, s{sWK} offen{' nt' if OPT['wnt'] else ''} lds")
            if e==2:
                o.append(f"s_add_u32 s{sWK}, s{sWK}, {32*8192}")
                o.append(f"s_cmp_eq_u32 s{sWK}, {640*8192}")
                o.append(f"s_cselect_b32 s{sWK}, 0, s{sWK}")
            ops.append(o)
        return ops
    def emit_ops(ops):
        for o in ops:
            for l in o: b(l)
    if OPT['rot']:
        b(f"""
{"s_and_b32 s47, s6, 3" if OPT['rot3'] else "s_mov_b32 s47, s6"}
s_mul_i32 s{sT}, s{sT}, 3
s_and_b32 s{sT2}, s{sH}, 7
s_add_u32 s{sT}, s{sT}, s{sT2}
s_cmp_ge_u32 s{sT}, 20
s_cselect_b32 s{sT2}, 20, 0
s_sub_u32 s{sT}, s{sT}, s{sT2}
s_cmp_ge_u32 s{sT}, 10
s_cselect_b32 s{sT2}, 10, 0
s_sub_u32 s{sT}, s{sT}, s{sT2}
s_lshl_b32 s{sXK}, s{sT}, 7
s_lshl_b32 s{sWK}, s{sT}, 19
""")
    def wtouch(t,dst):
        b(f"v_add_u32 v5, {32*t}, v3")
        b(f"v_lshlrev_b32 v5, 2, v5")
        b(f"v_add_u32 v5, s{sB}, v5")
        b(f"v_lshl_add_u32 v5, v5, 13, v4")
        b(f"buffer_load_dword v{dst}, v5, {sr(sWQ)}, 0 offen{' nt' if OPT['tnt'] else ''}")
    def xtouch(t,dst):
        b(f"v_add_u32 v5, {64*t}, v0")
        b(f"v_min_u32 v5, 179, v5")
        b(f"v_mul_u32_u24 v6, s{sT2}, v5")
        b(f"v_lshrrev_b32 v6, 16, v6")
        b(f"v_mul_u32_u24 v7, 18, v6")
        b(f"v_sub_u32 v7, v5, v7")
        b(f"v_lshlrev_b32 v7, 3, v7")
        b(f"v_add_u32 v7, s{sT}, v7")
        b(f"v_mul_u32_u24 v7, 1280, v7")
        b(f"v_lshl_add_u32 v7, v6, 7, v7")
        b(f"buffer_load_dword v{dst}, v7, {sr(sX)}, 0 offen{' nt' if OPT['tnt'] else ''}")
    def k0load():
        for vw in range(4):
            b(f"""
v_add_u32 v190, {8*vw}, v2
v_lshlrev_b32 v191, 8, v190
v_and_b32 v192, 15, v190
v_xor_b32 v192, v1, v192
v_lshl_add_u32 v193, v192, 4, v191
v_add_u32 v192, 4, v190
v_and_b32 v192, 15, v192
v_xor_b32 v192, v1, v192
v_lshl_add_u32 v194, v192, 4, v191
s_mov_b32 m0, {K0B+vw*2048}
s_nop 0
buffer_load_dwordx4 v193, {sr(sK)}, 0 offen nt lds
buffer_load_dwordx4 v194, {sr(sK)}, 0 offen offset:1024 nt lds
""")
    def kvtouch(n):
        if n==0: return
        b(f"v_lshlrev_b32 v195, 7, v0")
        for t in range(n):
            b(f"s_mov_b32 s{sLAST}, {(t+1)*8192}")
            b(f"buffer_load_dword v{172+2*t}, v195, {sr(sK)}, s{sLAST} offen nt")
            b(f"s_mov_b32 s{sLAST}, {t*8192}")
            b(f"buffer_load_dword v{173+2*t}, v195, {sr(sV)}, s{sLAST} offen nt")
    if OPT['ldelay']:
        FL=48<<20
        b(f"""
s_add_u32 s28, s40, {FL}
s_addc_u32 s29, s41, 0
s_mov_b32 s30, 32768
s_mov_b32 s31, 0x20000
s_and_b32 s{sT}, s2, 255
s_lshl_b32 s89, s{sT}, 7
v_mov_b32 v61, 0
""")
        b("s_cmp_lt_u32 s2, 256")
        b("s_cbranch_scc0 K1_DLATE")
        b(f"s_cmp_lg_u32 s{sW}, 3")
        b("s_cbranch_scc1 K1_NODELAY")
        b(f"buffer_load_dword v199, v61, s[28:31], s89 offen sc1")
        b("s_branch K1_NODELAY")
        b.label("K1_DLATE")
        b(f"s_cmp_lg_u32 s{sW}, 0")
        b("s_cbranch_scc1 K1_DELAYB")
        b(f"buffer_load_dword v62, v61, s[28:31], s89 offen sc1")
        b(f"s_mov_b32 s{sIT}, 0")
        b("s_waitcnt vmcnt(0)")
        b(f"v_readfirstlane_b32 s{sLAST}, v62")
        b.label("K1_DPOLL")
        b(f"""
s_sleep {OPT['dsleep']}
buffer_load_dword v60, v61, s[28:31], s89 offen sc1
s_waitcnt vmcnt(0)
v_readfirstlane_b32 s{sT}, v60
s_cmp_lg_u32 s{sT}, s{sLAST}
s_cbranch_scc1 K1_DELAYB
s_add_u32 s{sIT}, s{sIT}, 1
s_cmp_lt_u32 s{sIT}, {OPT['dmax']}
s_cbranch_scc1 K1_DPOLL
""")
        b.label("K1_DELAYB")
        b("s_barrier")
        b.label("K1_NODELAY")
    if OPT['rot']:
        b(f"s_cmp_eq_u32 s{sW}, 3")
        b("s_cbranch_scc1 K1_SETUP")
        emit_ops(xops(0)); emit_ops(wops(0)); emit_ops(wops(1))
        b("s_branch K1_SETUP")
    b(f"s_cmp_eq_u32 s{sW}, 3")
    b("s_cbranch_scc0 K1_SETUP")
    b(f"v_lshrrev_b32 v3, 1, v0")
    b(f"v_and_b32 v4, 1, v0")
    b(f"v_lshlrev_b32 v4, 7, v4")
    b(f"s_and_b32 s{sT}, s{sH}, 7")
    b(f"s_mov_b32 s{sT2}, {(1<<16)//18+1}")
    b("s_cmp_lt_u32 s2, 256")
    b("s_cbranch_scc0 K1_TLATE")
    wtouch(0,164); xtouch(0,165); wtouch(1,166); wtouch(2,167); xtouch(1,168); wtouch(3,169); xtouch(2,170); wtouch(4,171)
    b("s_branch K1_SETUP")
    b.label("K1_TLATE")
    k0load()
    kvtouch(OPT['kvpfl'])
    xtouch(0,165); xtouch(1,168); xtouch(2,170)
    b.label("K1_SETUP")
    b(f"""
s_lshl_b32 s{sT}, s{sW}, 3
v_add_u32 v3, s{sT}, v2
v_lshlrev_b32 v4, 8, v3
v_and_b32 v5, 15, v3
v_xor_b32 v5, v1, v5
v_lshl_add_u32 v{DK[0]}, v5, 4, v4
v_add_u32 v5, 4, v3
v_and_b32 v5, 15, v5
v_xor_b32 v5, v1, v5
v_lshl_add_u32 v{DK[1]}, v5, 4, v4
v_lshlrev_b32 v5, 1, v2
v_xor_b32 v5, v1, v5
v_lshl_add_u32 v{DV[0]}, v5, 4, v4
v_lshlrev_b32 v5, 1, v2
v_add_u32 v5, 8, v5
v_xor_b32 v5, v1, v5
v_lshl_add_u32 v{DV[1]}, v5, 4, v4
""")
    b(f"""
v_bfe_u32 v3, v0, 2, 2
v_and_b32 v4, 1, v2
v_lshl_add_u32 v4, v4, 2, v3
v_lshl_add_u32 v5, v2, 3, v3
v_lshlrev_b32 v5, 8, v5
v_and_b32 v6, 3, v0
v_lshl_add_u32 v5, v6, 3, v5
v_add_u32 v5, {WB}, v5
""")
    for i in range(4):
        b(f"""
s_lshl_b32 s{sT}, s{sQH}, 1
s_add_u32 s{sT}, s{sT}, {i}
s_and_b32 s{sT}, s{sT}, 3
s_lshl_b32 s{sT2}, s{sDH}, 2
s_add_u32 s{sT}, s{sT}, s{sT2}
v_xor_b32 v6, s{sT}, v4
v_lshl_add_u32 v{qWA[i]}, v6, 5, v5
""")
    b(f"""
v_lshrrev_b32 v3, 1, v1
v_xor_b32 v3, v3, v2
v_lshlrev_b32 v3, 4, v3
v_lshl_add_u32 v3, v1, 7, v3
s_lshl_b32 s{sT}, s{sQH}, 13
v_add_u32 v{qXB[0]}, s{sT}, v3
v_xor_b32 v{qXB[1]}, 64, v{qXB[0]}
v_add_u32 v{qX9[0]}, 16384, v3
v_xor_b32 v{qX9[1]}, 64, v{qX9[0]}
""")
    for r in range(O0,O0+72): b(f"v_mov_b32 v{r}, 0")
    def qreads(k,fs):
        wb=(k%4)*8192; xb=XS[(k>>1)&1]; e=k&1
        o=[]
        for t in range(4):
            o.append(f"ds_read_b128 {vr(fs+16+4*t)}, v{qXB[e]} offset:{xb+t*2048}")
            o.append(f"ds_read_b64_tr_b16 {vr(fs+4*t,2)}, v{qWA[t]} offset:{wb}")
            o.append(f"ds_read_b64_tr_b16 {vr(fs+4*t+2,2)}, v{qWA[t]} offset:{wb+1024}")
        o.append(f"ds_read_b128 {vr(fs+32)}, v{qX9[e]} offset:{xb}")
        return o
    def qstep(p,dma,nexthead=None,pre=None):
        cur=FA[p&1]; nxt=FA[(p&1)^1]
        if OPT['qst']:
            b("s_memtime s[90:91]")
            b("s_waitcnt lgkmcnt(0)")
            b(f"s_lshl_b32 s92, s{sIT}, 2")
            b(f"s_add_u32 s92, s92, {p}")
            b("s_mov_b32 m0, s92")
            b("s_sub_u32 s90, s90, s61")
            b("v_writelane_b32 v200, s90, m0")
        rd=qreads(p+1,nxt)
        mf=[]
        for i in range(4):
            for t in range(4): mf.append(mfma(O0+16*t+4*i,cur+4*i,cur+16+4*t,O0+16*t+4*i))
            if i<2: mf.append(mfma(O9+4*i,cur+4*i,cur+32,O9+4*i))
        ops=[]
        if dma:
            if p%2==1: ops+=xops((p>>1)&1)
            ops+=wops(p)
        pos={}
        n=len(ops)
        if nexthead is None:
            for idx in range(n): pos[7+idx*10//max(n,1)]=ops[idx]
        else:
            for idx in range(n): pos[2+idx*10//max(n,1)]=ops[idx]
        for idx,m in enumerate(mf):
            b(m)
            for r_ in rd[2*idx:2*idx+2]: b(r_)
            if idx in pos:
                for l in pos[idx]: b(l)
            if nexthead is not None and idx==OPT['qhpos']:
                for l in nexthead: b(l)
    if OPT['qtwice']:
        b("s_mov_b32 s95, 0")
        b.label("K1_QAGAIN")
        b("s_cmp_eq_u32 s95, 0")
        b("s_cbranch_scc1 K1_QFIRST")
        b("s_barrier")
        b("s_memtime s[62:63]")
        b("s_memrealtime s[60:61]")
        b("s_waitcnt lgkmcnt(0)")
        b(f"s_cmp_eq_u32 s{sW}, 3")
        b("s_cbranch_scc1 K1_QFIRST")
        emit_ops(xops(0)); emit_ops(wops(0)); emit_ops(wops(1))
        b.label("K1_QFIRST")
    b(f"s_cmp_eq_u32 s{sW}, 3")
    b("s_cbranch_scc1 K1_Q3")
    if not OPT['rot']:
        b("s_barrier")
        if OPT['fst']: stamp(b,2)
        emit_ops(xops(0)); emit_ops(wops(0)); emit_ops(wops(1)); emit_ops(xops(1)); emit_ops(wops(2)); emit_ops(wops(3))
    elif OPT['fst']: stamp(b,2)
    b("s_waitcnt vmcnt(3)")
    b("s_barrier")
    if OPT['fst']: stamp(b,3)
    for l in qreads(0,FA[0]): b(l)
    emit_ops(xops(1)); emit_ops(wops(2)); emit_ops(wops(3))
    b(f"s_mov_b32 s{sIT}, 0")
    if OPT['thr']:
        b(f"s_lshr_b32 s{sSEL}, s2, 8")
        b(f"s_mul_i32 s{sSEL}, s{sSEL}, {OPT['thr']}")
    if OPT['qh']:
        b("s_waitcnt vmcnt(12) lgkmcnt(0)")
        b("s_barrier")
        b.label("K1_QLOOP")
        for p in range(4):
            qstep(p,True,[f"s_waitcnt vmcnt({12 if (p+1)%2==0 else 6}) lgkmcnt(0)","s_barrier"])
        b(f"s_add_u32 s{sIT}, s{sIT}, 1")
        b(f"s_cmp_lt_u32 s{sIT}, 4")
        b("s_cbranch_scc1 K1_QLOOP")
        for p in range(4):
            qstep(p,False,[f"s_waitcnt vmcnt({[3,0,0][p]}) lgkmcnt(0)","s_barrier"] if p<3 else [])
    else:
        b.label("K1_QLOOP")
        for p in range(4):
            b(f"s_waitcnt vmcnt({12 if p%2==0 else 6}) lgkmcnt(0)")
            if OPT['thr']:
                lt=b.new('TH')
                b(f"s_cmp_lt_u32 s{sIT}, s{sSEL}")
                b(f"s_cbranch_scc0 {lt}")
                b("s_waitcnt vmcnt(0)")
                b.label(lt)
            b("s_barrier")
            qstep(p,True)
        b(f"s_add_u32 s{sIT}, s{sIT}, 1")
        b(f"s_cmp_lt_u32 s{sIT}, 4")
        b("s_cbranch_scc1 K1_QLOOP")
        for p in range(4):
            b(f"s_waitcnt vmcnt({[12,3,0,0][p] if not OPT['searly'] else [12,3,0,4][p]}) lgkmcnt(0)")
            b("s_barrier")
            if OPT['searly'] and p in (2,3):
                b(f"s_mov_b32 s{sSOFF}, {(p-2)*8192}")
                dma_slot(b,p-2)
            qstep(p,False)
    b("s_branch K1_QDONE")
    b.label("K1_Q3")
    if OPT['rot']:
        if OPT['fst']: stamp(b,2)
        b("s_barrier")
        if OPT['fst']: stamp(b,3)
        for l in qreads(0,FA[0]): b(l)
        b(f"s_mov_b32 s{sIT}, 0")
        if OPT['qh']:
            b("s_waitcnt lgkmcnt(0)")
            b("s_barrier")
        b("s_branch K1_QLOOP3")
    b("s_cmp_lt_u32 s2, 256")
    b("s_cbranch_scc0 K1_Q3L")
    b(f"s_waitcnt vmcnt({8-OPT['tw']})")
    b("s_barrier")
    if OPT['fst']: stamp(b,2)
    k0load()
    kvtouch(OPT['kvpf'])
    b("s_branch K1_Q3J")
    b.label("K1_Q3L")
    b("s_waitcnt vmcnt(0)")
    b("s_barrier")
    if OPT['fst']: stamp(b,2)
    b.label("K1_Q3J")
    b("s_barrier")
    if OPT['fst']: stamp(b,3)
    for l in qreads(0,FA[0]): b(l)
    b(f"s_mov_b32 s{sIT}, 0")
    b.label("K1_QLOOP3")
    if OPT['rot']:
        l1=b.new('W3'); l2=b.new('W3')
        b(f"s_cmp_eq_u32 s{sIT}, {OPT['k0it']}")
        b(f"s_cbranch_scc0 {l1}")
        k0load()
        b.label(l1)
        b(f"s_cmp_eq_u32 s{sIT}, {OPT['kvit']}")
        b(f"s_cbranch_scc0 {l2}")
        b("s_cmp_lt_u32 s2, 256")
        b(f"s_cbranch_scc0 {l2}L")
        kvtouch(OPT['kvpf'])
        b(f"s_branch {l2}")
        b.label(l2+"L")
        kvtouch(OPT['kvpfl'])
        b.label(l2)
    if OPT['qh']:
        for p in range(4):
            qstep(p,False,["s_waitcnt lgkmcnt(0)","s_barrier"])
        b(f"s_add_u32 s{sIT}, s{sIT}, 1")
        b(f"s_cmp_lt_u32 s{sIT}, 4")
        b("s_cbranch_scc1 K1_QLOOP3")
        for p in range(4):
            qstep(p,False,["s_waitcnt lgkmcnt(0)","s_barrier"] if p<3 else [])
    else:
        for p in range(4):
            b(f"s_waitcnt lgkmcnt(0)")
            b("s_barrier")
            if OPT['searly'] and p in (2,3):
                l_=b.new('SE')
                b(f"s_cmp_eq_u32 s{sIT}, 4")
                b(f"s_cbranch_scc0 {l_}")
                b(f"s_mov_b32 s{sSOFF}, {(p-2)*8192}")
                dma_slot(b,p-2)
                b.label(l_)
            qstep(p,False)
        b(f"s_add_u32 s{sIT}, s{sIT}, 1")
        b(f"s_cmp_lt_u32 s{sIT}, 5")
        b("s_cbranch_scc1 K1_QLOOP3")
    b.label("K1_QDONE")
    if OPT['ldelay']:
        ls=b.new('LS')
        b("s_cmp_lt_u32 s2, 256")
        b(f"s_cbranch_scc0 {ls}")
        b(f"s_cmp_lg_u32 s{sW}, 3")
        b(f"s_cbranch_scc1 {ls}")
        b("s_waitcnt vmcnt(0)")
        b("v_add_u32 v199, 1, v199")
        b("v_mov_b32 v198, 0")
        b(f"buffer_store_dword v199, v198, s[28:31], s89 offen sc1")
        b.label(ls)
    if OPT['qtwice']:
        b("s_waitcnt vmcnt(0) lgkmcnt(0)")
        b("s_add_u32 s95, s95, 1")
        b("s_cmp_lt_u32 s95, 2")
        b("s_cbranch_scc1 K1_QAGAIN")
    if not OPT['fst']: stamp(b,1)
    if OPT['qponly']:
        b("s_waitcnt vmcnt(0)")
        if OPT['qst']:
            b(f"s_lshl_b32 s{sT}, s2, 2")
            b(f"s_add_u32 s{sT}, s{sT}, s{sW}")
            b(f"s_lshl_b32 s{sT}, s{sT}, 8")
            b(f"s_add_u32 s{sT}, s{sT}, {60<<20}")
            b(f"s_mov_b32 s{sO+2}, 0x10000000")
            b("v_lshlrev_b32 v3, 2, v0")
            b(f"buffer_store_dword v200, v3, {sr(sO)}, s{sT} offen")
        for i in ((4,) if OPT['fst'] else (2,3,4)): stamp(b,i)
        dump_stamps(b,10,sO,50<<20)
        b("s_endpgm")
    if OPT['searly']:
        b("s_waitcnt vmcnt(8) lgkmcnt(0)")
        b("s_barrier")
    else:
        b("s_waitcnt vmcnt(0) lgkmcnt(0)")
        b("s_barrier")
        b(f"s_mov_b32 s{sSOFF}, 0")
        dma_slot(b,0)
    b(f"s_mov_b32 s{sSEL}, {f2u(CSC)}")
    b(f"""
v_lshlrev_b32 v3, 8, v1
v_and_b32 v76, 1, v2
v_lshl_add_u32 v3, v76, 3, v3
v_add_u32 v3, {QB}, v3
v_lshrrev_b32 v77, 1, v2
s_lshl_b32 s{sT2}, s{sQH}, 14
v_add_u32 v78, s{sT2}, v3
""")
    for i in range(4):
        b(f"""
s_lshl_b32 s{sIT}, s{sQH}, 1
s_add_u32 s{sIT}, s{sIT}, {i}
s_and_b32 s{sIT}, s{sIT}, 3
s_lshl_b32 s{sT2}, s{sDH}, 2
s_add_u32 s{sIT}, s{sIT}, s{sT2}
s_lshl_b32 s{sIT}, s{sIT}, 1
v_add_u32 v79, s{sIT}, v77
v_xor_b32 v79, v79, v1
v_lshlrev_b32 v79, 4, v79
v_add_u32 v80, v79, v78
""")
        for t in range(4):
            acc=O0+16*t+4*i
            for r in range(4): b(f"v_mul_f32 v{acc+r}, s{sSEL}, v{acc+r}")
            b(f"v_cvt_pk_bf16_f32 v{acc}, v{acc}, v{acc+1}")
            b(f"v_cvt_pk_bf16_f32 v{acc+1}, v{acc+2}, v{acc+3}")
            b(f"ds_write_b64 v80, {vr(acc,2)} offset:{t*4096}")
        if i<2:
            acc=O9+4*i
            b(f"v_add_u32 v82, v79, v3")
            for r in range(4): b(f"v_mul_f32 v{acc+r}, s{sSEL}, v{acc+r}")
            b(f"v_cvt_pk_bf16_f32 v{acc}, v{acc}, v{acc+1}")
            b(f"v_cvt_pk_bf16_f32 v{acc+1}, v{acc+2}, v{acc+3}")
            b(f"ds_write_b64 v82, {vr(acc,2)} offset:32768")
    for s in range(4):
        b(f"""
v_add_u32 v79, {4*s}, v2
v_xor_b32 v79, v79, v1
v_lshlrev_b32 v79, 4, v79
v_lshl_add_u32 v{KA[s]}, v1, 8, v79
""")
    b(f"s_lshl_b32 s{sT2}, s{sW}, 13")
    b(f"s_add_u32 s{sT2}, s{sT2}, {QB}")
    for s in range(4):
        b(f"v_add_u32 v{S0[1]+s}, s{sT2}, v{KA[s]}")
        b(f"v_add_u32 v{S1[1]+s}, {K0B}, v{KA[s]}")
    b("s_waitcnt lgkmcnt(0)")
    b("s_barrier")
    for s in range(4): b(f"ds_read_b128 {vr(Q0+4*s)}, v{S0[1]+s} offset:0")
    for s in range(4): b(f"ds_read_b128 {vr(Q1+4*s)}, v{S0[1]+s} offset:4096")
    for s in range(4): b(f"v_add_u32 v{S1[0]+s}, {QB+32768}, v{KA[s]}")
    for s in range(4): b(f"ds_read_b128 {vr(Q9+4*s)}, v{S1[0]+s} offset:0")
    b(f"""
v_bfe_u32 v3, v0, 2, 2
v_and_b32 v4, 1, v2
v_lshl_add_u32 v4, v4, 2, v3
v_lshl_add_u32 v5, v2, 2, v3
v_lshlrev_b32 v5, 8, v5
v_and_b32 v6, 3, v0
v_lshl_add_u32 v5, v6, 3, v5
v_add_u32 v5, 8192, v5
s_lshl_b32 s{sT}, s{sW}, 1
""")
    for i in range(8):
        b(f"""
s_add_u32 s{sT2}, s{sT}, {i}
s_and_b32 s{sT2}, s{sT2}, 7
v_xor_b32 v6, s{sT2}, v4
v_lshl_add_u32 v{VA[i]}, v6, 5, v5
""")
    b(f"""
v_lshlrev_b32 v{P9A}, 4, v0
v_add_u32 v{P9A}, {P9B}, v{P9A}
v_xor_b32 v{BP16}, 16, v0
v_lshlrev_b32 v{BP16}, 2, v{BP16}
""")
    for r in range(O0,O0+72): b(f"v_mov_b32 v{r}, 0")
    for r in L0+L1+L9: b(f"v_mov_b32 v{r}, 0")
    b("s_waitcnt lgkmcnt(0)")
    b(f"v_xor_b32 v{BP32}, 32, v0")
    b(f"v_lshlrev_b32 v{BP32}, 2, v{BP32}")
    b("s_barrier")
    if OPT['dbg_q']:
        b(f"""
s_mul_i32 s{sT}, s2, {4*12*1024}
s_mul_i32 s{sT2}, s{sW}, {12*1024}
s_add_u32 s{sT}, s{sT}, s{sT2}
v_lshlrev_b32 v3, 4, v0
s_mov_b32 s{sO+2}, 0x10000000
""")
        for f in range(12):
            b(f"buffer_store_dwordx4 {vr(Q0+4*f)}, v3, {sr(sO)}, s{sT} offen")
            b(f"s_add_u32 s{sT}, s{sT}, 1024")
        b("s_waitcnt vmcnt(0)")
        b("s_branch K1_END")
    LA=OPT['attla']
    for sl in range(2 if OPT['searly'] else 1,LA):
        b(f"s_mov_b32 s{sSOFF}, {sl*8192}")
        dma_slot(b,sl)
    b(f"s_mov_b32 s{sSOFF}, {LA*8192}")
    pb=P()
    for kt in range(2):
        for s in range(4):
            kf=KF[(kt*4+s)%len(KF)]
            pb(f"ds_read_b128 {vr(kf)}, v{S1[1]+s} offset:{kt*4096}")
            for (Sx,Qx) in ((S0[0],Q0),(S1[0],Q1),(S9,Q9)):
                d=Sx+4*kt
                pb(mfma(d,kf,Qx+4*s,'0' if s==0 else d))
    o,ms,q=finish(pb.ins); b.add(o)
    TT=((S0[0],NM0),(S1[0],NM1),(S9,NM9))
    for (Sx,NM) in TT:
        b(f"""
v_max3_f32 v{NM}, v{Sx}, v{Sx+1}, v{Sx+2}
v_max3_f32 v{NM+2}, v{Sx+3}, v{Sx+4}, v{Sx+5}
v_max3_f32 v{NM}, v{NM}, v{Sx+6}, v{Sx+7}
v_max_f32 v{NM}, v{NM}, v{NM+2}
ds_bpermute_b32 v{NM+1}, v{BP16}, v{NM}
""")
    b("s_waitcnt lgkmcnt(0)")
    for (Sx,NM) in TT:
        b(f"v_max_f32 v{NM}, v{NM}, v{NM+1}")
        b(f"ds_bpermute_b32 v{NM+1}, v{BP32}, v{NM}")
    b("s_waitcnt lgkmcnt(0)")
    for (Sx,NM) in TT:
        b(f"""
v_max_f32 v{NM}, v{NM}, v{NM+1}
v_sub_f32 v{NM}, 0, v{NM}
v_mov_b32 v{NM+1}, v{NM}
v_mov_b32 v{NM+2}, v{NM}
v_mov_b32 v{NM+3}, v{NM}
""")
        for r in range(8): b(f"v_add_f32 v{Sx+r}, v{Sx+r}, v{NM}")
    def softmax_seq(S,L):
        for r in range(8): b(f"v_exp_f32 v{S+r}, v{S+r}")
        for r in range(8): b(f"v_add_f32 v{L[r&1]}, v{L[r&1]}, v{S+r}")
        for r in range(4): b(f"v_cvt_pk_bf16_f32 v{S+r}, v{S+2*r}, v{S+2*r+1}")
    softmax_seq(S0[0],L0)
    b(f"s_cmp_lg_u32 s{sW}, 0")
    b("s_cbranch_scc1 K1_NOP9")
    softmax_seq(S9,L9)
    b(f"ds_write_b128 v{P9A}, {vr(S9)} offset:0")
    b.label("K1_NOP9")
    b(f"s_mov_b32 s{sIT}, 0")
    if not OPT['prioatt']: b("s_setprio 0")
    if OPT['prioL']:
        b("s_cmp_lt_u32 s2, 256")
        b("s_cbranch_scc1 K1_PL")
        b(f"s_setprio {OPT['prioL']}")
        b.label("K1_PL")
    stamp(b,2)
    LA=OPT['attla']
    assert LA==3
    b("s_waitcnt vmcnt(10) lgkmcnt(0)")
    b("s_barrier")
    for s_ in range(4): b(f"ds_read_b128 {vr(KF[s_])}, v{KA[s_]} offset:0")
    bodies={}
    for p in range(4):
        for ver in ('plain','t9a','t9b')+(('final',) if p==3 else ()):
            if ver=='t9a' or ver=='t9b':
                pass
            o,ms=schedule(att_step(p,ver),lds_lat=OPT['ldslat'],lds_ahead=(OPT['lah'] if ver!='final' else 99),lds_per_gap=(OPT['lpg'] if ver!='final' else 9))
            if ver!='final' and not OPT['nodma']:
                o=place_macros(o,dma_macros(p,LA),dmpos(ver))
            if OPT['noexp']: o=[x for x in o if x.kind!='trans']
            if OPT['novalu']: o=[x for x in o if x.kind not in('trans','valu')]
            if OPT['nolds']: o=[x for x in o if x.kind not in('dsr','dsw')]
            o,q=insert_lgkm(o)
            bodies[(p,ver)]=o
            if p==0 or ver=='final': print(f"; step p={p} {ver}: est {ms} cycles, {len(o)} instrs",file=sys.stderr)
    b.label("K1_LOOP")
    b(f"s_cmp_eq_u32 s{sIT}, 7")
    b(f"s_cselect_b32 s{sLAST}, 1, 0")
    for p in range(4):
        d1=b.new('D'); d2=b.new('D')
        lastcnt=[6,4,2,0][p]
        if lastcnt==6:
            b(f"s_waitcnt vmcnt(6) lgkmcnt(0)")
            if not OPT['nobar']: b("s_barrier")
        else:
            if p!=0: b(f"s_cmp_eq_u32 s{sLAST}, 1")
            b(f"s_cbranch_scc1 K1_LW_{p}")
            b(f"s_waitcnt vmcnt(6) lgkmcnt(0)")
            if not OPT['nobar']: b("s_barrier")
            b.label(f"K1_LWB_{p}")
        if p==0 and OPT['wopf']:
            lw=b.new('WO')
            b(f"s_cmp_eq_u32 s{sIT}, {OPT['wotit']}")
            b(f"s_cbranch_scc0 {lw}")
            b(f"""
s_lshr_b32 s{sT}, s{sH}, 3
s_lshl_b32 s{sT}, s{sT}, 5
s_bfe_u32 s{sT2}, s2, 0x50003
s_add_u32 s{sT}, s{sT}, s{sT2}
s_mul_i32 s{sT}, s{sT}, 40960
s_add_u32 s80, s84, s{sT}
s_addc_u32 s81, s85, 0
s_mov_b32 s82, 40960
s_mov_b32 s83, 0x20000
v_lshlrev_b32 v3, 7, v0
s_lshl_b32 s{sT}, s{sW}, 13
buffer_load_dword v1, v3, s[80:83], s{sT} offen{' nt' if OPT['wont'] else ''}
s_mov_b32 s{sT}, 32768
buffer_load_dword v2, v3, s[80:83], s{sT} offen{' nt' if OPT['wont'] else ''}
""")
            b.label(lw)
        if OPT['ast']:
            b("s_memrealtime s[90:91]")
            b("s_waitcnt lgkmcnt(0)")
            b(f"s_lshl_b32 s92, s{sIT}, 2")
            b(f"s_add_u32 s92, s92, {p}")
            b("s_mov_b32 m0, s92")
            b("s_nop 1")
            b("v_writelane_b32 v237, s90, m0")
        wa=0 if p%2==0 else 2
        if not OPT['not9']:
            b(f"s_cmp_eq_u32 s{sW}, {wa}")
            b(f"s_cbranch_scc1 K1_T9A_{p}")
            b(f"s_cmp_eq_u32 s{sW}, {wa+1}")
            b(f"s_cbranch_scc1 K1_T9B_{p}")
        b.add(bodies[(p,'plain')])
        b.label(f"K1_NEXT_{p}")
    b(f"s_add_u32 s{sIT}, s{sIT}, 1")
    b("s_branch K1_LOOP")
    for p in range(4):
        b.label(f"K1_T9A_{p}")
        b.add(bodies[(p,'t9a')])
        b(f"s_branch K1_NEXT_{p}")
        b.label(f"K1_T9B_{p}")
        b.add(bodies[(p,'t9b')])
        b(f"s_branch K1_NEXT_{p}")
    for p in (1,2,3):
        b.label(f"K1_LW_{p}")
        b(f"s_waitcnt vmcnt({[6,4,2,0][p]}) lgkmcnt(0)")
        b("s_barrier")
        if p==3: b("s_branch K1_FINAL")
        else: b(f"s_branch K1_LWB_{p}")
    b.label("K1_FINAL")
    b.add(bodies[(3,'final')])
    b("s_waitcnt lgkmcnt(0)")
    stamp(b,3)
    if OPT['ast']:
        b(f"s_lshl_b32 s{sT}, s2, 2")
        b(f"s_add_u32 s{sT}, s{sT}, s{sW}")
        b(f"s_lshl_b32 s{sT}, s{sT}, 8")
        b(f"s_add_u32 s{sT}, s{sT}, {60<<20}")
        b(f"s_mov_b32 s{sO+2}, 0x10000000")
        b("v_lshlrev_b32 v3, 2, v0")
        b(f"buffer_store_dword v237, v3, {sr(sO)}, s{sT} offen")
        b(f"s_mov_b32 s{sO+2}, {O_BYTES}")
    LL=(L0,L1,L9)
    for L in LL:
        b(f"v_add_f32 v{L[0]}, v{L[0]}, v{L[1]}")
        b(f"ds_bpermute_b32 v{L[1]}, v{BP16}, v{L[0]}")
    b("s_waitcnt lgkmcnt(0)")
    for L in LL:
        b(f"v_add_f32 v{L[0]}, v{L[0]}, v{L[1]}")
        b(f"ds_bpermute_b32 v{L[1]}, v{BP32}, v{L[0]}")
    b("s_waitcnt lgkmcnt(0)")
    for L in LL: b(f"v_add_f32 v{L[0]}, v{L[0]}, v{L[1]}")
    THR=f2u(2.0**60) if not OPT['force_slow'] else f2u(0.5)
    for k in range(4): b(f"v_mov_b32 v{S9+k}, 0")
    for r in range(72): b(f"v_fmac_f32 v{S9+(r&3)}, 0, v{O0+r}")
    b(f"v_add_f32 v{S9}, v{S9}, v{S9+1}")
    b(f"v_add_f32 v{S9+2}, v{S9+2}, v{S9+3}")
    b(f"v_add_f32 v{S9}, v{S9}, v{S9+2}")
    b(f"v_cmp_u_f32 vcc, v{S9}, v{S9}")
    b(f"s_mov_b64 s[78:79], vcc")
    b(f"""
s_mov_b32 s{sSEL}, {THR}
v_cmp_ngt_f32 vcc, s{sSEL}, v{L0[0]}
s_or_b64 s[76:77], s[78:79], vcc
v_cmp_ngt_f32 vcc, s{sSEL}, v{L1[0]}
s_or_b64 s[76:77], s[76:77], vcc
s_cmp_lg_u64 s[76:77], 0
s_cselect_b32 s{sT}, 0x7f800000, 0
v_mov_b32 v1, s{sT}
v_max_f32 v{L9[0]}, v{L9[0]}, v1
""")
    b(f"""
s_lshl_b32 s{sT}, s{sW}, 8
v_lshlrev_b32 v3, 2, v0
v_add_u32 v3, {L9B}, v3
v_add_u32 v1, s{sT}, v3
ds_write_b32 v1, v{L9[0]}
v_rcp_f32 v{L0[0]}, v{L0[0]}
v_rcp_f32 v{L1[0]}, v{L1[0]}
s_waitcnt lgkmcnt(0)
s_barrier
ds_read_b32 v{S9}, v3
ds_read_b32 v{S9+1}, v3 offset:256
ds_read_b32 v{S9+2}, v3 offset:512
ds_read_b32 v{S9+3}, v3 offset:768
""")
    b(f"""
s_lshl_b32 s{sT}, s{sBR}, 3
s_add_u32 s{sT}, s{sT}, s{sB}
s_mul_i32 s{sT}, s{sT}, 9
s_lshl_b32 s{sT2}, s{sW}, 1
s_add_u32 s{sSEL}, s{sT}, s{sT2}
s_lshl_b32 s{sSEL}, s{sSEL}, 5
s_add_u32 s{sSEL}, s{sSEL}, s{sH}
s_lshl_b32 s{sSEL}, s{sSEL}, 12
s_add_u32 s{sT}, s{sT}, 8
s_lshl_b32 s{sT}, s{sT}, 5
s_add_u32 s{sT}, s{sT}, s{sH}
s_lshl_b32 s{sIT}, s{sT}, 12
v_lshlrev_b32 v3, 4, v0
s_waitcnt lgkmcnt(0)
v_add_f32 v{S9}, v{S9}, v{S9+1}
v_add_f32 v{S9+2}, v{S9+2}, v{S9+3}
v_add_f32 v{L9[0]}, v{S9}, v{S9+2}
s_mov_b32 s{sT}, {THR}
v_cmp_ngt_f32 vcc, s{sT}, v{L9[0]}
v_rcp_f32 v{L9[0]}, v{L9[0]}
s_cmp_lg_u64 vcc, 0
s_cbranch_scc1 K1_SLOW
""")
    if OPT['wearly']==1:
        op_early(b)
        b("v_lshlrev_b32 v3, 4, v0")
    def ostore(r):
        if OPT['dupst']==2:
            b(f"buffer_store_dwordx4 {vr(r)}, v3, {sr(sO)}, s{sLAST} offen")
        elif OPT['dupst']==3:
            b(f"buffer_store_dwordx4 {vr(r)}, v3, {sr(sO)}, s{sLAST} offen")
            b(f"buffer_store_dwordx4 {vr(r)}, v3, {sr(sO)}, s{sLAST} offen sc1")
        elif OPT['dupst']==4:
            b(f"buffer_store_dwordx4 {vr(r)}, v3, {sr(sO)}, s{sLAST} offen sc0 sc1")
        else:
            b(f"buffer_store_dwordx4 {vr(r)}, v3, {sr(sO)}, s{sLAST} offen sc1")
            if OPT['dupst']: b(f"buffer_store_dwordx4 {vr(r)}, v3, {sr(sO)}, s{sLAST} offen")
    def pack(acc,i,L):
        for r in range(8): b(f"v_mul_f32 v{acc+4*i+r}, v{acc+4*i+r}, v{L}")
        b(f"v_cvt_pk_bf16_f32 v{acc+4*i}, v{acc+4*i}, v{acc+4*i+1}")
        b(f"v_cvt_pk_bf16_f32 v{acc+4*i+1}, v{acc+4*i+2}, v{acc+4*i+3}")
        b(f"v_cvt_pk_bf16_f32 v{acc+4*i+2}, v{acc+4*i+4}, v{acc+4*i+5}")
        b(f"v_cvt_pk_bf16_f32 v{acc+4*i+3}, v{acc+4*i+6}, v{acc+4*i+7}")
    for i in (0,2,4,6):
        b(f"""
s_add_u32 s{sT2}, s{sW}, {i//2}
s_and_b32 s{sT2}, s{sT2}, 3
s_lshl_b32 s{sT2}, s{sT2}, 10
s_add_u32 s{sLAST}, s{sT2}, s{sSEL}
""")
        pack(O0,i,L0[0])
        ostore(O0+4*i)
        b(f"s_add_u32 s{sLAST}, s{sLAST}, {32*4096}")
        pack(O1,i,L1[0])
        ostore(O1+4*i)
    b(f"""
s_lshl_b32 s{sT2}, s{sW}, 10
s_add_u32 s{sLAST}, s{sT2}, s{sIT}
""")
    pack(O9,0,L9[0])
    ostore(O9)
    if OPT['wearly']==2: op_early(b)
    b.label("K1_STORED")
    sDBG=28
    b(f"""
s_mov_b32 s{sDBG}, s98
s_mov_b32 s{sDBG+1}, s99
s_mov_b32 s{sDBG+2}, 256
s_mov_b32 s{sDBG+3}, 0x20000
s_waitcnt vmcnt(0)
s_barrier
s_cmp_lg_u32 s{sW}, 0
s_cbranch_scc1 K1_SIG
""")
    if OPT['wsf']:
        flag_addr(b,4,6)
        b(f"""
s_and_b32 s{sT}, s{sH}, 7
s_mov_b32 m0, s{sT}
v_add_u32 v6, 1, v238
v_cmp_eq_u32 vcc, s{sT}, v0
s_and_saveexec_b64 s[78:79], vcc
buffer_store_dword v6, v4, s[72:75], 0 offen sc0 sc1
s_mov_b64 exec, -1
""")
    else:
        b(f"""
s_lshl_b32 s{sT}, s{sBR}, 3
s_add_u32 s{sT}, s{sT}, s{sB}
s_lshl_b32 s{sT}, s{sT}, 2
s_add_u32 s{sT}, s{sT}, 128
s_lshl_b32 s{sT2}, 1, s{sH}
v_mov_b32 v4, s{sT2}
v_mov_b32 v5, 0
s_mov_b64 exec, 1
buffer_atomic_or v4, v5, {sr(sDBG)}, s{sT} offen sc1
s_mov_b64 exec, -1
""")
    b.label("K1_SIG")
    b.label("K1_OPONLY")
    stamp(b,4)
    if OPT['op2']:
        if OPT['op2']==1:
            b("s_cmp_lt_u32 s2, 256")
            b("s_cbranch_scc0 K1_FIN")
        op_phase2(b)
    else:
        if not OPT['opown']:
            b("s_cmp_lt_u32 s2, 256")
            b("s_cbranch_scc0 K1_FIN")
        if OPT['opmode']: op_phase(b)
    b.label("K1_FIN")
    b("s_branch K1_FIN2")
    b("s_branch K1_SLOWEND")
    b.label("K1_SLOW")
    QC=S0[0]
    SS_=S1[0]
    M_,LL_,MT,AL=L0[0],L0[1],L1[0],L1[1]
    s77=77
    b(f"s_mov_b32 s76, s{sSEL}")
    b(f"s_mov_b32 s77, s{sIT}")
    b("s_mov_b32 s78, 0")
    b.label("K1_SPASS")
    for pi,Qx in enumerate((Q0,Q1,Q9)):
        l_=b.new('SP')
        b(f"s_cmp_eq_u32 s78, {pi}")
        b(f"s_cbranch_scc0 {l_}")
        for r in range(16): b(f"v_mov_b32 v{QC+r}, v{Qx+r}")
        b.label(l_)
    for r in range(32): b(f"v_mov_b32 v{O0+r}, 0")
    b(f"v_mov_b32 v{M_}, 0xff800000")
    b(f"v_mov_b32 v{LL_}, 0")
    b(f"s_mov_b32 s{sSOFF}, 0")
    b.label("K1_STILE")
    b("s_barrier")
    b(f"""
s_mov_b32 m0, s{sM0}
s_nop 0
buffer_load_dwordx4 v{DK[0]}, {sr(sK)}, s{sSOFF} offen lds
buffer_load_dwordx4 v{DK[1]}, {sr(sK)}, s{sSOFF} offen offset:1024 lds
s_add_u32 m0, s{sM0}, 8192
s_nop 0
buffer_load_dwordx4 v{DV[0]}, {sr(sV)}, s{sSOFF} offen lds
buffer_load_dwordx4 v{DV[1]}, {sr(sV)}, s{sSOFF} offen offset:1024 lds
s_waitcnt vmcnt(0)
s_barrier
""")
    for kt in range(2):
        for s_ in range(4):
            b(f"ds_read_b128 {vr(KF[s_])}, v{KA[s_]} offset:{kt*4096}")
        b("s_waitcnt lgkmcnt(0)")
        for s_ in range(4):
            b(mfma(SS_+4*kt,KF[s_],QC+4*s_,'0' if s_==0 else SS_+4*kt))
    b("s_nop 7")
    b(f"""
v_max3_f32 v{MT}, v{SS_}, v{SS_+1}, v{SS_+2}
v_max3_f32 v{MT}, v{MT}, v{SS_+3}, v{SS_+4}
v_max3_f32 v{MT}, v{MT}, v{SS_+5}, v{SS_+6}
v_max_f32 v{MT}, v{MT}, v{SS_+7}
ds_bpermute_b32 v{AL}, v{BP16}, v{MT}
s_waitcnt lgkmcnt(0)
v_max_f32 v{MT}, v{MT}, v{AL}
ds_bpermute_b32 v{AL}, v{BP32}, v{MT}
s_waitcnt lgkmcnt(0)
v_max_f32 v{MT}, v{MT}, v{AL}
v_max_f32 v{MT}, v{MT}, v{M_}
v_sub_f32 v{AL}, v{M_}, v{MT}
v_exp_f32 v{AL}, v{AL}
v_mov_b32 v{M_}, v{MT}
""")
    for r in range(8): b(f"v_sub_f32 v{SS_+r}, v{SS_+r}, v{MT}")
    for r in range(8): b(f"v_exp_f32 v{SS_+r}, v{SS_+r}")
    b(f"v_mul_f32 v{LL_}, v{LL_}, v{AL}")
    for r in range(8): b(f"v_add_f32 v{LL_}, v{LL_}, v{SS_+r}")
    for r in range(4): b(f"v_cvt_pk_bf16_f32 v{SS_+r}, v{SS_+2*r}, v{SS_+2*r+1}")
    for r in range(32): b(f"v_mul_f32 v{O0+r}, v{O0+r}, v{AL}")
    for i in range(8):
        b(f"ds_read_b64_tr_b16 {vr(VF[0],2)}, v{VA[i]} offset:0")
        b(f"ds_read_b64_tr_b16 {vr(VF[0]+2,2)}, v{VA[i]} offset:4096")
        b("s_waitcnt lgkmcnt(0)")
        b(mfma(O0+4*i,VF[0],SS_,O0+4*i))
    b(f"s_add_u32 s{sSOFF}, s{sSOFF}, 8192")
    b(f"s_cmp_lt_u32 s{sSOFF}, 262144")
    b("s_cbranch_scc1 K1_STILE")
    b(f"""
ds_bpermute_b32 v{AL}, v{BP16}, v{LL_}
s_waitcnt lgkmcnt(0)
v_add_f32 v{LL_}, v{LL_}, v{AL}
ds_bpermute_b32 v{AL}, v{BP32}, v{LL_}
s_waitcnt lgkmcnt(0)
v_add_f32 v{LL_}, v{LL_}, v{AL}
v_rcp_f32 v{LL_}, v{LL_}
s_nop 7
""")
    b("s_cmp_eq_u32 s78, 2")
    b("s_cbranch_scc1 K1_SP2")
    b(f"s_mul_i32 s{sIT}, s78, {32*4096}")
    b(f"s_add_u32 s{sIT}, s{sIT}, s76")
    for i in (0,2,4,6):
        b(f"""
s_add_u32 s{sT2}, s{sW}, {i//2}
s_and_b32 s{sT2}, s{sT2}, 3
s_lshl_b32 s{sT2}, s{sT2}, 10
s_add_u32 s{sLAST}, s{sT2}, s{sIT}
""")
        pack(O0,i,LL_)
        ostore(O0+4*i)
    b("s_add_u32 s78, s78, 1")
    b("s_waitcnt vmcnt(0)")
    b("s_branch K1_SPASS")
    b.label("K1_SP2")
    b(f"s_lshl_b32 s{sT2}, s{sW}, 10")
    b(f"s_add_u32 s{sLAST}, s{sT2}, s77")
    pack(O0,0,LL_)
    ostore(O0)
    if OPT['wearly']:
        b("s_waitcnt vmcnt(0)")
        b("s_barrier")
        op_early(b)
    b("s_branch K1_STORED")
    b.label("K1_SLOWEND")
    b.label("K1_FIN2")
    if OPT['ost']:
        b(f"s_lshl_b32 s{sT}, s2, 2")
        b(f"s_add_u32 s{sT}, s{sT}, s{sW}")
        b(f"s_lshl_b32 s{sT}, s{sT}, 8")
        b(f"s_add_u32 s{sT}, s{sT}, {60<<20}")
        b(f"s_mov_b32 s{sO+2}, 0x10000000")
        b("v_lshlrev_b32 v3, 2, v0")
        b(f"buffer_store_dword v240, v3, {sr(sO)}, s{sT} offen")
    if OPT['stamps']:
        b("s_waitcnt vmcnt(0)")
        stamp(b,9)
        dump_stamps(b,10,sO,50<<20)
    b.label("K1_END")
    b("s_endpgm")
    ins,added=fix_hazards(b.ins)
    print(f"; k1: {len(ins)} instrs, {added} nop states added",file=sys.stderr)
    return ins

def op_phase(b):
    sWO=8; sOF=12; sPT=16; sOUT=20; sDBG=28
    sNT=45; sHQ=46; sBI=51; sB0=52; sB9=53; sWK2=54; sWM2=55; sBK=56; sITEM=57; sPOLL=58
    ACC0,ACC1,ACC9=4,24,44
    BF=64; AF=[160,180]
    WAd=[216,217,218,219,220]; DWO=[221,222,223,224,225]; VL=210; WAd2=[211,212,213,214,215]
    UNIT=20480
    bsc=' sc1' if OPT['bsc1'] else ''
    b(f"s_setprio 0")
    b(f"""
s_and_b32 s{sNT}, s{sH}, 7
s_lshr_b32 s{sHQ}, s{sH}, 3
v_and_b32 v1, 15, v0
v_lshrrev_b32 v2, 4, v0
v_lshlrev_b32 v{VL}, 4, v0
s_mov_b32 s{sT2}, {(1<<16)//10+1}
""")
    for e in range(0 if OPT['wearly'] else 5):
        b(f"""
v_add_u32 v3, {64*e}, v0
v_mul_u32_u24 v4, s{sT2}, v3
v_lshrrev_b32 v4, 16, v4
v_mul_u32_u24 v5, 10, v4
v_sub_u32 v5, v3, v5
v_mul_u32_u24 v4, 1280, v4
v_lshl_add_u32 v{DWO[e]}, v5, 4, v4
""")
        if 0<e<4: b(f"v_subrev_u32 v{DWO[e]}, {e*1024}, v{DWO[e]}")
    b(f"""
v_bfe_u32 v3, v0, 2, 2
v_lshl_add_u32 v3, v2, 2, v3
v_mul_u32_u24 v3, 160, v3
v_and_b32 v4, 3, v0
v_lshl_add_u32 v3, v4, 3, v3
""")
    for i in range(5):
        b(f"""
s_add_u32 s{sT}, s{sW}, {i}
s_cmp_ge_u32 s{sT}, 5
s_cselect_b32 s{sT2}, 5, 0
s_sub_u32 s{sT}, s{sT}, s{sT2}
s_mov_b32 s{33+i}, s{sT}
s_lshl_b32 s{sT}, s{sT}, 5
v_add_u32 v{WAd[i]}, s{sT}, v3
v_add_u32 v{WAd2[i]}, {2*24576}, v{WAd[i]}
""")
    if not OPT['wearly']: b(f"""
s_mul_i32 s{sT}, s{sHQ}, {1024*1280}
s_mul_i32 s{sT2}, s{sNT}, 160
s_add_u32 s{sT}, s{sT}, s{sT2}
s_add_u32 s{sWO}, s84, s{sT}
s_addc_u32 s{sWO+1}, s85, 0
s_sub_u32 s{sWO+2}, 5242880, s{sT}
s_mov_b32 s{sWO+3}, 0x20000
""")
    b(f"""
s_mov_b32 s{sOF}, s40
s_mov_b32 s{sOF+1}, s41
s_mov_b32 s{sOF+2}, {O_BYTES}
s_mov_b32 s{sOF+3}, 0x20000
s_add_u32 s{sPT}, s40, {WS_PART}
s_addc_u32 s{sPT+1}, s41, 0
s_mov_b32 s{sPT+2}, {PART_BYTES}
s_mov_b32 s{sPT+3}, 0x20000
s_mov_b32 s{sOUT}, s96
s_mov_b32 s{sOUT+1}, s97
s_mov_b32 s{sOUT+2}, {8*144*1280*2}
s_mov_b32 s{sOUT+3}, 0x20000
s_mov_b32 s{sITEM}, 0
""")
    b.label("OP_ITEM")
    UN=24576
    b(f"""
s_lshl_b32 s{sBI}, s{sITEM}, {2 if not OPT['opown'] else 0}
{"s_add_u32 s%d, s%d, s%d"%(sBI,sBI,sB) if not OPT['opown'] else "s_mov_b32 s%d, s%d"%(sBI,sB)}
""")
    if not OPT['wearly']: b(f"""
s_mul_i32 s{sWK2}, s{sW}, {32*1280}
{"s_add_u32 s47, s45, s6" + chr(10) + "s_and_b32 s88, s47, 7" if OPT.get('standalone') else "s_mov_b32 s88, s45"}
s_mul_i32 s{sT}, s88, {128*1280}
s_add_u32 s{sWK2}, s{sWK2}, s{sT}
s_mul_i32 s{sWM2}, s{sW}, 5120
s_mul_i32 s{sBK}, s{sW}, {32*1280}
s_add_u32 s{sBK}, s{sBK}, {8*128*1280}
""")
    def wunit(slot):
        b(f"s_add_u32 m0, s{sWM2}, {slot*UN}")
        b("s_nop 0")
        for e in range(4):
            b(f"buffer_load_dwordx4 v{DWO[e]}, {sr(sWO)}, s{sWK2} offen offset:{e*1024} lds")
        b(f"s_add_u32 m0, m0, 4096")
        b(f"s_add_u32 s{sT}, s{sWK2}, {128*1280}")
        b(f"buffer_load_dwordx4 v{DWO[4]}, {sr(sWO)}, s{sWK2} offen lds")
        b(f"s_cmp_ge_u32 s{sT}, s{sBK}")
        b(f"s_cselect_b32 s{sT2}, {1024*1280}, 0")
        b(f"s_sub_u32 s{sWK2}, s{sT}, s{sT2}")
    s9K=59
    def t9unit(slot):
        b(f"s_lshl_b32 s{sT}, s{sW}, 10")
        b(f"s_add_u32 m0, s{sT}, {slot*UN+20480}")
        b(f"s_add_u32 s{sT2}, s{sB9}, s{s9K}")
        b(f"buffer_load_dwordx4 v{VL}, {sr(sOF)}, s{sT2} offen{bsc} lds")
        b(f"s_add_u32 s{s9K}, s{s9K}, 4096")
        b(f"s_and_b32 s{s9K}, s{s9K}, 32767")
    LB=OPT['oplb']; LW=OPT['oplw']
    if not OPT['wearly']:
        b("s_barrier")
        for u_ in range(LW): wunit(u_)
    for r in range(4,56): b(f"v_mov_b32 v{r}, 0")
    if OPT['ownfirst']:
        b(f"""
    s_lshl_b32 s{sT}, s{sBR}, 3
    s_add_u32 s{sT}, s{sT}, s{sBI}
    s_mul_i32 s{sT}, s{sT}, 9
    s_lshl_b32 s{sT2}, s{sW}, 1
    s_add_u32 s{sB0}, s{sT}, s{sT2}
    s_lshl_b32 s{sB0}, s{sB0}, 17
    s_add_u32 s{sB9}, s{sT}, 8
    s_lshl_b32 s{sB9}, s{sB9}, 17
    s_lshl_b32 s{sT}, s{sHQ}, 15
    s_add_u32 s{sB0}, s{sB0}, s{sT}
    s_add_u32 s{sB9}, s{sB9}, s{sT}
    s_lshl_b32 s{sSEL}, s88, 12
    s_lshl_b32 s{sT}, s{sW}, 10
    s_add_u32 s{s9K}, s{sSEL}, s{sT}
    s_add_u32 s{sPOLL}, s{sB0}, {32*4096}
    """)
        def bload(kk):
            r=BF+8*(kk%8)
            return [f"s_add_u32 s{sT}, s{sB0}, s{sSEL}",
                    f"s_add_u32 s{sT2}, s{sPOLL}, s{sSEL}",
                    f"buffer_load_dwordx4 {vr(r)}, v{VL}, {sr(sOF)}, s{sT} offen{bsc}",
                    f"buffer_load_dwordx4 {vr(r+4)}, v{VL}, {sr(sOF)}, s{sT2} offen{bsc}",
                    f"s_add_u32 s{sSEL}, s{sSEL}, 1024",
                    f"s_and_b32 s{sSEL}, s{sSEL}, 32767"]
        t9unit(0)
        for kk in range(4):
            for l in bload(kk): b(l)
        if OPT['oponly'] or OPT.get('standalone'): b("s_branch OP_WAITED")
        b(f"s_cmp_lg_u32 s{sW}, 0")
        b("s_cbranch_scc1 OP_WAITED")
        b(f"""
    s_lshl_b32 s{sT}, s{sBR}, 3
    s_add_u32 s{sT}, s{sT}, s{sBI}
    s_lshl_b32 s{sT}, s{sT}, 2
    s_add_u32 s{sT}, s{sT}, 128
    s_lshl_b32 s{sLAST}, s{sHQ}, 3
    s_mov_b32 s{sIT}, 0
    v_mov_b32 v61, 0
    s_mov_b64 exec, 1
    """)
        b.label("OP_POLL")
        b(f"""
    {"buffer_load_dword v60, v61, "+sr(sDBG)+f", s{sT} offen sc1" if OPT['pollld'] else "v_mov_b32 v60, 0"+chr(10)+"buffer_atomic_or v60, v61, "+sr(sDBG)+f", s{sT} offen sc0 sc1"}
    s_waitcnt vmcnt(0)
    v_readfirstlane_b32 s{sT2}, v60
    s_lshr_b32 s{sT2}, s{sT2}, s{sLAST}
    s_and_b32 s{sT2}, s{sT2}, 255
    s_cmp_eq_u32 s{sT2}, 255
    s_cbranch_scc1 OP_POLLED
    s_add_u32 s{sIT}, s{sIT}, 1
    s_cmp_lt_u32 s{sIT}, 20000
    s_cbranch_scc0 OP_POLLED
    s_sleep {OPT['psleep']}
    s_branch OP_POLL
    """)
        b.label("OP_POLLED")
        b("s_mov_b64 exec, -1")
        b.label("OP_WAITED")
        b("s_barrier")
        if OPT['stamps']:
            l=b.new('ST'); b(f"s_cmp_eq_u32 s{sITEM}, 0"); b(f"s_cbranch_scc0 {l}a"); stamp(b,5); b(f"s_branch {l}b"); b.label(l+'a'); stamp(b,7); b.label(l+'b')
        t9unit(1)
        for kk in range(4,LB):
            for l in bload(kk): b(l)
    else:
        if OPT['oponly'] or OPT.get('standalone'): b("s_branch OP_WAITED")
        b(f"s_cmp_lg_u32 s{sW}, 0")
        b("s_cbranch_scc1 OP_WAITED")
        b(f"""
    s_lshl_b32 s{sT}, s{sBR}, 3
    s_add_u32 s{sT}, s{sT}, s{sBI}
    s_lshl_b32 s{sT}, s{sT}, 2
    s_add_u32 s{sT}, s{sT}, 128
    s_lshl_b32 s{sLAST}, s{sHQ}, 3
    s_mov_b32 s{sPOLL}, 0
    v_mov_b32 v61, 0
    s_mov_b64 exec, 1
    """)
        b.label("OP_POLL")
        b(f"""
    {"buffer_load_dword v60, v61, "+sr(sDBG)+f", s{sT} offen sc1" if OPT['pollld'] else "v_mov_b32 v60, 0"+chr(10)+"buffer_atomic_or v60, v61, "+sr(sDBG)+f", s{sT} offen sc0 sc1"}
    s_waitcnt vmcnt(0)
    v_readfirstlane_b32 s{sT2}, v60
    s_lshr_b32 s{sT2}, s{sT2}, s{sLAST}
    s_and_b32 s{sT2}, s{sT2}, 255
    s_cmp_eq_u32 s{sT2}, 255
    s_cbranch_scc1 OP_POLLED
    s_add_u32 s{sPOLL}, s{sPOLL}, 1
    s_cmp_lt_u32 s{sPOLL}, 20000
    s_cbranch_scc0 OP_POLLED
    s_sleep {OPT['psleep']}
    s_branch OP_POLL
    """)
        b.label("OP_POLLED")
        b("s_mov_b64 exec, -1")
        b.label("OP_WAITED")
        b("s_barrier")
        if OPT['stamps']:
            l=b.new('ST'); b(f"s_cmp_eq_u32 s{sITEM}, 0"); b(f"s_cbranch_scc0 {l}a"); stamp(b,5); b(f"s_branch {l}b"); b.label(l+'a'); stamp(b,7); b.label(l+'b')
        b(f"""
    s_lshl_b32 s{sT}, s{sBR}, 3
    s_add_u32 s{sT}, s{sT}, s{sBI}
    s_mul_i32 s{sT}, s{sT}, 9
    s_lshl_b32 s{sT2}, s{sW}, 1
    s_add_u32 s{sB0}, s{sT}, s{sT2}
    s_lshl_b32 s{sB0}, s{sB0}, 17
    s_add_u32 s{sB9}, s{sT}, 8
    s_lshl_b32 s{sB9}, s{sB9}, 17
    s_lshl_b32 s{sT}, s{sHQ}, 15
    s_add_u32 s{sB0}, s{sB0}, s{sT}
    s_add_u32 s{sB9}, s{sB9}, s{sT}
    s_lshl_b32 s{sSEL}, s88, 12
    s_lshl_b32 s{sT}, s{sW}, 10
    s_add_u32 s{s9K}, s{sSEL}, s{sT}
    s_add_u32 s{sPOLL}, s{sB0}, {32*4096}
    """)
        def bload(kk):
            r=BF+8*(kk%8)
            return [f"s_add_u32 s{sT}, s{sB0}, s{sSEL}",
                    f"s_add_u32 s{sT2}, s{sPOLL}, s{sSEL}",
                    f"buffer_load_dwordx4 {vr(r)}, v{VL}, {sr(sOF)}, s{sT} offen{bsc}",
                    f"buffer_load_dwordx4 {vr(r+4)}, v{VL}, {sr(sOF)}, s{sT2} offen{bsc}",
                    f"s_add_u32 s{sSEL}, s{sSEL}, 1024",
                    f"s_and_b32 s{sSEL}, s{sSEL}, 32767"]
        for u_ in range(LW): t9unit(u_)
        for kk in range(LB):
            for l in bload(kk): b(l)

    V9=226
    b(f"v_add_u32 v{V9}, 20480, v{VL}")
    b(f"v_add_u32 v{V9+1}, {2*UN}, v{V9}")
    B9F=[228,232]
    def areads(slot,ks,fs,b9):
        off=(slot*UN if slot<2 else 0)
        WW=WAd if slot<2 else WAd2
        o=[f"ds_read_b128 {vr(b9)}, v{V9 if slot<2 else V9+1} offset:{off+ks*1024}"]
        for i in range(5):
            o.append(f"ds_read_b64_tr_b16 {vr(fs+4*i,2)}, v{WW[i]} offset:{off+ks*5120}")
            o.append(f"ds_read_b64_tr_b16 {vr(fs+4*i+2,2)}, v{WW[i]} offset:{off+ks*5120+2560}")
        return o
    q=[]
    for u_ in range(LW): q+=[('W',u_)]*5
    if OPT['ownfirst']:
        q+=[('T',0)]
        for k in range(4): q+=[('B',k)]*2
        q+=[('T',1)]
        for k in range(4,LB): q+=[('B',k)]*2
    else:
        for u_ in range(LW): q+=[('T',u_)]
        for k in range(LB): q+=[('B',k)]*2
    def after(tag):
        idx=max(i for i,t in enumerate(q) if t==tag)
        return len(q)-1-idx
    for UU in range(8):
        u=UU%3
        wb=min(after(('W',UU)),after(('T',UU)),after(('B',4*UU)))
        b(f"s_waitcnt vmcnt({wb})")
        b("s_barrier")
        if OPT['ost']:
            b("s_memtime s[90:91]")
            b("s_waitcnt lgkmcnt(0)")
            b(f"s_lshl_b32 s92, s{sITEM}, 4")
            b(f"s_add_u32 s92, s92, {UU}")
            b("s_mov_b32 m0, s92")
            b("s_nop 1")
            b("v_writelane_b32 v240, s90, m0")
        rd=areads(u,0,AF[0],B9F[0])
        for l in rd: b(l)
        if UU+LW<8 and not OPT['opnow']:
            wunit((UU+LW)%3); t9unit((UU+LW)%3)
            q+=[('W',UU+LW)]*5+[('T',UU+LW)]
        pend=[I(l) for l in rd]
        for ks in range(4):
            kk=4*UU+ks
            fs=AF[ks&1]; b9=B9F[ks&1]
            b(f"s_waitcnt vmcnt({after(('B',kk))})")
            r=BF+8*(kk%8)
            mm=[]
            for i in range(5):
                mm.append(mfma(ACC0+4*i,fs+4*i,r,ACC0+4*i))
                mm.append(mfma(ACC1+4*i,fs+4*i,r+4,ACC1+4*i))
                if i==0: mm.append(mfma(ACC9,fs,b9,ACC9))
                if i==4: mm.append(mfma(ACC9+4,fs+16,b9,ACC9+4))
            nxt=areads(u,ks+1,AF[(ks+1)&1],B9F[(ks+1)&1]) if ks<3 else []
            seq=[]
            for idx,m in enumerate(mm):
                seq.append(I(m))
                if idx<len(nxt): seq.append(I(nxt[idx]))
            if kk+LB<32 and not OPT['opnob']:
                bl=bload(kk+LB); q+=[('B',kk+LB)]*2
                if LB<8:
                    pos=len(seq)//2
                    seq=seq[:pos]+[I(x) for x in bl]+seq[pos:]
                else: seq+= [I(x) for x in bl]
            o,pend=insert_lgkm(seq,pending=pend)
            b.add(o)
    if OPT['stamps']:
        l=b.new('ST'); b(f"s_cmp_eq_u32 s{sITEM}, {0 if OPT['opown'] else 1}"); b(f"s_cbranch_scc0 {l}b"); stamp(b,8); b.label(l+'b')
    if OPT['ost']:
        b("s_memtime s[90:91]")
        b("s_waitcnt lgkmcnt(0)")
        b(f"s_lshl_b32 s92, s{sITEM}, 4")
        b(f"s_add_u32 s92, s92, 8")
        b("s_mov_b32 m0, s92")
        b("s_nop 1")
        b("v_writelane_b32 v240, s90, m0")
    b(f"""
s_lshl_b32 s{sT}, s{sBR}, 3
s_add_u32 s{sT}, s{sT}, s{sBI}
s_lshl_b32 s{sT}, s{sT}, 3
s_add_u32 s{sSEL}, s{sT}, s{sNT}
s_mul_i32 s{sB0}, s{sSEL}, {4*45*1024}
s_mul_i32 s{sT}, s{sHQ}, {45*1024}
s_add_u32 s{sB9}, s{sB0}, s{sT}
s_mul_i32 s{sBK}, s{sW}, {2*5*1024}
s_nop 7
""")
    tiles=[]
    for i in range(5):
        tiles.append((ACC0+4*i,0,i)); tiles.append((ACC1+4*i,5*1024,i))
    def toff(extra,i,dst):
        b(f"s_lshl_b32 s{dst}, s{33+i}, 10")
        b(f"s_add_u32 s{dst}, s{dst}, s{sBK}")
        if extra: b(f"s_add_u32 s{dst}, s{dst}, {extra}")
    for (acc,extra,i) in tiles:
        toff(extra,i,sT)
        b(f"s_add_u32 s{sT}, s{sT}, s{sB9}")
        if not OPT['opnop']: b(f"buffer_store_dwordx4 {vr(acc)}, v{VL}, {sr(sPT)}, s{sT} offen sc1")
    b(f"s_lshl_b32 s{sT}, s33, 10")
    b(f"s_add_u32 s{sT}, s{sT}, {40*1024}")
    b(f"s_add_u32 s{sT}, s{sT}, s{sB9}")
    b(f"buffer_store_dwordx4 {vr(ACC9)}, v{VL}, {sr(sPT)}, s{sT} offen sc1")
    b(f"s_cmp_lg_u32 s{sW}, 0")
    b("s_cbranch_scc1 OP_P1")
    b(f"s_add_u32 s{sT}, s{sB9}, {44*1024}")
    b(f"buffer_store_dwordx4 {vr(ACC9+4)}, v{VL}, {sr(sPT)}, s{sT} offen sc1")
    b.label("OP_P1")
    if OPT.get('standalone'): return
    b("s_waitcnt vmcnt(0)")
    b("s_barrier")
    if OPT['dred']:
        b(f"s_cmp_lg_u32 s{sW}, 0")
        b("s_cbranch_scc1 OP_P2")
        b(f"""
s_and_b32 s{sLAST}, s{sSEL}, 3
s_lshl_b32 s{sLAST}, s{sLAST}, 3
s_lshl_b32 s{sT2}, 1, s{sLAST}
v_mov_b32 v60, s{sT2}
s_lshr_b32 s{sT2}, s{sSEL}, 2
s_lshl_b32 s{sT2}, s{sT2}, 2
v_mov_b32 v61, 0
s_mov_b64 exec, 1
buffer_atomic_add v60, v61, {sr(sDBG)}, s{sT2} offen sc0 sc1
s_mov_b32 s{sPOLL}, 0
s_waitcnt vmcnt(0)
v_readfirstlane_b32 s{sT}, v60
s_lshr_b32 s{sT}, s{sT}, s{sLAST}
s_and_b32 s{sT}, s{sT}, 255
s_cmp_ge_u32 s{sT}, 3
s_cbranch_scc1 OP_RPOLLED
""")
        b.label("OP_RPOLL")
        b(f"""
s_sleep {OPT['rsleep']}
v_mov_b32 v60, 0
buffer_atomic_or v60, v61, {sr(sDBG)}, s{sT2} offen sc0 sc1
s_waitcnt vmcnt(0)
v_readfirstlane_b32 s{sT}, v60
s_lshr_b32 s{sT}, s{sT}, s{sLAST}
s_and_b32 s{sT}, s{sT}, 255
s_cmp_ge_u32 s{sT}, 4
s_cbranch_scc1 OP_RPOLLED
s_add_u32 s{sPOLL}, s{sPOLL}, 1
s_cmp_lt_u32 s{sPOLL}, 20000
s_cbranch_scc1 OP_RPOLL
""")
        b.label("OP_RPOLLED")
        b("s_mov_b64 exec, -1")
        b.label("OP_P2")
        b("s_barrier")
        LD=64
        b(f"s_lshl_b32 s{sWK2}, s{sHQ}, 2")
        b(f"s_add_u32 s{sWK2}, s{sWK2}, s{sW}")
        for j in range(3):
            b(f"s_add_u32 s{sT}, s{sWK2}, {16*j}")
            b(f"s_min_u32 s{sT}, s{sT}, 44")
            b(f"s_lshl_b32 s{sT}, s{sT}, 10")
            b(f"s_add_u32 s{sT}, s{sT}, s{sB0}")
            for d in range(4):
                b(f"buffer_load_dwordx4 {vr(LD+16*j+4*d)}, v{VL}, {sr(sPT)}, s{sT} offen sc1")
                if d<3: b(f"s_add_u32 s{sT}, s{sT}, {45*1024}")
        b(f"""
s_mul_i32 s{sLAST}, s{sBI}, 144
v_add_u32 v3, s{sLAST}, v1
v_mul_u32_u24 v3, 2560, v3
v_lshl_add_u32 v3, v2, 3, v3
s_mul_i32 s{sLAST}, s{sBR}, 1280
s_mul_i32 s{sT2}, s{sNT}, 160
s_add_u32 s{sLAST}, s{sLAST}, s{sT2}
""")
        for j in range(3):
            r=LD+16*j
            b(f"s_waitcnt vmcnt({4*(2-j)+j})")
            for rr in range(4):
                b(f"v_add_f32 v{r+rr}, v{r+rr}, v{r+4+rr}")
                b(f"v_add_f32 v{r+8+rr}, v{r+8+rr}, v{r+12+rr}")
            for rr in range(4): b(f"v_add_f32 v{r+rr}, v{r+rr}, v{r+8+rr}")
            b(f"v_cvt_pk_bf16_f32 v{r}, v{r}, v{r+1}")
            b(f"v_cvt_pk_bf16_f32 v{r+1}, v{r+2}, v{r+3}")
            b(f"s_add_u32 s{sT}, s{sWK2}, {16*j}")
            if j==2:
                b(f"s_cmp_ge_u32 s{sT}, 45")
                b("s_cbranch_scc1 OP_DONE")
            b(f"s_mul_i32 s{sT2}, s{sT}, 52429")
            b(f"s_lshr_b32 s{sT2}, s{sT2}, 18")
            b(f"s_mul_i32 s{sIT}, s{sT2}, 5")
            b(f"s_sub_u32 s{sT}, s{sT}, s{sIT}")
            b(f"s_lshl_b32 s{sT}, s{sT}, 5")
            b(f"s_mul_i32 s{sT2}, s{sT2}, {16*2560}")
            b(f"s_add_u32 s{sT}, s{sT}, s{sT2}")
            b(f"s_add_u32 s{sT}, s{sT}, s{sLAST}")
            b(f"buffer_store_dwordx2 {vr(r,2)}, v3, {sr(sOUT)}, s{sT} offen")
        b.label("OP_DONE")
        if OPT['stamps']: stamp(b,6)
        return
    b(f"s_cmp_lg_u32 s{sW}, 0")
    b("s_cbranch_scc1 OP_P2")
    b(f"""
s_and_b32 s{sT}, s{sSEL}, 3
s_lshl_b32 s{sT}, s{sT}, 3
s_lshl_b32 s{sT2}, 1, s{sT}
v_mov_b32 v60, s{sT2}
s_lshr_b32 s{sT2}, s{sSEL}, 2
s_lshl_b32 s{sT2}, s{sT2}, 2
v_mov_b32 v61, 0
s_mov_b64 exec, 1
buffer_atomic_add v60, v61, {sr(sDBG)}, s{sT2} offen sc0 sc1
s_waitcnt vmcnt(0)
v_lshrrev_b32 v60, s{sT}, v60
v_and_b32 v60, 255, v60
ds_write_b32 v61, v60
s_waitcnt lgkmcnt(0)
s_mov_b64 exec, -1
""")
    b.label("OP_P2")
    b("s_barrier")
    b("""
v_mov_b32 v61, 0
ds_read_b32 v60, v61
s_waitcnt lgkmcnt(0)
""")
    b(f"v_readfirstlane_b32 s{sT}, v60")
    b(f"s_cmp_eq_u32 s{sT}, 3")
    b("s_cbranch_scc0 OP_DONE")
    LD=64
    def addparts(acc,offs_dst):
        for d in range(1,4):
            b(f"s_add_u32 s{sIT}, s{sHQ}, {d}")
            b(f"s_and_b32 s{sIT}, s{sIT}, 3")
            b(f"s_mul_i32 s{sIT}, s{sIT}, {45*1024}")
            b(f"s_add_u32 s{sIT}, s{sIT}, s{sB0}")
            b(f"s_add_u32 s{sIT}, s{sIT}, s{offs_dst}")
            b(f"buffer_load_dwordx4 {vr(acc+4*(d-1))}, v{VL}, {sr(sPT)}, s{sIT} offen sc1")
    k=0; ldmap=[]
    for (acc,extra,i) in tiles:
        toff(extra,i,sT)
        addparts(LD+12*k,sT); ldmap.append((acc,LD+12*k)); k+=1
    b(f"s_lshl_b32 s{sT}, s33, 10")
    b(f"s_add_u32 s{sT}, s{sT}, {40*1024}")
    addparts(LD+12*k,sT); ldmap.append((ACC9,LD+12*k)); k+=1
    b(f"s_mov_b32 s{sT}, {44*1024}")
    addparts(LD+12*k,sT); ldmap.append((ACC9+4,LD+12*k)); k+=1
    b(f"""
s_mul_i32 s{sLAST}, s{sBI}, 144
v_add_u32 v3, s{sLAST}, v1
v_mul_u32_u24 v3, 2560, v3
v_lshl_add_u32 v3, v2, 3, v3
s_mul_i32 s{sLAST}, s{sBR}, 1280
s_mul_i32 s{sT2}, s{sNT}, 160
s_add_u32 s{sLAST}, s{sLAST}, s{sT2}
s_waitcnt vmcnt(0)
""")
    for idx,(acc,ld) in enumerate(ldmap):
        for d in range(3):
            for r in range(4): b(f"v_add_f32 v{acc+r}, v{acc+r}, v{ld+4*d+r}")
        b(f"v_cvt_pk_bf16_f32 v{acc}, v{acc}, v{acc+1}")
        b(f"v_cvt_pk_bf16_f32 v{acc+1}, v{acc+2}, v{acc+3}")
        if idx<10:
            (a2,extra,i)=tiles[idx]
            b(f"s_lshl_b32 s{sT}, s{sW}, 1")
            if extra: b(f"s_add_u32 s{sT}, s{sT}, 1")
            b(f"s_mul_i32 s{sT}, s{sT}, {16*2560}")
            b(f"s_lshl_b32 s{sT2}, s{33+i}, 5")
        elif idx==10:
            b(f"s_mov_b32 s{sT}, {128*2560}")
            b(f"s_lshl_b32 s{sT2}, s33, 5")
        else:
            b(f"s_cmp_lg_u32 s{sW}, 0")
            b("s_cbranch_scc1 OP_DONE")
            b(f"s_mov_b32 s{sT}, {128*2560}")
            b(f"s_mov_b32 s{sT2}, {4*32}")
        b(f"s_add_u32 s{sT}, s{sT}, s{sT2}")
        b(f"s_add_u32 s{sT}, s{sT}, s{sLAST}")
        b(f"buffer_store_dwordx2 {vr(acc,2)}, v3, {sr(sOUT)}, s{sT} offen")
    b.label("OP_DONE")
    if OPT['stamps']:
        l=b.new('ST'); b(f"s_cmp_eq_u32 s{sITEM}, 0"); b(f"s_cbranch_scc0 {l}b"); stamp(b,6); b.label(l+'b')
    b(f"s_add_u32 s{sITEM}, s{sITEM}, 1")
    if not OPT['opown'] or OPT['oponly']:
        b(f"s_cmp_lt_u32 s{sITEM}, {OPT['opmode']}")
        b("s_cbranch_scc1 OP_ITEM")

def op_phase2(b):
    sWO=8; sOF=12; sPT=16; sOUT=20; sDBG=28
    sNT=45; sHQ=46; sBI=51; sB0=52; sB9=53; sWK2=54; sWM2=55; sBK=56; sITEM=57; sPOLL=58
    ACC0,ACC1,ACC9=4,24,44
    BF=64; AF=[160,180]
    WAd=[216,217,218,219,220]; DWO=[221,222,223,224,225]; VL=210; WAd2=[211,212,213,214,215]
    UNIT=20480
    bsc=' sc1' if OPT['bsc1'] else ''
    b(f"s_setprio {OPT['opprio']}")
    b(f"""
s_and_b32 s{sNT}, s{sH}, 7
s_lshr_b32 s{sHQ}, s{sH}, 3
v_and_b32 v1, 15, v0
v_lshrrev_b32 v2, 4, v0
v_lshlrev_b32 v{VL}, 4, v0
s_mov_b32 s{sT2}, {(1<<16)//10+1}
""")
    for e in range(5):
        b(f"""
v_add_u32 v3, {64*e}, v0
v_mul_u32_u24 v4, s{sT2}, v3
v_lshrrev_b32 v4, 16, v4
v_mul_u32_u24 v5, 10, v4
v_sub_u32 v5, v3, v5
v_mul_u32_u24 v4, 1280, v4
v_lshl_add_u32 v{DWO[e]}, v5, 4, v4
""")
        if 0<e<4: b(f"v_subrev_u32 v{DWO[e]}, {e*1024}, v{DWO[e]}")
    b(f"""
v_bfe_u32 v3, v0, 2, 2
v_lshl_add_u32 v3, v2, 2, v3
v_mul_u32_u24 v3, 160, v3
v_and_b32 v4, 3, v0
v_lshl_add_u32 v3, v4, 3, v3
""")
    for i in range(5):
        b(f"""
s_add_u32 s{sT}, s{sW}, {i}
s_cmp_ge_u32 s{sT}, 5
s_cselect_b32 s{sT2}, 5, 0
s_sub_u32 s{sT}, s{sT}, s{sT2}
s_mov_b32 s{33+i}, s{sT}
s_lshl_b32 s{sT}, s{sT}, 5
v_add_u32 v{WAd[i]}, s{sT}, v3
v_add_u32 v{WAd2[i]}, {2*24576}, v{WAd[i]}
""")
    b(f"""
s_mul_i32 s{sT}, s{sHQ}, {1024*1280}
s_mul_i32 s{sT2}, s{sNT}, 160
s_add_u32 s{sT}, s{sT}, s{sT2}
s_add_u32 s{sWO}, s84, s{sT}
s_addc_u32 s{sWO+1}, s85, 0
s_sub_u32 s{sWO+2}, 5242880, s{sT}
s_mov_b32 s{sWO+3}, 0x20000
s_mov_b32 s{sOF}, s40
s_mov_b32 s{sOF+1}, s41
s_mov_b32 s{sOF+2}, {O_BYTES}
s_mov_b32 s{sOF+3}, 0x20000
s_add_u32 s{sPT}, s40, {WS_PART}
s_addc_u32 s{sPT+1}, s41, 0
s_mov_b32 s{sPT+2}, {PART_BYTES}
s_mov_b32 s{sPT+3}, 0x20000
s_mov_b32 s{sOUT}, s96
s_mov_b32 s{sOUT+1}, s97
s_mov_b32 s{sOUT+2}, {8*144*1280*2}
s_mov_b32 s{sOUT+3}, 0x20000
s_mov_b32 s{sITEM}, 0
""")

    UN=24576; CHB=79872
    sDONE=59; s9K=89; sHD=91; sMSK=90; sFA=76
    V9=226; B9F=[228,232]; VP=244
    LB=8
    b(f"v_add_u32 v{V9}, 20480, v{VL}")
    b(f"v_add_u32 v{V9+1}, {2*UN}, v{V9}")
    b(f"v_mov_b32 v{VP+1}, 0")
    b(f"v_mov_b32 v{VP+2}, {CHB}")
    b(f"s_mul_i32 s{sWM2}, s{sW}, 5120")
    def set_head():
        b(f"s_mul_i32 s{sWK2}, s{sHD}, {128*1280}")
        b(f"s_mul_i32 s{sT}, s{sW}, {32*1280}")
        b(f"s_add_u32 s{sWK2}, s{sWK2}, s{sT}")
        b(f"s_lshl_b32 s{sSEL}, s{sHD}, 12")
        b(f"s_lshl_b32 s{sT}, s{sW}, 10")
        b(f"s_add_u32 s{s9K}, s{sSEL}, s{sT}")
    def wunit(slot):
        b(f"s_add_u32 m0, s{sWM2}, {slot*UN}")
        b("s_nop 0")
        for e in range(4):
            b(f"buffer_load_dwordx4 v{DWO[e]}, {sr(sWO)}, s{sWK2} offen offset:{e*1024} lds")
        b(f"s_add_u32 m0, m0, 4096")
        b("s_nop 0")
        b(f"buffer_load_dwordx4 v{DWO[4]}, {sr(sWO)}, s{sWK2} offen lds")
        b(f"s_lshl_b32 s{sT}, s{sW}, 10")
        b(f"s_add_u32 m0, s{sT}, {slot*UN+20480}")
        b(f"s_add_u32 s{sT2}, s{sB9}, s{s9K}")
        b(f"buffer_load_dwordx4 v{VL}, {sr(sOF)}, s{sT2} offen{bsc} lds")
    def bload(kk):
        r=BF+8*(kk%8)
        return [f"s_add_u32 s{sT}, s{sB0}, s{sSEL}",
                f"s_add_u32 s{sT2}, s{sPOLL}, s{sSEL}",
                f"buffer_load_dwordx4 {vr(r)}, v{VL}, {sr(sOF)}, s{sT} offen{bsc}",
                f"buffer_load_dwordx4 {vr(r+4)}, v{VL}, {sr(sOF)}, s{sT2} offen{bsc}",
                f"s_add_u32 s{sSEL}, s{sSEL}, 1024"]
    VFA=241
    if OPT['wsf']: flag_addr(b,VFA,243)
    def pollop():
        if OPT['wsf']:
            b(f"buffer_load_dword v{VP}, v{VFA}, s[72:75], 0 offen sc0 sc1")
        elif OPT['pl2']==0:
            b("s_mov_b64 exec, 1")
            b(f"v_mov_b32 v{VP}, 0")
            b(f"buffer_atomic_or v{VP}, v{VP+1}, {sr(sDBG)}, s{sFA} offen sc0 sc1")
            b("s_mov_b64 exec, -1")
        else:
            b(f"buffer_load_dword v{VP}, v{VP+1}, {sr(sDBG)}, s{sFA} offen sc0 sc1")
    sRDY=77
    def choose(slot,have_async):
        lskip=b.new('CH'); lp=b.new('CH'); lg=b.new('CH')
        b(f"s_cmp_lg_u32 s{sW}, 0")
        b(f"s_cbranch_scc1 {lskip}")
        b(f"s_mov_b32 s{sIT}, 0")
        b(f"s_andn2_b32 s{sMSK}, s{sRDY}, s{sDONE}")
        b(f"s_cmp_lg_u32 s{sMSK}, 0")
        b(f"s_cbranch_scc1 {lg}x")
        b.label(lp)
        pollop()
        b("s_waitcnt vmcnt(0)")
        if OPT['wsf']:
            b(f"v_cmp_ne_u32 vcc, v{VP}, v238")
            b(f"s_lshl_b32 s{sT}, s{sITEM}, 3")
            b(f"s_lshr_b32 s{sRDY}, vcc_lo, s{sT}")
        else:
            b(f"v_readfirstlane_b32 s{sRDY}, v{VP}")
            b(f"s_lshl_b32 s{sT}, s{sHQ}, 3")
            b(f"s_lshr_b32 s{sRDY}, s{sRDY}, s{sT}")
        b(f"""
s_and_b32 s{sRDY}, s{sRDY}, 255
s_add_u32 s{sIT}, s{sIT}, 1
s_cmp_ge_u32 s{sIT}, 20000
s_cselect_b32 s{sT}, 255, 0
s_or_b32 s{sRDY}, s{sRDY}, s{sT}
s_andn2_b32 s{sMSK}, s{sRDY}, s{sDONE}
s_cmp_lg_u32 s{sMSK}, 0
s_cbranch_scc1 {lg}x
s_sleep {OPT['psleep2']}
s_branch {lp}
""")
        b.label(lg+'x')
        b(f"""
s_lshl_b32 s{sT}, s{sMSK}, 8
s_or_b32 s{sT}, s{sT}, s{sMSK}
s_lshr_b32 s{sT}, s{sT}, s{sNT}
s_ff1_i32_b32 s{sT}, s{sT}
s_add_u32 s{sT}, s{sT}, s{sNT}
s_and_b32 s{sT}, s{sT}, 7
s_lshl_b32 s{sT2}, 1, s{sT}
s_or_b32 s{sDONE}, s{sDONE}, s{sT2}
v_mov_b32 v{VP+3}, s{sT}
ds_write_b32 v{VP+2}, v{VP+3} offset:{4*slot}
s_waitcnt lgkmcnt(0)
""")
        b.label(lskip)
    def fetch_head(slot):
        b(f"ds_read_b32 v{VP+3}, v{VP+2} offset:{4*slot}")
        b("s_waitcnt lgkmcnt(0)")
        b(f"v_readfirstlane_b32 s{sHD}, v{VP+3}")
    def areads(slot,ks,fs,b9):
        off=(slot*UN if slot<2 else 0)
        WW=WAd if slot<2 else WAd2
        o=[f"ds_read_b128 {vr(b9)}, v{V9 if slot<2 else V9+1} offset:{off+ks*1024}"]
        for i in range(5):
            o.append(f"ds_read_b64_tr_b16 {vr(fs+4*i,2)}, v{WW[i]} offset:{off+ks*5120}")
            o.append(f"ds_read_b64_tr_b16 {vr(fs+4*i+2,2)}, v{WW[i]} offset:{off+ks*5120+2560}")
        return o
    if OPT['ost']:
        b("s_memtime s[94:95]")
        b("s_waitcnt lgkmcnt(0)")
        b(f"v_writelane_b32 v240, s94, 0")
    b(f"s_mov_b32 s{sITEM}, 0")
    b.label("OP_ITEM")
    b(f"""
s_lshl_b32 s{sBI}, s{sITEM}, 2
s_add_u32 s{sBI}, s{sBI}, s{sB}
s_lshl_b32 s{sT}, s{sBR}, 3
s_add_u32 s{sT}, s{sT}, s{sBI}
s_lshl_b32 s{sFA}, s{sT}, 2
s_add_u32 s{sFA}, s{sFA}, 128
s_mul_i32 s{sT}, s{sT}, 9
s_lshl_b32 s{sT2}, s{sW}, 1
s_add_u32 s{sB0}, s{sT}, s{sT2}
s_lshl_b32 s{sB0}, s{sB0}, 17
s_add_u32 s{sB9}, s{sT}, 8
s_lshl_b32 s{sB9}, s{sB9}, 17
s_lshl_b32 s{sT}, s{sHQ}, 15
s_add_u32 s{sB0}, s{sB0}, s{sT}
s_add_u32 s{sB9}, s{sB9}, s{sT}
s_add_u32 s{sPOLL}, s{sB0}, {32*4096}
s_mov_b32 s{sDONE}, 0
s_mov_b32 s77, 0
""")
    for r in range(4,56): b(f"v_mov_b32 v{r}, 0")
    b("s_barrier")
    q=[]
    if OPT['ost']:
        b("s_memtime s[94:95]")
        b("s_waitcnt lgkmcnt(0)")
        b(f"v_writelane_b32 v240, s94, 1")
    choose(0,False)
    b("s_barrier")
    fetch_head(0); set_head(); wunit(0)
    for kk in range(4):
        for l in bload(kk): b(l)
    q+=[('W',0)]*6
    for k in range(4): q+=[('B',k)]*2
    choose(1,False)
    b("s_barrier")
    fetch_head(1); set_head(); wunit(1)
    for kk in range(4,8):
        for l in bload(kk): b(l)
    q+=[('W',1)]*6
    for k in range(4,8): q+=[('B',k)]*2
    if OPT['stamps']:
        l=b.new('ST'); b(f"s_cmp_eq_u32 s{sITEM}, 0"); b(f"s_cbranch_scc0 {l}a"); stamp(b,5); b(f"s_branch {l}b"); b.label(l+'a'); stamp(b,7); b.label(l+'b')
    def apoll():
        l_=b.new('AP')
        b(f"s_cmp_lg_u32 s{sW}, 0")
        b(f"s_cbranch_scc1 {l_}")
        pollop()
        b.label(l_)
    def after(tag):
        idx=max(i for i,t in enumerate(q) if t==tag)
        return len(q)-1-idx
    for UU in range(8):
        u=UU%3
        if UU+2<8: choose(UU&1,UU>0)
        wb=min(after(('W',UU)),after(('B',4*UU)))
        b(f"s_waitcnt vmcnt({wb})")
        b("s_barrier")
        if OPT['ost']:
            b("s_memtime s[94:95]")
            b("s_waitcnt lgkmcnt(0)")
            b(f"v_writelane_b32 v240, s94, {UU+2}")
        rd=areads(u,0,AF[0],B9F[0])
        if UU+2<8:
            b(f"ds_read_b32 v{VP+3}, v{VP+2} offset:{4*(UU&1)}")
            for l in rd: b(l)
            b(f"s_waitcnt lgkmcnt({len(rd)})")
            b(f"v_readfirstlane_b32 s{sHD}, v{VP+3}")
            set_head(); wunit((UU+2)%3)
            q+=[('W',UU+2)]*6
        else:
            for l in rd: b(l)
        pend=[I(l) for l in rd]
        for ks in range(4):
            kk=4*UU+ks
            fs=AF[ks&1]; b9=B9F[ks&1]
            b(f"s_waitcnt vmcnt({after(('B',kk))})")
            r=BF+8*(kk%8)
            mm=[]
            for i in range(5):
                mm.append(mfma(ACC0+4*i,fs+4*i,r,ACC0+4*i))
                mm.append(mfma(ACC1+4*i,fs+4*i,r+4,ACC1+4*i))
                if i==0: mm.append(mfma(ACC9,fs,b9,ACC9))
                if i==4: mm.append(mfma(ACC9+4,fs+16,b9,ACC9+4))
            nxt=areads(u,ks+1,AF[(ks+1)&1],B9F[(ks+1)&1]) if ks<3 else []
            seq=[]
            for idx,m in enumerate(mm):
                seq.append(I(m))
                if idx<len(nxt): seq.append(I(nxt[idx]))
            if kk+LB<32:
                bl=bload(kk+LB); q+=[('B',kk+LB)]*2
                seq+= [I(x) for x in bl]
            o,pend=insert_lgkm(seq,pending=pend)
            b.add(o)
    if OPT['stamps']:
        l=b.new('ST'); b(f"s_cmp_eq_u32 s{sITEM}, 1"); b(f"s_cbranch_scc0 {l}b"); stamp(b,8); b.label(l+'b')
    if OPT['ost']:
        b("s_memtime s[94:95]")
        b("s_waitcnt lgkmcnt(0)")
        b(f"v_writelane_b32 v240, s94, 10")
    b(f"""
s_lshl_b32 s{sT}, s{sBR}, 3
s_add_u32 s{sT}, s{sT}, s{sBI}
s_lshl_b32 s{sT}, s{sT}, 3
s_add_u32 s{sSEL}, s{sT}, s{sNT}
s_mul_i32 s{sB0}, s{sSEL}, {4*45*1024}
s_mul_i32 s{sT}, s{sHQ}, {45*1024}
s_add_u32 s{sB9}, s{sB0}, s{sT}
s_mul_i32 s{sBK}, s{sW}, {2*5*1024}
s_nop 7
""")
    tiles=[]
    for i in range(5):
        tiles.append((ACC0+4*i,0,i)); tiles.append((ACC1+4*i,5*1024,i))
    for (acc,extra,i) in tiles:
        b(f"s_lshl_b32 s{sT}, s{33+i}, 10")
        b(f"s_add_u32 s{sT}, s{sT}, s{sBK}")
        if extra: b(f"s_add_u32 s{sT}, s{sT}, {extra}")
        b(f"s_add_u32 s{sT}, s{sT}, s{sB9}")
        b(f"buffer_store_dwordx4 {vr(acc)}, v{VL}, {sr(sPT)}, s{sT} offen sc1")
    b(f"s_lshl_b32 s{sT}, s33, 10")
    b(f"s_add_u32 s{sT}, s{sT}, {40*1024}")
    b(f"s_add_u32 s{sT}, s{sT}, s{sB9}")
    b(f"buffer_store_dwordx4 {vr(ACC9)}, v{VL}, {sr(sPT)}, s{sT} offen sc1")
    b(f"s_cmp_lg_u32 s{sW}, 0")
    b("s_cbranch_scc1 OP_P1")
    b(f"s_add_u32 s{sT}, s{sB9}, {44*1024}")
    b(f"buffer_store_dwordx4 {vr(ACC9+4)}, v{VL}, {sr(sPT)}, s{sT} offen sc1")
    b.label("OP_P1")
    def reduce_code(item,tag):
        b(f"""
s_add_u32 s{sBI}, s{sB}, {4*item}
s_lshl_b32 s{sT}, s{sBR}, 3
s_add_u32 s{sT}, s{sT}, s{sBI}
s_lshl_b32 s{sT}, s{sT}, 3
s_add_u32 s{sT}, s{sT}, s{sNT}
s_mul_i32 s{sB0}, s{sT}, {4*45*1024}
s_cmp_lg_u32 s{sW}, 0
s_cbranch_scc1 OP_RP2{tag}
s_mov_b32 s{sPOLL}, 0
""")
        b.label("OP_RPOLL"+tag)
        b(f"""
buffer_load_dword v60, v{VFA}, s[72:75], 0 offen sc0 sc1
s_waitcnt vmcnt(0)
v_cmp_ne_u32 vcc, v60, v238
s_lshr_b32 s{sT}, vcc_lo, {16+4*item}
s_and_b32 s{sT}, s{sT}, 15
s_cmp_eq_u32 s{sT}, 15
s_cbranch_scc1 OP_RP2{tag}
s_add_u32 s{sPOLL}, s{sPOLL}, 1
s_cmp_lt_u32 s{sPOLL}, 20000
s_cbranch_scc0 OP_RP2{tag}
s_sleep {OPT['rsleep']}
s_branch OP_RPOLL{tag}
""")
        b.label("OP_RP2"+tag)
        b("s_barrier")
        LD=64
        b(f"s_lshl_b32 s{sWK2}, s{sHQ}, 2")
        b(f"s_add_u32 s{sWK2}, s{sWK2}, s{sW}")
        for j in range(3):
            b(f"s_add_u32 s{sT}, s{sWK2}, {16*j}")
            b(f"s_min_u32 s{sT}, s{sT}, 44")
            b(f"s_lshl_b32 s{sT}, s{sT}, 10")
            b(f"s_add_u32 s{sT}, s{sT}, s{sB0}")
            for d in range(4):
                b(f"buffer_load_dwordx4 {vr(LD+16*j+4*d)}, v{VL}, {sr(sPT)}, s{sT} offen sc1")
                if d<3: b(f"s_add_u32 s{sT}, s{sT}, {45*1024}")
        b(f"""
s_mul_i32 s{sLAST}, s{sBI}, 144
v_add_u32 v3, s{sLAST}, v1
v_mul_u32_u24 v3, 2560, v3
v_lshl_add_u32 v3, v2, 3, v3
s_mul_i32 s{sLAST}, s{sBR}, 1280
s_mul_i32 s{sT2}, s{sNT}, 160
s_add_u32 s{sLAST}, s{sLAST}, s{sT2}
""")
        for j in range(3):
            r=LD+16*j
            b(f"s_waitcnt vmcnt({4*(2-j)+j})")
            for rr in range(4):
                b(f"v_add_f32 v{r+rr}, v{r+rr}, v{r+4+rr}")
                b(f"v_add_f32 v{r+8+rr}, v{r+8+rr}, v{r+12+rr}")
            for rr in range(4): b(f"v_add_f32 v{r+rr}, v{r+rr}, v{r+8+rr}")
            b(f"v_cvt_pk_bf16_f32 v{r}, v{r}, v{r+1}")
            b(f"v_cvt_pk_bf16_f32 v{r+1}, v{r+2}, v{r+3}")
            b(f"s_add_u32 s{sT}, s{sWK2}, {16*j}")
            if j==2:
                b(f"s_cmp_ge_u32 s{sT}, 45")
                b(f"s_cbranch_scc1 OP_DONE{tag}")
            b(f"s_mul_i32 s{sT2}, s{sT}, 52429")
            b(f"s_lshr_b32 s{sT2}, s{sT2}, 18")
            b(f"s_mul_i32 s{sIT}, s{sT2}, 5")
            b(f"s_sub_u32 s{sT}, s{sT}, s{sIT}")
            b(f"s_lshl_b32 s{sT}, s{sT}, 5")
            b(f"s_mul_i32 s{sT2}, s{sT2}, {16*2560}")
            b(f"s_add_u32 s{sT}, s{sT}, s{sT2}")
            b(f"s_add_u32 s{sT}, s{sT}, s{sLAST}")
            b(f"buffer_store_dwordx2 {vr(r,2)}, v3, {sr(sOUT)}, s{sT} offen")
        b.label("OP_DONE"+tag)
    if OPT['op2']==1:
        b(f"s_cmp_eq_u32 s{sITEM}, 1")
        b("s_cbranch_scc0 OP_NR0")
        reduce_code(0,'A')
        b.label("OP_NR0")
    b("s_waitcnt vmcnt(0)")
    b("s_barrier")
    b(f"s_cmp_lg_u32 s{sW}, 0")
    b("s_cbranch_scc1 OP_P2")
    b(f"""
s_lshl_b32 s{sT}, s{sITEM}, 2
s_add_u32 s{sT}, s{sT}, s{sHQ}
s_add_u32 s{sT}, s{sT}, 16
v_add_u32 v60, 1, v238
v_cmp_eq_u32 vcc, s{sT}, v0
s_and_saveexec_b64 s[78:79], vcc
buffer_store_dword v60, v{VFA}, s[72:75], 0 offen sc0 sc1
s_mov_b64 exec, -1
""")
    b.label("OP_P2")
    if OPT['ost']:
        b("s_memtime s[94:95]")
        b("s_waitcnt lgkmcnt(0)")
        b(f"v_writelane_b32 v240, s94, 11")
    if OPT['stamps']:
        l=b.new('ST'); b(f"s_cmp_eq_u32 s{sITEM}, 0"); b(f"s_cbranch_scc0 {l}b"); stamp(b,6); b.label(l+'b')
    if OPT['op2']==1:
        b(f"s_add_u32 s{sITEM}, s{sITEM}, 1")
        b(f"s_cmp_lt_u32 s{sITEM}, 2")
        b("s_cbranch_scc1 OP_ITEM")
        reduce_code(1,'B')
    else:
        reduce_code(0,'B')


def k23_prologue(b,tag):
    b("s_cmp_ge_u32 s2, 512")
    b(f"s_cbranch_scc1 {tag}_END")
    decode_ids(b)
    b(f"""
s_mul_i32 s3, s{sBR}, 40
s_add_u32 s28, s0, s3
s_addc_u32 s29, s1, 0
s_load_dwordx2 s[40:41], s[0:1], 96
s_load_dwordx2 s[84:85], s[28:29], 32
s_load_dwordx4 s[96:99], s[0:1], 80
v_lshrrev_b32 v1, 6, v0
v_and_b32 v0, 63, v0
s_nop 0
v_readfirstlane_b32 s{sW}, v1
s_waitcnt lgkmcnt(0)
""")
def gen_k2s():
    b=P()
    k23_prologue(b,'K2')
    OPT['standalone']=1
    op_phase(b)
    b.label("K2_END")
    b("s_endpgm")
    ins,added=fix_hazards(b.ins)
    return ins
def gen_k3s():
    b=P()
    k23_prologue(b,'K3')
    sPT=16; sOUT=20; sNT=45; sHQ=46; sB0=52; sWK2=54; VL=210
    b(f"""
s_and_b32 s{sNT}, s{sH}, 7
s_lshr_b32 s{sHQ}, s{sH}, 3
v_and_b32 v1, 15, v0
v_lshrrev_b32 v2, 4, v0
v_lshlrev_b32 v{VL}, 4, v0
s_add_u32 s{sPT}, s40, {WS_PART}
s_addc_u32 s{sPT+1}, s41, 0
s_mov_b32 s{sPT+2}, {PART_BYTES}
s_mov_b32 s{sPT+3}, 0x20000
s_mov_b32 s{sOUT}, s96
s_mov_b32 s{sOUT+1}, s97
s_mov_b32 s{sOUT+2}, {8*144*1280*2}
s_mov_b32 s{sOUT+3}, 0x20000
s_lshl_b32 s{sT}, s{sBR}, 3
s_add_u32 s{sT}, s{sT}, s{sB}
s_lshl_b32 s{sT}, s{sT}, 3
s_add_u32 s{sT}, s{sT}, s{sNT}
s_mul_i32 s{sB0}, s{sT}, {4*45*1024}
s_lshl_b32 s{sWK2}, s{sHQ}, 2
s_add_u32 s{sWK2}, s{sWK2}, s{sW}
""")
    LD=64
    for j in range(3):
        b(f"s_add_u32 s{sT}, s{sWK2}, {16*j}")
        b(f"s_min_u32 s{sT}, s{sT}, 44")
        b(f"s_lshl_b32 s{sT}, s{sT}, 10")
        b(f"s_add_u32 s{sT}, s{sT}, s{sB0}")
        for d in range(4):
            b(f"buffer_load_dwordx4 {vr(LD+16*j+4*d)}, v{VL}, {sr(sPT)}, s{sT} offen")
            if d<3: b(f"s_add_u32 s{sT}, s{sT}, {45*1024}")
    b(f"""
s_mul_i32 s{sLAST}, s{sB}, 144
v_add_u32 v3, s{sLAST}, v1
v_mul_u32_u24 v3, 2560, v3
v_lshl_add_u32 v3, v2, 3, v3
s_mul_i32 s{sLAST}, s{sBR}, 1280
s_mul_i32 s{sT2}, s{sNT}, 160
s_add_u32 s{sLAST}, s{sLAST}, s{sT2}
""")
    for j in range(3):
        r=LD+16*j
        b(f"s_waitcnt vmcnt({4*(2-j)+j})")
        for rr in range(4):
            b(f"v_add_f32 v{r+rr}, v{r+rr}, v{r+4+rr}")
            b(f"v_add_f32 v{r+8+rr}, v{r+8+rr}, v{r+12+rr}")
        for rr in range(4): b(f"v_add_f32 v{r+rr}, v{r+rr}, v{r+8+rr}")
        b(f"v_cvt_pk_bf16_f32 v{r}, v{r}, v{r+1}")
        b(f"v_cvt_pk_bf16_f32 v{r+1}, v{r+2}, v{r+3}")
        b(f"s_add_u32 s{sT}, s{sWK2}, {16*j}")
        if j==2:
            b(f"s_cmp_ge_u32 s{sT}, 45")
            b("s_cbranch_scc1 K3_END")
        b(f"s_mul_i32 s{sT2}, s{sT}, 52429")
        b(f"s_lshr_b32 s{sT2}, s{sT2}, 18")
        b(f"s_mul_i32 s{sIT}, s{sT2}, 5")
        b(f"s_sub_u32 s{sT}, s{sT}, s{sIT}")
        b(f"s_lshl_b32 s{sT}, s{sT}, 5")
        b(f"s_mul_i32 s{sT2}, s{sT2}, {16*2560}")
        b(f"s_add_u32 s{sT}, s{sT}, s{sT2}")
        b(f"s_add_u32 s{sT}, s{sT}, s{sLAST}")
        b(f"buffer_store_dwordx2 {vr(r,2)}, v3, {sr(sOUT)}, s{sT} offen")
    b.label("K3_END")
    b("s_endpgm")
    ins,added=fix_hazards(b.ins)
    return ins

def emit(name,ins):
    s=f".globl {name}\n.p2align 8\n.type {name},@function\n{name}:\n"
    for i in ins:
        s+= (i.text+'\n') if i.kind=='label' else ('    '+i.text+'\n')
    return s
def desc(name,vgpr=256,sgpr=102):
    return f""".amdhsa_kernel {name}
  .amdhsa_next_free_vgpr {vgpr}
  .amdhsa_next_free_sgpr {sgpr}
  .amdhsa_accum_offset {(vgpr+3)//4*4}
  .amdhsa_group_segment_fixed_size 0
  .amdhsa_kernarg_size 104
  .amdhsa_user_sgpr_count 2
  .amdhsa_user_sgpr_kernarg_segment_ptr 1
  .amdhsa_system_sgpr_workgroup_id_x 1
.end_amdhsa_kernel
"""
if __name__=='__main__':
    outp=sys.argv[1]
    for a in sys.argv[2:]:
        k,v=a.split('='); OPT[k]=int(v)
    if OPT.get('multi'):
        OPT['opmode']=0; OPT['op2']=0; OPT['wsf']=0; OPT['nosig']=1
        k1=gen_k1()
        OPT['bsc1']=0; OPT['stamps']=0
        k2=gen_k2s(); k3=gen_k3s()
        ks=[('k1_kernel',k1),('k2_kernel',k2),('k3_kernel',k3)]
        txt=''
        for n,_ in ks: txt+=f"; @launch kernel={n} grid=(512,1,1) block=(256,1,1) lds={81920 if n!='k3_kernel' else 0}\n"
        txt+='.amdgcn_target "amdgcn-amd-amdhsa--gfx950"\n.text\n'
        for n,i in ks: txt+=emit(n,i)
        txt+='.section .rodata,"a"\n'
        for n,_ in ks: txt+='.p2align 6\n'+desc(n)
        open(outp,'w').write(txt)
        sys.exit(0)
    k1=gen_k1()
    txt="; @launch grid=(512,1,1) block=(256,1,1) lds=81920\n"
    txt+='.amdgcn_target "amdgcn-amd-amdhsa--gfx950"\n.text\n'
    txt+=emit(NAME,k1)
    txt+='.section .rodata,"a"\n.p2align 6\n'+desc(NAME)
    open(outp,'w').write(txt)
```
